```python
import torch

def _softmax(x, axis=-1):
    return torch.softmax(x, dim=axis)
def _gelu(x):
    return torch.nn.functional.gelu(x, approximate="tanh")
def _silu(x):
    return torch.nn.functional.silu(x)
def _sigmoid(x):
    return torch.sigmoid(x)
def _layernorm(x, axis=-1, eps=1e-5):
    m = x.mean(dim=axis, keepdim=True)
    v = x.var(dim=axis, keepdim=True, unbiased=False)
    return (x - m) / torch.sqrt(v + eps)
def _scatter_add(tgt, idx, src, axis=0):
    return tgt.clone().index_add_(axis, idx, src)
def _segment_sum(src, seg, n):
    out = torch.zeros((n,) + src.shape[1:], dtype=src.dtype)
    return out.index_add_(0, seg, src)
def _pad(x, pw):
    flat = tuple(v for pair in reversed(pw) for v in pair)
    return torch.nn.functional.pad(x, flat)

kernel_name = 'sequential_preLN__spectral_gfnet__dense_activation_silu__prompt'

def setup_inputs():

    _w = (lambda a: (lambda t: t.to(torch.bfloat16) if t.is_floating_point() else t)(torch.as_tensor(a)))
    def _A_setup():
        B, S, D = 1, 2048, 640
        Df = D // 2 + 1
        return {
            "x": _w((lambda *s: torch.randn(*s, dtype=torch.bfloat16) * 0.05)(B, S, D)),
            "w_r": _w((lambda *s: torch.randn(*s, dtype=torch.bfloat16) * 0.4)(S, Df) * 0.02),
            "w_i": _w((lambda *s: torch.randn(*s, dtype=torch.bfloat16) * 0.4)(S, Df) * 0.02),
        }
    _A_in = _A_setup()

    def _B_setup():
        B, S, D, F = 1, 2048, 640, 1728
        return {
            "x": _w((lambda *s: torch.randn(*s, dtype=torch.bfloat16) * 0.05)(B, S, D)),
            "w1": _w((lambda *s: torch.randn(*s, dtype=torch.bfloat16) * 0.8)(D, F) * (D ** -0.5)),
            "w2": _w((lambda *s: torch.randn(*s, dtype=torch.bfloat16) * 0.1)(F, D) * (F ** -0.5)),
        }
    _B_in = _B_setup()

    return {
        "A_x": _A_in["x"],
        "A_w_r": _A_in["w_r"],
        "A_w_i": _A_in["w_i"],
        "B_x": _B_in["x"],
        "B_w1": _B_in["w1"],
        "B_w2": _B_in["w2"],
    }

def reference(A_x, A_w_r, A_w_i, B_x, B_w1, B_w2):
    def _A_ref(x, w_r, w_i):
        B, S, D = x.shape
        X = (lambda x, axes=(-2,-1): torch.fft.rfft2(x.float(), dim=axes))(x, axes=(-2, -1))
        W = w_r + 1j * w_i
        X = X * W
        y = (lambda x, s, axes=(-2,-1): torch.fft.irfft2(x, s=s, dim=axes).to(torch.bfloat16))(X, (S, D), axes=(-2, -1))
        return y

    def _B_ref(x, w1, w2):
        h = torch.einsum("bsd,df->bsf", x, w1)
        h = _silu(h)
        out = torch.einsum("bsf,fd->bsd", h, w2)
        return out

    x = A_x
    h = x + _A_ref(_layernorm(x, axis=-1), A_w_r, A_w_i)
    h2 = h + _B_ref(_layernorm(h, axis=-1), B_w1, B_w2)
    return h2
```

```python
import re

REG_RE = re.compile(r'^(-|abs\()?([vas])(?:\[(\d+):(\d+)\]|(\d+))\)?$')
TRANS = ('v_exp_f32', 'v_log_f32', 'v_rcp_f32', 'v_rsq_f32', 'v_sqrt_f32', 'v_sin_f32', 'v_cos_f32')

def regs_of(op):
    op = op.strip()
    if op in ('vcc', 'vcc_lo', 'vcc_hi'): return {('s', 'vcc')}
    if op in ('exec', 'exec_lo', 'exec_hi'): return {('s', 'exec')}
    if op == 'm0': return {('s', 'm0')}
    m = REG_RE.match(op)
    if not m: return set()
    k = m.group(2)
    if m.group(5) is not None: return {(k, int(m.group(5)))}
    return {(k, i) for i in range(int(m.group(3)), int(m.group(4)) + 1)}

class Ins:
    def __init__(self, text):
        self.text = text
        t = text.split(';')[0].strip()
        parts = t.split(None, 1)
        self.mn = parts[0]
        rest = parts[1] if len(parts) > 1 else ''
        ops = [o.strip() for o in re.split(r',(?![^\[]*\])', rest)] if rest else []
        self.mods = ''
        if ops:
            last = ops[-1].split(None, 1)
            ops[-1] = last[0]
            self.mods = last[1] if len(last) > 1 else ''
        self.ops = ops
        mn = self.mn
        R = [regs_of(o) for o in ops]
        U = lambda l: set().union(*l) if l else set()
        self.kind = 'other'; self.w = set(); self.r = set(); self.srcC = set(); self.AB = set(); self.data = set()
        self.passes = 0; self.dpp = False; self.wide = False
        if mn.startswith('v_mfma'):
            self.kind = 'mfma'; self.w = R[0]; self.AB = R[1] | R[2]; self.srcC = R[3]; self.r = self.AB | self.srcC
            self.passes = 8 if '32x32' in mn else 4
        elif mn.startswith('v_'):
            self.kind = 'valu'
            self.dpp = ('_dpp' in mn) or ('row_' in self.mods) or ('quad_perm' in self.mods)
            if mn.startswith('v_cmp'):
                self.w = R[0]; self.r = U(R[1:])
                if mn.startswith('v_cmpx'): self.w |= {('s', 'exec')}
            elif 'permlane' in mn and 'swap' in mn:
                self.w = R[0] | R[1]; self.r = R[0] | R[1]
            elif mn.startswith(('v_add_co', 'v_sub_co', 'v_addc_co', 'v_subb_co', 'v_mad_u64')):
                self.w = R[0] | R[1]; self.r = U(R[2:])
            else:
                self.w = R[0]; self.r = U(R[1:])
                if mn.startswith(('v_fmac', 'v_dot2c', 'v_pk_fmac', 'v_writelane')) or self.dpp: self.r |= R[0]
                if mn.startswith('v_cndmask') and len(ops) == 3: self.r |= {('s', 'vcc')}
        elif mn.startswith('buffer_load') or mn.startswith('global_load'):
            self.kind = 'vmem'
            if re.search(r'\blds\b', self.mods): self.r = U(R) | {('s', 'm0')}; self.dma = True
            else:
                self.w = R[0]; self.r = U(R[1:])
                if 'd16' in mn: self.r |= R[0]
        elif mn.startswith('buffer_store') or mn.startswith('buffer_atomic'):
            self.kind = 'vmem'; self.r = U(R); self.data = R[0]; self.wide = ('x3' in mn or 'x4' in mn)
            if mn.startswith('buffer_atomic') and 'sc0' in self.mods: self.w = R[0]
        elif mn.startswith('ds_read') or mn.startswith('ds_bpermute') or mn.startswith('ds_swizzle'):
            self.kind = 'ds'; self.w = R[0]; self.r = U(R[1:])
        elif mn.startswith('ds_write'):
            self.kind = 'ds'; self.r = U(R)
        elif mn.startswith('s_load') or mn.startswith('s_memtime') or mn.startswith('s_memrealtime'):
            self.kind = 'smem'; self.w = R[0]; self.r = U(R[1:])
        elif mn.startswith('s_'):
            self.kind = 'salu'
            if mn.startswith(('s_cmp', 's_waitcnt', 's_barrier', 's_branch', 's_cbranch', 's_nop', 's_endpgm', 's_sleep', 's_setprio', 's_bitcmp')):
                self.r = U(R)
                if 'vcc' in mn: self.r |= {('s', 'vcc')}
            else:
                self.w = R[0]; self.r = U(R[1:])
                if 'saveexec' in mn: self.w |= {('s', 'exec')}
        else:
            raise ValueError('unknown instruction ' + text)
        self.trans = mn.replace('_e32', '').replace('_e64', '') in TRANS
        self.dl = mn.startswith('v_dot')
    def states(self):
        if self.mn == 's_nop': return int(self.ops[0], 0) + 1
        return 1

def need(prev, cur):
    n = 0
    vec = lambda s: {x for x in s if x[0] != 's'}
    sca = lambda s: {x for x in s if x[0] == 's'}
    if prev.kind == 'valu':
        pw = vec(prev.w); ps = sca(prev.w)
        if cur.kind == 'mfma' and pw & cur.r: n = max(n, 3 if prev.dl else 2)
        if cur.kind == 'mfma' and ('s', 'exec') in ps: n = max(n, 4)
        if cur.kind == 'valu':
            if cur.dpp and pw & cur.r: n = max(n, 2)
            if cur.dpp and ('s', 'exec') in ps: n = max(n, 5)
            if 'permlane' in cur.mn and pw & cur.r: n = max(n, 2)
            if cur.mn.startswith(('v_readlane', 'v_readfirstlane')) and pw & cur.r: n = max(n, 1)
            if ps & cur.r: n = max(n, 4 if cur.mn.startswith(('v_readlane', 'v_writelane')) else 2)
            if prev.trans and not cur.trans and pw & cur.r: n = max(n, 1)
            if prev.dl:
                if cur.mn == prev.mn:
                    srcab = set().union(*[regs_of(o) for o in cur.ops[1:3]])
                    if pw & srcab: n = max(n, 3)
                elif pw & (cur.r | cur.w): n = max(n, 3)
        if prev.dl and cur.kind in ('vmem', 'ds') and pw & (cur.r | cur.w): n = max(n, 3)
        if prev.trans and cur.kind in ('vmem', 'ds', 'mfma') and pw & cur.r: n = max(n, 2)
        if cur.kind == 'vmem' and ps & cur.r: n = max(n, 5)
        if cur.kind in ('salu', 'smem') and ps & cur.r: n = max(n, 1)
    if prev.kind == 'mfma':
        big = {4: 8, 8: 12}[prev.passes]; ovl = {4: 6, 8: 10}[prev.passes]; war = {4: 3, 8: 7}[prev.passes]
        if cur.kind == 'mfma':
            if prev.w & cur.AB: n = max(n, big)
            if prev.w & cur.srcC and not (prev.w == cur.srcC and prev.passes == cur.passes): n = max(n, ovl)
            if prev.w & cur.w and not (prev.w == cur.srcC and prev.passes == cur.passes): n = max(n, ovl)
        elif cur.kind in ('valu', 'vmem', 'ds'):
            if prev.w & (cur.r | cur.w): n = max(n, big)
            if prev.srcC & cur.w: n = max(n, war)
    if prev.kind == 'vmem' and prev.wide and prev.data & cur.w: n = max(n, 2)
    if prev.kind == 'salu' and ('s', 'm0') in prev.w and cur.kind == 'vmem' and ('s', 'm0') in cur.r: n = max(n, 1)
    return n

class Gen:
    def __init__(self):
        self.out = []
        self.hist = []
        self.vm = []
        self.lg = []
        self.tok = 0
        self.nins = 0
        self.nlabel = 0
    def raw(self, text): self.out.append(text)
    def c(self, text): self.out.append('    ; ' + text)
    def _emit(self, ins):
        self.out.append('    ' + ins.text); self.hist.append(ins); self.nins += 1
        if len(self.hist) > 24: self.hist.pop(0)
    def _wait(self, vm=None, lg=None):
        parts = []
        if vm is not None:
            vm = min(vm, 63); parts.append(f'vmcnt({vm})'); self.vm = self.vm[len(self.vm)-vm:] if vm else []
        if lg is not None:
            if any(p[2] for p in self.lg): lg = 0
            lg = min(lg, 15); parts.append(f'lgkmcnt({lg})'); self.lg = self.lg[len(self.lg)-lg:] if lg else []
        if parts: self._emit(Ins('s_waitcnt ' + ' '.join(parts)))
    def I(self, text):
        ins = Ins(text)
        touched = ins.r | ins.w
        vm = lg = None
        for i, p in enumerate(self.vm):
            if p[1] & touched: vm = len(self.vm) - 1 - i
        for i, p in enumerate(self.lg):
            if p[1] & touched: lg = len(self.lg) - 1 - i
        self._wait(vm, lg)
        dist = 0; pad = 0
        for prev in reversed(self.hist):
            pad = max(pad, need(prev, ins) - dist)
            dist += prev.states()
            if dist > 20: break
        while pad > 0:
            k = min(pad, 16); self._emit(Ins(f's_nop {k-1}')); pad -= k
        self._emit(ins)
        if ins.kind == 'vmem':
            self.tok += 1; self.vm.append((self.tok, set(ins.w))); return self.tok
        if ins.kind in ('ds', 'smem'):
            self.tok += 1; self.lg.append((self.tok, set(ins.w), ins.kind == 'smem')); return self.tok
        return None
    def wait_tok(self, tok):
        for i, p in enumerate(self.vm):
            if p[0] == tok: self._wait(vm=len(self.vm) - 1 - i); return
        for i, p in enumerate(self.lg):
            if p[0] == tok: self._wait(lg=len(self.lg) - 1 - i); return
    def wait_vm0(self, force=False):
        if self.vm or force: self._wait(vm=0)
    def wait_lg0(self, force=False):
        if self.lg or force: self._wait(lg=0)
    def barrier(self):
        self.wait_lg0(); self.I('s_barrier')
    def label(self, name): self.out.append(name + ':')
    def newlabel(self, base='L'):
        self.nlabel += 1; return f'{base}_{self.nlabel}'
    def settle(self):
        worst = 0; dist = 0
        for prev in reversed(self.hist):
            lim = 0
            if prev.kind == 'mfma': lim = {4: 8, 8: 12}[prev.passes]
            elif prev.kind == 'valu': lim = 5 if any(x[0] == 's' for x in prev.w) else 3
            elif prev.kind == 'vmem' and prev.wide: lim = 2
            elif prev.kind == 'salu' and ('s', 'm0') in prev.w: lim = 1
            worst = max(worst, lim - dist); dist += prev.states()
            if dist > 20: break
        while worst > 0:
            k = min(worst, 16); self._emit(Ins(f's_nop {k-1}')); worst -= k
    def cond_begin(self):
        self.settle()
        return (list(self.vm), list(self.lg))
    def cond_end(self, snap, covered=False):
        old_vm = {p[0] for p in snap[0]}; old_lg = {p[0] for p in snap[1]}
        for p in self.vm:
            assert covered or p[0] in old_vm or not p[1], 'load issued inside a conditional region still pending at its end'
        for p in self.lg:
            assert p[0] in old_lg or not p[1], 'lds read issued inside a conditional region still pending at its end'
        extra_vm = [p for p in self.vm if p[0] not in old_vm]; extra_lg = [p for p in self.lg if p[0] not in old_lg]
        self.settle()
        self.vm, self.lg = snap
        if extra_vm: self.vm = [(-1, set())] + self.vm
        if extra_lg: self.lg = [(-1, set(), False)] + self.lg
    def text(self): return '\n'.join(self.out) + '\n'

def vr(a, n=1, k='v'):
    return f'{k}{a}' if n == 1 else f'{k}[{a}:{a+n-1}]'
def ar(a, n=1): return vr(a, n, 'a')
def sr(a, n=1): return vr(a, n, 's')
```

```python
import numpy as np
S, D, F = 2048, 640, 1728

def bf16(a):
    a = np.ascontiguousarray(a, dtype=np.float32)
    u = a.view(np.uint32)
    r = ((u + 0x7FFF + ((u >> 16) & 1)) & 0xFFFF0000).astype(np.uint32)
    return r.view(np.float32)
def f16(a):
    return np.asarray(a, dtype=np.float32).astype(np.float16).astype(np.float32)
ident = lambda a: np.asarray(a, dtype=np.float32)

def col2bin():
    b = np.zeros(320, np.int64); mir = np.zeros(320, bool)
    for m5 in range(5):
        for kb in range(64):
            c = 64*m5 + kb
            if kb == 0:
                b[c] = [320, 128, 256, 64, 192][m5]
            else:
                k = kb + 128*m5
                if k > 320: b[c] = 640 - k; mir[c] = True
                else: b[c] = k
    return b, mir

def rowstats(x):
    x = x.astype(np.float32)
    m = x.sum(-1) / np.float32(D)
    var = (x*x).sum(-1) / np.float32(D) - m*m
    vb = bf16(var); t = bf16(vb + np.float32(1e-5)); s = bf16(np.sqrt(t))
    return m, (1.0 / s).astype(np.float32)

def mats128(rnd):
    q = np.arange(128)[:, None]; kb = np.arange(64)[None, :]
    C = np.cos(2*np.pi*q*kb/128); Sn = -np.sin(2*np.pi*q*kb/128)
    Sn[:, 0] = (-1.0)**np.arange(128)
    return rnd(C), rnd(Sn)

def twid():
    kb = np.arange(64)
    t1 = np.zeros((5, 64)); t2 = np.zeros((5, 64)); t3 = np.zeros((5, 64))
    for c in range(5):
        t1[c] = np.cos(2*np.pi*c*kb/640); t2[c] = np.sin(2*np.pi*c*kb/640); t3[c] = t1[c]
        t3[c, 0] = (-1.0)**c
    return t1.astype(np.float32), t2.astype(np.float32), t3.astype(np.float32)
C1, C2, S1, S2 = [np.float32(v) for v in (np.cos(2*np.pi/5), np.cos(4*np.pi/5), np.sin(2*np.pi/5), np.sin(4*np.pi/5))]

def P1(x, rA=bf16, rB=f16):
    m, r = rowstats(x)
    C, Sn = mats128(rA)
    xc = x.reshape(S, 128, 5).transpose(2, 0, 1)
    Vr = xc @ C; Vi = xc @ Sn
    t1, t2, t3 = twid()
    sc = (r / np.float32(np.sqrt(640.0) * 4))[None, :, None]
    zr = (Vr*t1[:, None, :] + Vi*t2[:, None, :]) * sc
    zi = (Vi*t3[:, None, :] - Vr*t2[:, None, :]) * sc
    mu = np.ones(64, np.float32); mu[0] = 0
    def half(z):
        a, b, c_, d = z[1]+z[4], z[2]+z[3], z[1]-z[4], z[2]-z[3]
        return z[0]+a+b, z[0]+C1*a+C2*b, z[0]+C2*a+C1*b, S1*c_+S2*d, S2*c_-S1*d
    u0, u1, u2, v1, v2 = half(zr); U0, U1, U2, V1, V2 = half(zi)
    Xr = np.stack([mu*u0, u1+mu*V1, u2+mu*V2, mu*u2-V2, mu*u1-V1], 1).reshape(S, 320)
    Xi = np.stack([U0, mu*U1-v1, mu*U2-v2, U2+mu*v2, U1+mu*v1], 1).reshape(S, 320)
    Xr = rB(Xr).reshape(16, 128, 320); Xi = rB(Xi).reshape(16, 128, 320)
    jp = np.arange(16)[:, None, None]; j = np.arange(16)[None, :, None]; s1 = np.arange(128)[None, None, :]
    th = 2*np.pi*((jp*(s1+128*j)) % 2048)/2048
    c_, s_ = rB(np.cos(th)), rB(np.sin(th))
    Tr = np.einsum('pjs,jsc->spc', c_, Xr) + np.einsum('pjs,jsc->spc', s_, Xi)
    Ti = np.einsum('pjs,jsc->spc', c_, Xi) - np.einsum('pjs,jsc->spc', s_, Xr)
    return rB(Tr), rB(Ti)

def weff(wr, wi):
    b, mir = col2bin()
    ks = np.arange(S)[:, None]
    row = np.where(mir[None, :], (S - ks) % S, ks)
    Wr = wr[row, b[None, :]]; Wi = wi[row, b[None, :]] * np.where(mir, -1.0, 1.0)[None, :].astype(np.float32)
    return Wr, Wi

def P2(Tr, Ti, wr, wi, rB=f16, rC=bf16):
    Wr, Wi = weff(wr, wi)
    Wr = Wr.reshape(128, 16, 320); Wi = Wi.reshape(128, 16, 320)
    s1 = np.arange(128)[None, :]; k0 = np.arange(32)[:, None]
    th = 2*np.pi*((s1*k0) % 128)/128
    c_, s_ = rB(np.cos(th)), rB(np.sin(th))
    G = []
    T2r = Tr.reshape(128, -1); T2i = Ti.reshape(128, -1)
    for c in range(4):
        cc, ss = c_[:, c::4], s_[:, c::4]
        G.append((cc @ T2r[c::4] + ss @ T2i[c::4]) + 1j*(cc @ T2i[c::4] - ss @ T2r[c::4]))
    G = [g.astype(np.complex64) for g in G]
    Z = [sum(G[c] * ((-1j)**(c*m)) for c in range(4)) for m in range(4)]
    Z = np.concatenate(Z, 0).astype(np.complex64)
    Zp = Z * (Wr + 1j*Wi).reshape(128, -1) * np.float32(1/128.)
    Zp = Zp.reshape(4, 32, -1)
    ci, si = rC(np.cos(th)), rC(np.sin(th))
    Tor = np.zeros_like(T2r); Toi = np.zeros_like(T2i)
    for c in range(4):
        H = sum(Zp[m] * ((1j)**(c*m)) for m in range(4))
        Hr, Hi = rC(H.real), rC(H.imag)
        cc, ss = ci[:, c::4].T, si[:, c::4].T
        Tor[c::4] = cc @ Hr - ss @ Hi; Toi[c::4] = ss @ Hr + cc @ Hi
    return rC(Tor).reshape(128, 16, 320), rC(Toi).reshape(128, 16, 320)

def P3(Tr, Ti, x, rC=bf16):
    jp = np.arange(16)[:, None, None]; j = np.arange(16)[None, :, None]; s1 = np.arange(128)[None, None, :]
    th = 2*np.pi*((jp*(s1+128*j)) % 2048)/2048
    c_, s_ = rC(np.cos(th)), rC(np.sin(th))
    Xr = np.einsum('pjs,spc->jsc', c_, Tr) - np.einsum('pjs,spc->jsc', s_, Ti)
    Xi = np.einsum('pjs,spc->jsc', s_, Tr) + np.einsum('pjs,spc->jsc', c_, Ti)
    Zr = Xr.reshape(S, 5, 64).transpose(1, 0, 2); Zi = Xi.reshape(S, 5, 64).transpose(1, 0, 2)
    mu = np.ones(64, np.float32); mu[0] = 0
    nu = np.ones(64, np.float32); nu[0] = 0.5
    u0 = mu*Zr[0]; U0 = nu*Zi[0]
    u1 = Zr[1]+mu*Zr[4]; V1 = mu*Zr[1]-Zr[4]; U1 = mu*Zi[1]+Zi[4]; v1 = mu*Zi[4]-Zi[1]
    u2 = Zr[2]+mu*Zr[3]; V2 = mu*Zr[2]-Zr[3]; U2 = mu*Zi[2]+Zi[3]; v2 = mu*Zi[3]-Zi[2]
    def half(a0, a1, a2, b1, b2):
        p1 = a0+C1*a1+C2*a2; p2 = a0+C2*a1+C1*a2; q1 = S1*b1+S2*b2; q2 = S2*b1-S1*b2
        return np.stack([a0+a1+a2, p1+q1, p2+q2, p2-q2, p1-q1])
    zr = half(u0, u1, u2, v1, v2); zi = half(U0, U1, U2, V1, V2)
    t1, t2, t3 = twid()
    sc = np.float32(2/np.sqrt(640.0)/4)
    Vr = rC((zr*t1[:, None, :] - zi*t2[:, None, :]) * sc); Vi = rC((zi*t3[:, None, :] + zr*t2[:, None, :]) * sc)
    C, Sn = mats128(rC)
    y = Vr @ C.T + Vi @ Sn.T
    A = y.transpose(1, 2, 0).reshape(S, D)
    h = bf16(x + A)
    m, r = rowstats(h)
    ln2 = bf16((h - m[:, None]) * r[:, None])
    return A, h, ln2

def P45(h, ln2, w1, w2):
    a = ln2 @ w1
    h1 = bf16(a / (1 + np.exp(-a)))
    return h1, bf16(h + bf16(h1 @ w2))

def ref_np(x, wr, wi, w1, w2):
    def ln(x):
        m = bf16(x.mean(-1, keepdims=True)); v = bf16(x.astype(np.float64).var(-1, keepdims=True))
        return bf16(bf16(x - m) / bf16(np.sqrt(bf16(v + np.float32(1e-5)))))
    X = np.fft.rfft2(ln(x).astype(np.float64)) * (wr + 1j*wi)
    A = bf16(np.fft.irfft2(X, s=(S, D)))
    h = bf16(x + A)
    a = bf16(ln(h) @ w1)
    h1 = bf16(a / (1 + np.exp(-a)))
    return A, h, bf16(h + bf16(h1 @ w2))

def make_inputs(seed=0):
    rng = np.random.default_rng(seed)
    g = lambda *s: bf16(rng.standard_normal(s).astype(np.float32))
    x = bf16(g(S, D)*0.05); wr = bf16(bf16(g(S, 321)*0.4)*0.02); wi = bf16(bf16(g(S, 321)*0.4)*0.02)
    w1 = bf16(bf16(g(D, F)*0.8) * D**-0.5); w2 = bf16(bf16(g(F, D)*0.1) * F**-0.5)
    return x, wr, wi, w1, w2

if __name__ == '__main__':
    x, wr, wi, w1, w2 = make_inputs()
    Aref, href, oref = ref_np(x, wr, wi, w1, w2)
    for name, (rA, rB, rC) in {'exact': (ident, ident, ident), 'bf/f16/bf': (bf16, f16, bf16), 'bf/f16/f16': (bf16, f16, f16), 'allbf': (bf16, bf16, bf16)}.items():
        Tr, Ti = P1(x, rA, rB)
        T2r, T2i = P2(Tr, Ti, wr, wi, rB, rC)
        A, h, ln2 = P3(T2r, T2i, x, rC)
        h1, out = P45(h, ln2, w1, w2)
        rel = lambda a, b: np.linalg.norm(a-b)/np.linalg.norm(b)
        print(name, 'A rel', rel(A, Aref), 'maxabs', np.abs(A-Aref).max(), 'h rel', rel(h, href), 'out rel', rel(out, oref), 'out maxabs', np.abs(out-oref).max(),
              'max|out|', np.abs(oref).max(), 'frac exact', (out == oref).mean())
```

```python
import numpy as np
from emu import bf16, mats128, twid
def bf16_bits(a): return (bf16(np.asarray(a, np.float32)).view(np.uint32) >> 16).astype(np.uint16)
def f16_bits(a): return np.asarray(a, np.float64).astype(np.float16).view(np.uint16)
def exact_cs(num, den):
    num = np.asarray(num) % den
    c = np.cos(2*np.pi*num/den); s = np.sin(2*np.pi*num/den)
    c[np.abs(c) < 1e-12] = 0; s[np.abs(s) < 1e-12] = 0
    return c, s
def mat128():
    q = np.arange(128)[:, None]; kb = np.arange(64)[None, :]
    c, s = exact_cs(q*kb, 128); sn = -s; sn[:, 0] = (-1.0)**np.arange(128)
    sn[sn == 0] = 0.0
    return np.stack([c, sn])
lane = np.arange(64)
def tab_b1():
    M = mat128(); t = np.zeros((4, 2, 4, 64, 8))
    for kt in range(4):
        for p in range(2):
            for ks in range(4):
                for e in range(8):
                    t[kt, p, ks, :, e] = M[p, 32*ks + 8*(lane >> 4) + e, 16*kt + (lane & 15)]
    return bf16_bits(t).tobytes()
def tab_tw():
    t1, t2, t3 = twid(); t = np.zeros((64, 16), np.float32)
    t[:, 0:4] = t1[1:].T; t[:, 4:8] = t2[1:].T; t[:, 8:12] = t3[1:].T
    t[:, 12] = 1; t[:, 13] = 1; t[0, 12] = 0; t[0, 13] = 0.5
    return t.tobytes()
def tab_f2():
    t = np.zeros((4, 2, 4, 64, 4, 2))
    for c in range(4):
        for tt in range(4):
            for e in range(4):
                k0 = lane & 31; u = 8*tt + 4*(lane >> 5) + e
                co, si = exact_cs((4*u + c)*k0, 128)
                t[c, 0, tt, :, e, 0] = co; t[c, 0, tt, :, e, 1] = si
                t[c, 1, tt, :, e, 0] = -si; t[c, 1, tt, :, e, 1] = co
    return f16_bits(t).tobytes()
def tab_i2():
    t = np.zeros((4, 2, 4, 64, 4, 2))
    for c in range(4):
        for tt in range(4):
            for e in range(4):
                u = lane & 31; k0 = 8*tt + 4*(lane >> 5) + e
                co, si = exact_cs((4*u + c)*k0, 128)
                t[c, 0, tt, :, e, 0] = co; t[c, 0, tt, :, e, 1] = -si
                t[c, 1, tt, :, e, 0] = si; t[c, 1, tt, :, e, 1] = co
    return bf16_bits(t).tobytes()
def tab_a3():
    M = mat128(); t = np.zeros((4, 2, 4, 64, 4, 2))
    m = lane & 15; g = lane >> 4
    for w in range(4):
        for mu in range(2):
            for ks in range(4):
                for e in range(4):
                    for p in range(2):
                        t[w, mu, ks, :, e, p] = M[p, 32*w + 8*(m >> 2) + 4*mu + (m & 3), 16*ks + 4*g + e]
    return bf16_bits(t).tobytes()
def all_tables():
    parts = [('B1', tab_b1()), ('TW', tab_tw()), ('F2', tab_f2()), ('I2', tab_i2()), ('A3', tab_a3())]
    offs = {}; blob = b''
    for n, b in parts:
        offs[n] = len(blob); blob += b
    return offs, blob
def blob_asm(blob):
    q = np.frombuffer(blob, np.uint64)
    lines = []
    for i in range(0, len(q), 8):
        lines.append('.quad ' + ','.join(hex(int(v)) for v in q[i:i+8]))
    return '\n'.join(lines)
if __name__ == '__main__':
    o, b = all_tables(); print(o, len(b), len(blob_asm(b)))
```

```python
import sys, struct, math
from asmgen import *
import tables

KNAME = 'sequential_preLN__spectral_gfnet__dense_activation_silu__prompt_kernel'
WS_T, WS_T2, WS_LN, WS_H, WS_H1 = 0, 0x300000, 0x600000, 0x900000, 0xC00000
WS_FL1, WS_FL2, WS_FL3, WS_FL4, WS_EP = 0x1400000, 0x1404000, 0x1408000, 0x1409000, 0x140A000
WS_STAMP = 0x1500000
WS_SIZE = 0x2000000
TOFF, TBLOB = tables.all_tables()
def f32(x): return hex(struct.unpack('<I', struct.pack('<f', x))[0])

X, WR, WI, W1, W2, OUT, WS, TAB = [sr(4 + 4*i, 4) for i in range(8)]
sW, sG, sM, sS1, sHH, sX8, sY, sTILE = 's36', 's37', 's38', 's39', 's40', 's41', 's42', 's43'
sC = 's[44:45]'; sS = 's[46:47]'
sMASK = 's48'
sT = ['s50', 's51', 's52', 's53', 's54', 's55', 's56', 's57']
sPAIR = 's[58:59]'; sPC = 's[60:61]'; sEX = 's[62:63]'; sCNT = 's64'
sST = 74
vLane, vN, vG, vL16, vTag = 'v1', 'v2', 'v3', 'v4', 'v5'
vXR = 8
vWr, vWi = 20, 36
vTW3 = 52
vA3 = 68
VW = 72
aB1, aF2, aI2, aA3 = 0, 32, 64, 96
L_XF, L_EX, L_R = 107520, 132096, 142336
L_G, L_H = 107520, 140288
L_V, L_ST = 143360, 143360 + 48*288

class K(Gen):
    def __init__(self, stamps=False, stop=99):
        super().__init__(); self.stamps = stamps; self.stop = stop; self.nst = 0
    def pk(self, op, d, a, b, c=None, bsel=None, neg_b=False, neg_c=False, neg_a=False):
        n = 3 if c is not None else 2
        ops = [vr(d, 2), vr(a, 2), b if isinstance(b, str) else vr(b, 2)] + ([vr(c, 2)] if c is not None else [])
        mods = ''
        if bsel is not None:
            lo = [0, bsel, 0][:n]; hi = [1, bsel, 1][:n]
            mods += f' op_sel:[{",".join(map(str, lo))}] op_sel_hi:[{",".join(map(str, hi))}]'
        if neg_a or neg_b or neg_c:
            ng = [int(neg_a), int(neg_b), int(neg_c)][:n]; s = ",".join(map(str, ng))
            mods += f' neg_lo:[{s}] neg_hi:[{s}]'
        self.I(f'v_pk_{op}_f32 ' + ', '.join(ops) + mods)
    def bc(self, r):
        return (r & ~1, r & 1)
    def stamp(self):
        if not self.stamps: return
        i = self.nst; self.nst += 1
        snap = self.cond_begin(); L = self.newlabel('Lst')
        self.I(f's_cmp_lg_u32 {sW}, 0'); self.I(f's_cbranch_scc1 {L}')
        self.I(f's_memrealtime s[{sST}:{sST+1}]')
        self.I(f's_lshl_b32 s{sST+2}, s2, 7'); self.I(f's_add_u32 s{sST+2}, s{sST+2}, {WS_STAMP + i*8}')
        self.wait_lg0()
        self.I(f'v_mov_b32 v6, s{sST}'); self.I(f'v_mov_b32 v7, s{sST+1}')
        self.I(f's_mov_b64 {sEX}, exec'); self.I('s_mov_b64 exec, 1')
        self.I(f'buffer_store_dwordx2 v[6:7], off, {WS}, s{sST+2}')
        self.I(f's_mov_b64 exec, {sEX}')
        self.cond_end(snap); self.label(L)

    def prologue(self):
        I = self.I
        I('s_cmp_ge_u32 s2, 256'); I('s_cbranch_scc1 L_end')
        for srd, off in ((4, 0), (8, 8), (12, 16), (16, 32), (20, 40), (24, 48), (28, 64)):
            I(f's_load_dwordx2 s[{srd}:{srd+1}], s[0:1], {off}')
        I(f's_getpc_b64 {sPC}'); self.label('L_pc')
        I('s_add_u32 s32, s60, (L_tab - L_pc)'); I('s_addc_u32 s33, s61, 0')
        I(f's_mov_b32 s34, {len(TBLOB)}'); I('s_mov_b32 s35, 0x20000')
        I(f'v_and_b32 {vLane}, 63, v0'); I('v_lshrrev_b32 v6, 6, v0')
        I(f's_and_b32 {sX8}, s2, 7'); I(f's_lshr_b32 {sY}, s2, 3')
        I(f'v_readfirstlane_b32 {sW}, v6')
        I(f'v_lshlrev_b32 {vL16}, 4, {vLane}')
        I(f'v_and_b32 {vN}, 15, v0'); I(f'v_lshrrev_b32 {vG}, 4, {vLane}')
        I(f's_and_b32 {sM}, {sY}, 15'); I(f's_and_b32 {sHH}, {sY}, 1')
        I(f's_lshr_b32 {sG}, {sY}, 4'); I(f's_lshl_b32 {sT[0]}, {sX8}, 1'); I(f's_add_u32 {sG}, {sG}, {sT[0]}')
        I(f's_lshl_b32 {sS1}, {sG}, 3'); I(f's_lshr_b32 {sT[0]}, {sM}, 1'); I(f's_add_u32 {sS1}, {sS1}, {sT[0]}')
        I(f's_mul_i32 {sTILE}, {sX8}, 20'); I(f's_add_u32 {sTILE}, {sTILE}, {sY}')
        I(f's_lshl_b32 {sT[0]}, {sY}, 10'); I('v_and_b32 v6, 7, v0'); I('v_lshlrev_b32 v6, 7, v6'); I(f'v_add_u32 v6, {sT[0]}, v6')
        I(f'global_load_dword v7, v6, {sPC}')
        sKT = sT[7]
        I(f's_and_b32 {sT[0]}, {sW}, 1'); I(f's_lshl_b32 {sKT}, {sHH}, 1'); I(f's_add_u32 {sKT}, {sKT}, {sT[0]}')
        I(f's_lshl_b32 {sT[0]}, {sKT}, 13'); I(f's_add_u32 {sT[1]}, {sT[0]}, 4096')
        for f in range(8):
            I(f'buffer_load_dwordx4 {ar(aB1 + 4*f, 4)}, {vL16}, {TAB}, {sT[f >> 2]} offen offset:{(f & 3)*1024}')
        for srd, n in ((4, 2621440), (8, 1314816), (12, 1314816), (16, 2211840), (20, 2211840), (24, 2621440), (28, WS_SIZE)):
            I(f's_mov_b32 s{srd+2}, {n}'); I(f's_mov_b32 s{srd+3}, 0x20000')
        I(f's_mov_b32 s44, {f32(math.cos(2*math.pi/5))}'); I(f's_mov_b32 s45, {f32(math.cos(4*math.pi/5))}')
        I(f's_mov_b32 s46, {f32(math.sin(2*math.pi/5))}'); I(f's_mov_b32 s47, {f32(math.sin(4*math.pi/5))}')
        I(f's_mov_b32 {sMASK}, 0xffff')

    def dft5_half(self, z, t):
        a, b, c, d, u0, u1, u2, v1, v2 = t
        self.pk('add', a, z[1], z[4]); self.pk('add', b, z[2], z[3])
        self.pk('add', c, z[1], z[4], neg_b=True); self.pk('add', d, z[2], z[3], neg_b=True)
        self.pk('add', u0, z[0], a); self.pk('fma', u1, a, sC, z[0], bsel=0); self.pk('fma', u2, a, sC, z[0], bsel=1)
        self.pk('mul', v1, c, sS, bsel=0); self.pk('mul', v2, c, sS, bsel=1)
        self.pk('add', u0, u0, b); self.pk('fma', u1, b, sC, u1, bsel=1); self.pk('fma', u2, b, sC, u2, bsel=0)
        self.pk('fma', v1, d, sS, v1, bsel=1); self.pk('fma', v2, d, sS, v2, bsel=0, neg_b=True)
        return u0, u1, u2, v1, v2

    def bf16_round(self, v):
        self.I(f'v_cvt_pk_bf16_f32 {v}, {v}, {v}'); self.I(f'v_lshlrev_b32 {v}, 16, {v}')
    def finish_stats(self, vs, vq, scale):
        I = self.I
        I(f'v_mul_f32 {vs}, {f32(1/640.)}, {vs}'); I(f'v_mul_f32 {vq}, {f32(1/640.)}, {vq}')
        I(f'v_fma_f32 {vq}, -{vs}, {vs}, {vq}'); I(f'v_max_f32 {vq}, 0, {vq}')
        self.bf16_round(vq); I(f'v_add_f32 {vq}, {f32(1e-5)}, {vq}'); self.bf16_round(vq)
        I(f'v_sqrt_f32 {vq}, {vq}'); self.bf16_round(vq); I(f'v_rcp_f32 {vq}, {vq}')
        if scale != 1.0: I(f'v_mul_f32 {vq}, {f32(scale)}, {vq}')

    def p1(self):
        I = self.I; sKT = sT[7]
        vX = VW; vF = VW + 20; vTW = VW + 40; vA2 = VW + 56; vAd = VW + 64
        vAf = VW + 72
        vAcc = VW + 120
        vT = VW + 144
        I(f's_lshl_b32 {sT[0]}, {sKT}, 10'); I(f's_add_u32 {sT[0]}, {sT[0]}, {TOFF["TW"]}')
        I(f'v_lshlrev_b32 v{vAd}, 6, {vN}')
        for f in range(4): I(f'buffer_load_dwordx4 {vr(vTW + 4*f, 4)}, v{vAd}, {TAB}, {sT[0]} offen offset:{16*f}')
        I(f'v_lshrrev_b32 v{vAd+1}, 4, v0'); I(f'v_mul_u32_u24 v{vAd+2}, 163840, v{vAd+1}'); I(f'v_mul_u32_u24 v{vAd+3}, 80, {vN}')
        I(f'v_add_u32 v{vAd+2}, v{vAd+2}, v{vAd+3}')
        I(f's_mul_i32 {sT[1]}, {sS1}, 1280')
        self.wait_lg0()
        for e in range(5): I(f'buffer_load_dwordx4 {vr(vX + 4*e, 4)}, v{vAd+2}, {X}, {sT[1]} offen offset:{16*e}')
        I(f's_mov_b32 {sT[2]}, {WS_EP}')
        I(f'buffer_load_dword {vTag}, off, {WS}, {sT[2]} sc1')
        self.stamp()
        self.prefetch_early()
        I(f'v_cvt_f32_u32 v{vT}, {vN}'); I(f'v_mul_f32 v{vT}, {f32(1/2048.)}, v{vT}')
        I(f'v_lshlrev_b32 v{vT+1}, 8, {vG}'); I(f'v_add_u32 v{vT+1}, {sS1}, v{vT+1}'); I(f'v_cvt_f32_u32 v{vT+1}, v{vT+1}')
        for e in range(4):
            I(f'v_add_f32 v{vT+2}, {f32(128.0*((e & 1) + 8*(e >> 1)))}, v{vT+1}'); I(f'v_mul_f32 v{vT+2}, v{vT}, v{vT+2}')
            I(f'v_cos_f32 v{vT+3}, v{vT+2}'); I(f'v_sin_f32 v{vT+4}, v{vT+2}')
            I(f'v_cvt_pk_f16_f32 v{vA2+e}, v{vT+3}, v{vT+4}'); I(f'v_cvt_pk_f16_f32 v{vA2+4+e}, -v{vT+4}, v{vT+3}')
        I(f'v_and_b32 v{vAd+3}, 7, v0'); I(f'v_xor_b32 v{vAd+3}, v{vAd+1}, v{vAd+3}'); I(f'v_lshlrev_b32 v{vAd+3}, 4, v{vAd+3}')
        I(f'v_lshl_add_u32 v{vAd+3}, {vN}, 8, v{vAd+3}'); I(f'v_add_u32 v{vAd+3}, {L_XF}, v{vAd+3}'); I(f'v_xor_b32 v{vAd+4}, 128, v{vAd+3}')
        I(f's_lshr_b32 {sT[3]}, {sW}, 1'); I(f's_lshl_b32 {sT[4]}, {sT[3]}, 3')
        I(f'v_lshrrev_b32 v{vT}, 2, {vN}'); I(f'v_lshlrev_b32 v{vT}, 1, v{vT}'); I(f'v_and_b32 v{vT+1}, 1, {vN}'); I(f'v_add3_u32 v{vT}, v{vT}, v{vT+1}, {sT[4]}')
        I(f'v_bfe_u32 v{vT+1}, {vN}, 1, 1'); I(f'v_lshlrev_b32 v{vT+2}, 3, v{vT+1}'); I(f'v_xor_b32 v{vT}, v{vT}, v{vT+2}'); I(f'v_xor_b32 v{vT}, v{vT}, {vG}')
        I(f'v_lshlrev_b32 v{vT}, 4, v{vT}'); I(f'v_lshl_add_u32 v{vT}, {vG}, 8, v{vT}'); I(f'v_lshl_add_u32 v{vT}, v{vT+1}, 12, v{vT}')
        I(f'v_add_u32 v{vAd+5}, {L_XF}, v{vT}'); I(f'v_xor_b32 v{vAd+6}, 64, v{vAd+5}')
        for c in range(5):
            for e in range(4):
                a = vX + (10*e + c)//2; b = vX + (10*e + 5 + c)//2
                if c % 2 == 0: I(f'v_bfi_b32 v{vF + 4*c + e}, {sMASK}, v{a}, v{b}')
                else: I(f'v_alignbit_b32 v{vF + 4*c + e}, v{b}, v{a}, 16')
            I(f'ds_write_b128 v{vAd + 3 + (c & 1)}, {vr(vF + 4*c, 4)} offset:{c*4096}')
        vs, vq, vone = f'v{vT}', f'v{vT+1}', f'v{vT+2}'
        I(f'v_mov_b32 {vone}, 0x3f803f80')
        I(f'v_dot2_f32_bf16 {vs}, v{vX}, {vone}, 0'); I(f'v_dot2_f32_bf16 {vq}, v{vX}, v{vX}, 0')
        for e in range(1, 20):
            I(f'v_dot2_f32_bf16 {vs}, v{vX+e}, {vone}, {vs}'); I(f'v_dot2_f32_bf16 {vq}, v{vX+e}, v{vX+e}, {vq}')
        for sh in (8, 4, 2, 1):
            I(f'v_add_f32_dpp {vs}, {vs}, {vs} row_ror:{sh} row_mask:0xf bank_mask:0xf')
            I(f'v_add_f32_dpp {vq}, {vq}, {vq} row_ror:{sh} row_mask:0xf bank_mask:0xf')
        self.finish_stats(vs, vq, 1.0/(math.sqrt(640.0)*4))
        I(f'v_lshlrev_b32 v{vT+3}, 2, v{vAd+1}'); I(f'v_add_u32 v{vT+3}, {L_R}, v{vT+3}')
        I(f'ds_write_b32 v{vT+3}, {vq}')
        self.barrier()
        for ks in range(4):
            for tau in range(3):
                I(f'ds_read_b128 {vr(vAf + 4*(ks*3 + tau), 4)}, v{vAd + 5 + (ks & 1)} offset:{tau*8192 + ks*1024}')
        vR = vAd
        assert vR % 2 == 0
        I(f's_lshl_b32 {sT[4]}, {sT[3]}, 5'); I(f's_add_u32 {sT[4]}, {sT[4]}, {L_R}')
        I(f'v_lshlrev_b32 v{vT}, 3, {vG}'); I(f'v_add_u32 v{vT}, {sT[4]}, v{vT}')
        I(f'ds_read_b64 {vr(vR, 2)}, v{vT}')
        for ks in range(4):
            for tau in range(3):
                for p in range(2):
                    d = vr(vAcc + 4*(tau*2 + p), 4)
                    I(f'v_mfma_f32_16x16x32_bf16 {d}, {vr(vAf + 4*(ks*3 + tau), 4)}, {ar(aB1 + 4*(p*4 + ks), 4)}, {"0" if ks == 0 else d}')
        I(f's_lshl_b32 {sT[4]}, {sHH}, 3'); I(f's_and_b32 {sT[5]}, {sW}, 1'); I(f's_lshl_b32 {sT[5]}, {sT[5]}, 2'); I(f's_xor_b32 {sT[4]}, {sT[4]}, {sT[5]}')
        I(f'v_xor_b32 v{vT}, {vN}, {vG}'); I(f'v_xor_b32 v{vT}, {sT[4]}, v{vT}')
        I(f'v_lshlrev_b32 v{vT}, 4, v{vT}'); I(f'v_lshl_add_u32 v{vT}, {vG}, 8, v{vT}')
        I(f'v_lshrrev_b32 v{vT+1}, 3, {vN}'); I(f'v_lshl_add_u32 v{vT}, v{vT+1}, 12, v{vT}')
        I(f's_lshl_b32 {sT[4]}, {sW}, 10'); I(f's_add_u32 {sT[4]}, {sT[4]}, {L_XF}'); I(f'v_add_u32 v{vT}, {sT[4]}, v{vT}')
        for tau in range(3): I(f'ds_read_b128 {vr(vXR + 4*tau, 4)}, v{vT} offset:{tau*8192}')
        Vr = [vAcc + 4*((c >> 1)*2 + 0) + 2*(c & 1) for c in range(5)]
        Vi = [vAcc + 4*((c >> 1)*2 + 1) + 2*(c & 1) for c in range(5)]
        pool = [vAf + 2*i for i in range(24)] + [vX + 2*i for i in range(20)]
        zr = [Vr[0]] + [pool.pop(0) for _ in range(4)]; zi = [Vi[0]] + [pool.pop(0) for _ in range(4)]
        for c in range(1, 5):
            t1, t2, t3 = self.bc(vTW + c - 1), self.bc(vTW + 4 + c - 1), self.bc(vTW + 8 + c - 1)
            self.pk('mul', zr[c], Vr[c], t1[0], bsel=t1[1]); self.pk('mul', zi[c], Vi[c], t3[0], bsel=t3[1])
            self.pk('fma', zr[c], Vi[c], t2[0], zr[c], bsel=t2[1]); self.pk('fma', zi[c], Vr[c], t2[0], zi[c], bsel=t2[1], neg_b=True)
        u0, u1, u2, v1, v2 = self.dft5_half(zr, [pool.pop(0) for _ in range(9)])
        U0, U1, U2, V1, V2 = self.dft5_half(zi, [pool.pop(0) for _ in range(9)])
        mu = self.bc(vTW + 12)
        Xr = [pool.pop(0) for _ in range(5)]; Xi = [U0] + [pool.pop(0) for _ in range(4)]
        fm = lambda d, a, c, neg_c=False: self.pk('fma', d, a, mu[0], c, bsel=mu[1], neg_c=neg_c)
        self.pk('mul', Xr[0], u0, mu[0], bsel=mu[1])
        fm(Xr[1], V1, u1); fm(Xr[2], V2, u2); fm(Xr[3], u2, V2, True); fm(Xr[4], u1, V1, True)
        fm(Xi[1], U1, v1, True); fm(Xi[2], U2, v2, True); fm(Xi[3], v2, U2); fm(Xi[4], v1, U1)
        I(f's_and_b32 {sT[4]}, {sW}, 1'); I(f's_mul_i32 {sT[4]}, {sT[4]}, 5120'); I(f's_add_u32 {sT[4]}, {sT[4]}, {L_EX}')
        I(f's_lshl_b32 {sT[5]}, {sT[3]}, 3'); I(f's_add_u32 {sT[5]}, {sT[5]}, {sT[4]}'); I(f'v_add_u32 v{vT}, {sT[5]}, {vL16}')
        I(f's_mul_i32 {sT[5]}, {sT[3]}, 3072'); I(f's_add_u32 {sT[5]}, {sT[5]}, {sT[4]}'); I(f'v_add_u32 v{vT+1}, {sT[5]}, {vL16}')
        for m5 in range(5):
            self.pk('mul', Xr[m5], Xr[m5], vR); self.pk('mul', Xi[m5], Xi[m5], vR)
        for m5 in range(5):
            d = vT + 2 + 2*m5
            I(f'v_cvt_pk_f16_f32 v{d}, v{Xr[m5]}, v{Xi[m5]}'); I(f'v_cvt_pk_f16_f32 v{d+1}, v{Xr[m5]+1}, v{Xi[m5]+1}')
            I(f'ds_write_b64 v{vT}, {vr(d, 2)} offset:{m5*1024}')
        I(f'v_cmp_gt_u32 vcc, 8, {vN}')
        for i in range(4): I(f'v_cndmask_b32 v{vXR+8+i}, 0, v{vXR+8+i}, vcc')
        I(f'v_mul_u32_u24 v{vAd+2}, 5120, {vG}'); I(f'v_lshl_add_u32 v{vAd+2}, {vN}, 4, v{vAd+2}')
        I(f's_mul_i32 {sT[4]}, {sS1}, 20480'); I(f's_lshl_b32 {sT[5]}, {sKT}, 8'); I(f's_add_u32 {sT[4]}, {sT[4]}, {sT[5]}')
        I(f's_mul_i32 {sT[5]}, {sT[3]}, 3072'); I(f's_add_u32 {sT[4]}, {sT[4]}, {sT[5]}'); I(f's_add_u32 {sT[4]}, {sT[4]}, {WS_T}')
        self.barrier()
        vB = vAf; vO = vAf + 12; vP = vAf + 36
        for sl in range(3): I(f'ds_read_b128 {vr(vB + 4*sl, 4)}, v{vT+1} offset:{sl*1024}')
        for sl in range(3):
            for p in range(2):
                I(f'v_mfma_f32_16x16x32_f16 {vr(vO + 8*sl + 4*p, 4)}, {vr(vA2 + 4*p, 4)}, {vr(vB + 4*sl, 4)}, 0')
        for sl in range(3):
            for i in range(4): I(f'v_cvt_pk_f16_f32 v{vP + 4*sl + i}, v{vO + 8*sl + i}, v{vO + 8*sl + 4 + i}')
            if sl == 2:
                snap = self.cond_begin(); L = self.newlabel('Lp1')
                I(f's_cmp_eq_u32 {sT[3]}, 1'); I(f's_cbranch_scc1 {L}')
            I(f'buffer_store_dwordx4 {vr(vP + 4*sl, 4)}, v{vAd+2}, {WS}, {sT[4]} offen offset:{sl*1024} sc1')
            if sl == 2: self.cond_end(snap); self.label(L)
        I(f's_mov_b32 {sT[0]}, 0x9E3779B1'); I(f'v_mul_lo_u32 {vTag}, {vTag}, {sT[0]}'); I(f'v_add_u32 {vTag}, 0x7F4A7C15, {vTag}')

    def prefetch_early(self):
        I = self.I; t = 200
        I(f's_cmp_lt_u32 {sY}, 20'); I('s_cselect_b32 s10, s10, 0'); I('s_cselect_b32 s14, s14, 0')
        I(f's_cselect_b32 {sT[0]}, 0, 0x1000000')
        I(f's_lshl_b32 {sT[1]}, {sW}, 13'); I(f's_add_u32 {sT[0]}, {sT[0]}, {sT[1]}')
        I(f's_lshr_b32 {sT[2]}, {sX8}, 1'); I(f's_mul_i32 {sT[3]}, {sT[2]}, 40'); I(f's_sub_u32 {sT[3]}, {sTILE}, {sT[3]}')
        I(f's_lshr_b32 {sT[4]}, {sT[3]}, 3')
        I(f's_and_b32 {sT[5]}, {sT[3]}, 7'); I(f's_lshl_b32 {sT[5]}, {sT[5]}, 3')
        I(f'v_bfe_u32 v{t}, {vLane}, 2, 3'); I(f'v_add_u32 v{t}, {sT[5]}, v{t}')
        I(f's_lshl_b32 {sT[5]}, {sT[4]}, 7'); I(f's_sub_u32 {sT[6]}, 640, {sT[5]}')
        I(f's_cmp_lt_u32 {sT[4]}, 3'); I(f's_cselect_b32 {sT[5]}, {sT[5]}, {sT[6]}'); I(f's_cselect_b32 {sT[6]}, 1, -1')
        I(f'v_mov_b32 v{t+1}, {sT[6]}'); I(f'v_mul_lo_u32 v{t+2}, v{t}, v{t+1}'); I(f'v_add_u32 v{t+2}, {sT[5]}, v{t+2}')
        I(f's_lshl_b32 {sT[5]}, {sT[4]}, 2'); I(f's_lshr_b32 {sT[5]}, 0x31425, {sT[5]}'); I(f's_and_b32 {sT[5]}, {sT[5]}, 15'); I(f's_lshl_b32 {sT[5]}, {sT[5]}, 6')
        I(f'v_mov_b32 v{t+3}, {sT[5]}'); I(f'v_cmp_eq_u32 vcc, 0, v{t}')
        I(f'v_cndmask_b32 v{t+2}, v{t+2}, v{t+3}, vcc'); I(f'v_cndmask_b32 v{t+1}, v{t+1}, 1, vcc')
        I(f'v_lshlrev_b32 v{t+2}, 1, v{t+2}')
        I(f's_lshl_b32 {sT[2]}, {sT[2]}, 2'); I(f's_lshl_b32 {sT[5]}, {sW}, 7'); I(f's_add_u32 {sT[2]}, {sT[2]}, {sT[5]}')
        I(f'v_and_b32 v{t+3}, 3, {vLane}'); I(f'v_lshrrev_b32 v{t+4}, 5, {vLane}'); I(f'v_lshl_add_u32 v{t+3}, v{t+4}, 6, v{t+3}'); I(f'v_add_u32 v{t+3}, {sT[2]}, v{t+3}')
        I(f'v_mul_lo_u32 v{t+3}, v{t+3}, v{t+1}')
        I(f'v_lshlrev_b32 v{t+4}, 4, v{t+1}')
        I(f's_movk_i32 {sT[2]}, 642'); I(f's_movk_i32 {sT[3]}, 0x7ff')
        for i in range(32): I(f'v_mov_b32 v{vWr + i}, 0')
        for mp in range(4):
            for e in range(4):
                a = t + 6 + (e & 1)
                I(f'v_mad_i32_i24 v{a}, v{t+4}, {e + 32*mp if e + 32*mp <= 64 else sT[4]}, v{t+3}') if e + 32*mp <= 64 else (
                    I(f's_movk_i32 {sT[4]}, {e + 32*mp}'), I(f'v_mad_i32_i24 v{a}, v{t+4}, {sT[4]}, v{t+3}'))
                I(f'v_and_b32 v{a}, {sT[3]}, v{a}'); I(f'v_mad_u32_u24 v{a}, v{a}, {sT[2]}, v{t+2}')
                I(f'buffer_load_short_d16_hi v{vWr + 4*mp + e}, v{a}, {WR}, 0 offen')
                I(f'buffer_load_short_d16_hi v{vWi + 4*mp + e}, v{a}, {WI}, 0 offen')
        I(f'v_and_b32 v6, 0x80000000, v{t+1}')
        self.vSgn = 6 if not self.stamps else 255
        if self.stamps: I('v_mov_b32 v255, v6')
        self.sTabP2 = 's65'
        I(f's_mov_b32 s65, {sT[0]}')

    def prefetch_tables(self):
        I = self.I
        for name, areg, base in (('F2', aF2, 's65'), ('I2', aI2, 's65'), ('A3', aA3, None)):
            if base is None: I(f's_lshl_b32 {sT[0]}, {sW}, 13'); base = sT[0]
            I(f's_add_u32 {sT[0]}, {base}, {TOFF[name]}'); I(f's_add_u32 {sT[1]}, {sT[0]}, 4096')
            for f in range(8):
                I(f'buffer_load_dwordx4 {ar(areg + 4*f, 4)}, {vL16}, {TAB}, {sT[f >> 2]} offen offset:{(f & 3)*1024}')
        t = VW
        I(f's_lshl_b32 {sT[0]}, {sW}, 10'); I(f's_add_u32 {sT[0]}, {sT[0]}, {TOFF["TW"]}')
        I(f'v_lshlrev_b32 v{t}, 6, {vN}')
        for f in range(4): I(f'buffer_load_dwordx4 {vr(vTW3 + 4*f, 4)}, v{t}, {TAB}, {sT[0]} offen offset:{16*f}')
        sc = 2/math.sqrt(640.0)/4/128
        I(f'v_lshrrev_b32 v{t+1}, 2, {vN}'); I(f'v_and_b32 v{t+2}, 1, {vN}'); I(f'v_lshl_add_u32 v{t+1}, v{t+1}, 1, v{t+2}')
        I(f's_lshl_b32 {sT[0]}, {sHH}, 10'); I(f's_add_u32 {sT[0]}, {sT[0]}, {sS1}')
        I(f'v_lshlrev_b32 v{t+1}, 7, v{t+1}'); I(f'v_add_u32 v{t+1}, {sT[0]}, v{t+1}'); I(f'v_cvt_f32_u32 v{t+1}, v{t+1}'); I(f'v_mul_f32 v{t+1}, {f32(-1/2048.)}, v{t+1}')
        I(f'v_bfe_u32 v{t+2}, {vN}, 1, 1'); I(f'v_cvt_f32_u32 v{t+2}, v{t+2}'); I(f'v_mul_f32 v{t+2}, {f32(0.25)}, v{t+2}')
        I(f'v_lshlrev_b32 v{t+3}, 2, {vG}'); I(f'v_cvt_f32_u32 v{t+3}, v{t+3}')
        for e in range(4):
            I(f'v_add_f32 v{t+4}, {f32(float(e))}, v{t+3}'); I(f'v_fma_f32 v{t+4}, v{t+4}, v{t+1}, v{t+2}')
            I(f'v_cos_f32 v{t+5}, v{t+4}'); I(f'v_sin_f32 v{t+6}, v{t+4}')
            I(f'v_mul_f32 v{t+5}, {f32(sc)}, v{t+5}'); I(f'v_mul_f32 v{t+6}, {f32(sc)}, v{t+6}')
            I(f'v_cvt_pk_bf16_f32 v{vA3+e}, v{t+5}, v{t+6}')

    def signal(self, soff_setup, nrep):
        I = self.I
        self.wait_vm0(True); self.barrier()
        snap = self.cond_begin(); L = self.newlabel('Lsig')
        I(f's_cmp_lg_u32 {sW}, 0'); I(f's_cbranch_scc1 {L}')
        soff_setup()
        I(f'v_lshlrev_b32 v7, 11, {vLane}')
        I(f's_mov_b64 exec, {(1 << nrep) - 1}')
        I(f'buffer_store_dword {vTag}, v7, {WS}, {sT[0]} offen sc1')
        I('s_mov_b64 exec, -1')
        self.cond_end(snap); self.label(L)
    def poll(self, soff_setup, nchunk, stride):
        I = self.I; t = 248
        snap = self.cond_begin(); L = self.newlabel('Lpoll'); Ld = self.newlabel('Lpd')
        I(f's_cmp_lg_u32 {sW}, 0'); I(f's_cbranch_scc1 {Ld}')
        soff_setup()
        I(f'v_min_u32 v7, {nchunk - 1}, {vLane}'); I(f'v_mul_u32_u24 v7, {stride}, v7')
        I(f's_mov_b32 {sCNT}, 0x40000')
        self.label(L)
        I(f'buffer_load_dwordx4 {vr(t, 4)}, v7, {WS}, {sT[0]} offen sc1')
        self.wait_vm0(True)
        for i in range(4): I(f'v_xor_b32 v{t+i}, v{t+i}, {vTag}')
        I(f'v_or3_b32 v{t}, v{t}, v{t+1}, v{t+2}'); I(f'v_or_b32 v{t}, v{t}, v{t+3}')
        I(f'v_cmp_ne_u32 {sPAIR}, 0, v{t}')
        I(f's_cmp_eq_u64 {sPAIR}, 0'); I(f's_cbranch_scc1 {Ld}')
        I(f's_sub_u32 {sCNT}, {sCNT}, 1'); I(f's_cbranch_scc0 {L}')
        self.cond_end(snap); self.label(Ld)
        I('s_barrier')
    def flag_off(self, base, idx):
        I = self.I
        I(f's_lshr_b32 {sT[0]}, {idx}, 2'); I(f's_lshl_b32 {sT[0]}, {sT[0]}, 5'); I(f's_and_b32 {sT[1]}, {idx}, 3'); I(f's_lshl_b32 {sT[1]}, {sT[1]}, 2')
        I(f's_add_u32 {sT[0]}, {sT[0]}, {sT[1]}'); I(f's_add_u32 {sT[0]}, {sT[0]}, {base}')
    def sig1(self):
        def f():
            self.flag_off(WS_FL1, sS1); self.I(f's_lshl_b32 {sT[1]}, {sHH}, 10'); self.I(f's_add_u32 {sT[0]}, {sT[0]}, {sT[1]}')
        self.signal(f, 8)
    def poll1(self):
        def f():
            I = self.I
            I(f's_lshr_b32 {sT[0]}, {sTILE}, 2'); I(f's_and_b32 {sT[0]}, {sT[0]}, 1'); I(f's_lshl_b32 {sT[0]}, {sT[0]}, 10')
            I(f's_lshl_b32 {sT[1]}, {sX8}, 11'); I(f's_add_u32 {sT[0]}, {sT[0]}, {sT[1]}'); I(f's_add_u32 {sT[0]}, {sT[0]}, {WS_FL1}')
        self.poll(f, 32, 32)
    def sig2(self): self.signal(lambda: self.flag_off(WS_FL2, sTILE), 8)
    def poll2(self):
        def f(): self.I(f's_lshl_b32 {sT[0]}, {sX8}, 11'); self.I(f's_add_u32 {sT[0]}, {sT[0]}, {WS_FL2}')
        self.poll(f, 40, 32)
    def sigg(self, base):
        def f():
            I = self.I
            I(f's_lshl_b32 {sT[0]}, {sG}, 7'); I(f's_lshl_b32 {sT[1]}, {sM}, 2'); I(f's_add_u32 {sT[0]}, {sT[0]}, {sT[1]}'); I(f's_add_u32 {sT[0]}, {sT[0]}, {base}')
        self.signal(f, 1)
    def pollg(self, base):
        def f(): self.I(f's_lshl_b32 {sT[0]}, {sG}, 7'); self.I(f's_add_u32 {sT[0]}, {sT[0]}, {base}')
        self.poll(f, 4, 16)

    def p2(self):
        I = self.I
        vB = VW; vGa = VW + 16; vE = VW + 48; vZ = VW + 80; vAd = VW + 112; vH = VW + 116
        for i in range(16): I(f'v_xor_b32 v{vWi+i}, v{self.vSgn}, v{vWi+i}')
        I(f'v_lshrrev_b32 v{vAd}, 5, {vLane}'); I(f'v_mul_u32_u24 v{vAd}, {16*20480}, v{vAd}'); I(f'v_and_b32 v{vAd+1}, 31, {vLane}'); I(f'v_lshl_add_u32 v{vAd}, v{vAd+1}, 2, v{vAd}')
        I(f's_lshl_b32 {sT[2]}, {sTILE}, 7'); I(f's_mul_i32 {sT[3]}, {sW}, 20480'); I(f's_add_u32 {sT[2]}, {sT[2]}, {sT[3]}')
        I(f's_lshl_b32 {sT[3]}, {sW}, 13'); I(f's_add_u32 {sT[3]}, {sT[3]}, {L_G}'); I(f'v_add_u32 v{vAd+1}, {sT[3]}, {vL16}')
        I(f's_lshl_b32 {sT[3]}, {sW}, 10'); I(f's_add_u32 {sT[3]}, {sT[3]}, {L_G}'); I(f'v_add_u32 v{vAd+2}, {sT[3]}, {vL16}')
        I(f's_lshl_b32 {sT[3]}, {sW}, 12'); I(f's_add_u32 {sT[3]}, {sT[3]}, {L_H}'); I(f'v_add_u32 v{vAd+3}, {sT[3]}, {vL16}')
        self.poll1()
        self.stamp()
        for t in range(4):
            for e in range(4):
                I(f's_add_u32 {sT[3]}, {sT[2]}, {WS_T + (32*t + 4*e)*20480}')
                I(f'buffer_load_dword v{vB + 4*t + e}, v{vAd}, {WS}, {sT[3]} offen sc1')
        for t in range(4):
            for p in range(2):
                d = vr(vGa + 16*p, 16)
                I(f'v_mfma_f32_32x32x16_f16 {d}, {ar(aF2 + 4*(p*4 + t), 4)}, {vr(vB + 4*t, 4)}, {"0" if t == 0 else d}')
        for p in range(2):
            for gq in range(4): I(f'ds_write_b128 v{vAd+1}, {vr(vGa + 16*p + 4*gq, 4)} offset:{(p*4 + gq)*1024}')
        self.barrier()
        for c in range(4):
            for p in range(2): I(f'ds_read_b128 {vr(vE + 8*c + 4*p, 4)}, v{vAd+2} offset:{c*8192 + p*4096}')
        def bfly(src, dst, tmp, inv):
            for h in range(2):
                s = lambda c, p: src + 8*c + 4*p + 2*h
                d = lambda m, p: dst + 8*m + 4*p + 2*h
                t = lambda i, p: tmp + 8*i + 4*p + 2*h
                for p in range(2):
                    self.pk('add', t(0, p), s(0, p), s(2, p)); self.pk('add', t(1, p), s(0, p), s(2, p), neg_b=True)
                    self.pk('add', t(2, p), s(1, p), s(3, p)); self.pk('add', t(3, p), s(1, p), s(3, p), neg_b=True)
                for p in range(2):
                    self.pk('add', d(0, p), t(0, p), t(2, p)); self.pk('add', d(2, p), t(0, p), t(2, p), neg_b=True)
                a, b = (3, 1) if inv else (1, 3)
                self.pk('add', d(a, 0), t(1, 0), t(3, 1)); self.pk('add', d(a, 1), t(1, 1), t(3, 0), neg_b=True)
                self.pk('add', d(b, 0), t(1, 0), t(3, 1), neg_b=True); self.pk('add', d(b, 1), t(1, 1), t(3, 0))
        bfly(vE, vZ, vGa, False)
        for m in range(4):
            for h in range(2):
                zr, zi = vZ + 8*m + 2*h, vZ + 8*m + 4 + 2*h; wr, wi = vWr + 4*m + 2*h, vWi + 4*m + 2*h
                dr, di = vE + 8*m + 2*h, vE + 8*m + 4 + 2*h
                self.pk('mul', dr, zr, wr); self.pk('mul', di, zi, wr)
                self.pk('fma', dr, zi, wi, dr, neg_b=True); self.pk('fma', di, zr, wi, di)
        bfly(vE, vZ, vGa, True)
        for c in range(4):
            for e in range(4): I(f'v_cvt_pk_bf16_f32 v{vH + 4*c + e}, v{vZ + 8*c + e}, v{vZ + 8*c + 4 + e}')
            I(f'ds_write_b128 v{vAd+2}, {vr(vH + 4*c, 4)} offset:{L_H - L_G + c*4096}')
        self.barrier()
        for t in range(4): I(f'ds_read_b128 {vr(vB + 4*t, 4)}, v{vAd+3} offset:{t*1024}')
        for t in range(4):
            for p in range(2):
                d = vr(vGa + 16*p, 16)
                I(f'v_mfma_f32_32x32x16_bf16 {d}, {ar(aI2 + 4*(p*4 + t), 4)}, {vr(vB + 4*t, 4)}, {"0" if t == 0 else d}')
        for i in range(16):
            I(f'v_cvt_pk_bf16_f32 v{vH + i}, v{vGa + i}, v{vGa + 16 + i}')
            I(f's_add_u32 {sT[3]}, {sT[2]}, {WS_T2 + (32*(i >> 2) + 4*(i & 3))*20480}')
            I(f'buffer_store_dword v{vH + i}, v{vAd}, {WS}, {sT[3]} offen sc1')

    def p3_pre(self):
        I = self.I; vAd = VW
        I(f'v_mov_b32 v{vAd+8}, 0'); I(f'v_mov_b32 v{vAd+9}, 0'); I(f'v_mov_b32 v{vAd+10}, 0'); I(f'v_mov_b32 v{vAd+11}, 0')
        I(f'v_min_u32 v{vAd+7}, 143, v0'); I(f'v_lshlrev_b32 v{vAd+7}, 4, v{vAd+7}'); I(f'v_add_u32 v{vAd+7}, {L_V + 40*288}, v{vAd+7}')
        I(f'ds_write_b128 v{vAd+7}, {vr(vAd+8, 4)}')
        I(f'v_mul_u32_u24 v{vAd}, 5120, {vG}'); I(f'v_lshl_add_u32 v{vAd}, {vN}, 4, v{vAd}')
        I(f's_mul_i32 {sT[2]}, {sS1}, 20480'); I(f's_lshl_b32 {sT[3]}, {sW}, 8'); I(f's_add_u32 {sT[2]}, {sT[2]}, {sT[3]}'); I(f's_add_u32 {sT[2]}, {sT[2]}, {WS_T2}')
        I(f's_add_u32 {sT[3]}, {sT[2]}, 4096')
        I(f'v_mul_u32_u24 v{vAd+1}, 576, {vG}'); I(f'v_lshl_add_u32 v{vAd+1}, {vN}, 2, v{vAd+1}')
        I(f's_lshl_b32 {sT[4]}, {sW}, 6'); I(f's_add_u32 {sT[4]}, {sT[4]}, {L_V}'); I(f'v_add_u32 v{vAd+1}, {sT[4]}, v{vAd+1}')
        I(f'v_mul_u32_u24 v{vAd+2}, 288, {vN}'); I(f'v_lshl_add_u32 v{vAd+2}, {vG}, 4, v{vAd+2}'); I(f'v_add_u32 v{vAd+2}, {L_V}, v{vAd+2}')
        I(f'v_and_b32 v{vAd+4}, 7, {vN}'); I(f'v_lshlrev_b32 v{vAd+4}, 5, v{vAd+4}'); I(f'v_add_u32 v{vAd+4}, {L_ST}, v{vAd+4}')
        I(f's_lshl_b32 {sT[4]}, {sW}, 3'); I(f'v_add_u32 v{vAd+3}, {sT[4]}, v{vAd+4}')
        I(f'v_and_b32 v{vAd+5}, 7, {vN}'); I(f'v_lshlrev_b32 v{vAd+5}, 4, v{vAd+5}'); I(f'v_lshl_add_u32 v{vAd+5}, {vG}, 8, v{vAd+5}')
        I(f'v_lshrrev_b32 v{vAd+6}, 3, {vN}'); I(f'v_lshl_add_u32 v{vAd+5}, v{vAd+6}, 12, v{vAd+5}')
        I(f's_mul_i32 {sT[4]}, {sS1}, 20480'); I(f's_lshl_b32 {sT[5]}, {sW}, 10'); I(f's_add_u32 {sT[4]}, {sT[4]}, {sT[5]}')
        I(f's_lshl_b32 {sT[5]}, {sHH}, 7'); I(f's_add_u32 {sT[4]}, {sT[4]}, {sT[5]}')
        vXf = VW + 12
        for i in range(12):
            I(f'v_lshlrev_b32 v{vXf + 2*i}, 16, v{vXR + i}'); I(f'v_and_b32 v{vXf + 2*i + 1}, 0xffff0000, v{vXR + i}')
    def p3(self):
        I = self.I; vAd = VW; vXf = VW + 12; vB = VW + 36; vZ = VW + 56; vP = VW + 76
        for m5 in range(5):
            I(f'buffer_load_dwordx4 {vr(vB + 4*m5, 4)}, v{vAd}, {WS}, {sT[2 + (m5 >> 2)]} offen offset:{(m5 & 3)*1024} sc1')
        self.hook('p3_loads_issued')
        for m5 in range(5):
            I(f'v_mfma_f32_16x16x32_bf16 {vr(vZ + 4*m5, 4)}, {vr(vA3, 4)}, {vr(vB + 4*m5, 4)}, 0')
        Zr = [vZ + 4*m for m in range(5)]; Zi = [vZ + 4*m + 2 for m in range(5)]
        pool = [vP + 2*i for i in range(48)]
        mu = self.bc(vTW3 + 12); nu = self.bc(vTW3 + 13)
        u0, U0, u1, V1, U1, v1, u2, V2, U2, v2 = [pool.pop(0) for _ in range(10)]
        fm = lambda d, a, c, neg_c=False: self.pk('fma', d, a, mu[0], c, bsel=mu[1], neg_c=neg_c)
        self.pk('mul', u0, Zr[0], mu[0], bsel=mu[1]); self.pk('mul', U0, Zi[0], nu[0], bsel=nu[1])
        fm(u2, Zr[3], Zr[2]); fm(V2, Zr[2], Zr[3], True); fm(U2, Zi[2], Zi[3]); fm(v2, Zi[3], Zi[2], True)
        fm(u1, Zr[4], Zr[1]); fm(V1, Zr[1], Zr[4], True); fm(U1, Zi[1], Zi[4]); fm(v1, Zi[4], Zi[1], True)
        def half(a0, a1, a2, b1, b2):
            p1, p2, q1, q2, z0, z1, z2, z3, z4 = [pool.pop(0) for _ in range(9)]
            self.pk('fma', p1, a1, sC, a0, bsel=0); self.pk('fma', p2, a1, sC, a0, bsel=1)
            self.pk('mul', q1, b1, sS, bsel=0); self.pk('mul', q2, b1, sS, bsel=1); self.pk('add', z0, a0, a1)
            self.pk('fma', p1, a2, sC, p1, bsel=1); self.pk('fma', p2, a2, sC, p2, bsel=0)
            self.pk('fma', q1, b2, sS, q1, bsel=1); self.pk('fma', q2, b2, sS, q2, bsel=0, neg_b=True); self.pk('add', z0, z0, a2)
            self.pk('add', z1, p1, q1); self.pk('add', z2, p2, q2); self.pk('add', z3, p2, q2, neg_b=True); self.pk('add', z4, p1, q1, neg_b=True)
            return [z0, z1, z2, z3, z4]
        zr = half(u0, u1, u2, v1, v2); zi = half(U0, U1, U2, V1, V2)
        Vr = [zr[0]] + [pool.pop(0) for _ in range(4)]; Vi = [zi[0]] + [pool.pop(0) for _ in range(4)]
        for c in range(1, 5):
            t1, t2, t3 = self.bc(vTW3 + c - 1), self.bc(vTW3 + 4 + c - 1), self.bc(vTW3 + 8 + c - 1)
            self.pk('mul', Vr[c], zr[c], t1[0], bsel=t1[1]); self.pk('mul', Vi[c], zi[c], t3[0], bsel=t3[1])
            self.pk('fma', Vr[c], zi[c], t2[0], Vr[c], bsel=t2[1], neg_b=True); self.pk('fma', Vi[c], zr[c], t2[0], Vi[c], bsel=t2[1])
        for c in range(5):
            for jb in range(2):
                d = vB + 2*c + jb
                I(f'v_cvt_pk_bf16_f32 v{d}, v{Vr[c] + jb}, v{Vi[c] + jb}')
                I(f'ds_write_b32 v{vAd+1}, v{d} offset:{(c*8 + jb)*288}')
        self.barrier()
        vF = vP; vY = vP + 48
        for ks in range(4):
            for tau in range(3): I(f'ds_read_b128 {vr(vF + 4*(ks*3 + tau), 4)}, v{vAd+2} offset:{tau*16*288 + ks*64}')
        for ks in range(4):
            for tau in range(3):
                for mu_ in range(2):
                    d = vr(vY + 8*tau + 4*mu_, 4)
                    I(f'v_mfma_f32_16x16x32_bf16 {d}, {ar(aA3 + 4*(mu_*4 + ks), 4)}, {vr(vF + 4*(ks*3 + tau), 4)}, {vr(vXf + 8*tau + 4*mu_, 4) if ks == 0 else d}')
        vHp = vB
        vs, vq, vone = f'v{vZ}', f'v{vZ+1}', f'v{vZ+2}'
        I(f'v_mov_b32 {vone}, 0x3f803f80')
        for i in range(12): I(f'v_cvt_pk_bf16_f32 v{vHp + i}, v{vY + 2*i}, v{vY + 2*i + 1}')
        for i in range(12):
            I(f'v_dot2_f32_bf16 {vs}, v{vHp+i}, {vone}, {"0" if i == 0 else vs}'); I(f'v_dot2_f32_bf16 {vq}, v{vHp+i}, v{vHp+i}, {"0" if i == 0 else vq}')
        I(f'v_add_f32_dpp {vs}, {vs}, {vs} row_ror:8 row_mask:0xf bank_mask:0xf'); I(f'v_add_f32_dpp {vq}, {vq}, {vq} row_ror:8 row_mask:0xf bank_mask:0xf')
        for sw in ('v_permlane16_swap_b32', 'v_permlane32_swap_b32'):
            I(f'v_mov_b32 v{vZ+2}, {vs}'); I(f'v_mov_b32 v{vZ+3}, {vq}')
            I(f'{sw} {vs}, v{vZ+2}'); I(f'{sw} {vq}, v{vZ+3}')
            I(f'v_add_f32 {vs}, {vs}, v{vZ+2}'); I(f'v_add_f32 {vq}, {vq}, v{vZ+3}')
        I(f'ds_write_b64 v{vAd+3}, {vr(vZ, 2)}')
        I(f's_add_u32 {sT[5]}, {sT[4]}, {WS_H}')
        self.img_stores(vHp, sT[5], vAd + 5)
        for i in range(12):
            I(f'v_lshlrev_b32 v{vY + 2*i}, 16, v{vHp + i}'); I(f'v_and_b32 v{vY + 2*i + 1}, 0xffff0000, v{vHp + i}')
        self.barrier()
        I(f'ds_read_b128 {vr(vZ+4, 4)}, v{vAd+4}'); I(f'ds_read_b128 {vr(vZ+8, 4)}, v{vAd+4} offset:16')
        self.pk('add', vZ + 4, vZ + 4, vZ + 6); self.pk('add', vZ + 8, vZ + 8, vZ + 10); self.pk('add', vZ, vZ + 4, vZ + 8)
        self.finish_stats(vs, vq, 1.0)
        I(f'v_mul_f32 {vs}, {vs}, {vq}')
        vL = vF
        for i in range(12):
            I(f'v_pk_fma_f32 {vr(vY + 2*i, 2)}, {vr(vY + 2*i, 2)}, {vr(vZ, 2)}, {vr(vZ, 2)} op_sel:[0,1,0] op_sel_hi:[1,1,0] neg_lo:[0,0,1] neg_hi:[0,0,1]')
        for i in range(12): I(f'v_cvt_pk_bf16_f32 v{vL + i}, v{vY + 2*i}, v{vY + 2*i + 1}')
        I(f's_add_u32 {sT[5]}, {sT[4]}, {WS_LN}')
        self.img_stores(vL, sT[5], vAd + 5)
    def img_stores(self, reg, soff, vaddr):
        I = self.I
        for tau in range(3):
            if tau: I(f's_add_u32 {soff}, {soff}, 8192')
            if tau == 2:
                I('s_mov_b32 exec_lo, 0x00ff00ff'); I('s_mov_b32 exec_hi, 0x00ff00ff')
            I(f'buffer_store_dwordx4 {vr(reg + 4*tau, 4)}, v{vaddr}, {WS}, {soff} offen sc1')
        I('s_mov_b64 exec, -1')

    def w1_addr(self, v):
        I = self.I
        I(f's_mov_b32 {sT[0]}, 4682'); I(f's_mul_i32 {sT[1]}, {sM}, 224')
        for pt in range(7):
            a = v + pt; t = v + 7
            I(f'v_add_u32 v{t}, {64*pt}, {vLane}'); I(f'v_mul_u32_u24 v{t+1}, {sT[0]}, v{t}'); I(f'v_lshrrev_b32 v{t+1}, 16, v{t+1}')
            I(f'v_mul_u32_u24 v{t+2}, 14, v{t+1}'); I(f'v_sub_u32 v{t}, v{t}, v{t+2}')
            I(f'v_bfe_u32 v{t+2}, v{t+1}, 2, 2'); I(f'v_lshrrev_b32 v{t+3}, 4, v{t+1}'); I(f'v_and_b32 v{t+1}, 3, v{t+1}')
            I(f'v_lshl_add_u32 v{t+1}, v{t+2}, 3, v{t+1}'); I(f'v_lshl_add_u32 v{t+1}, v{t+3}, 2, v{t+1}')
            I(f'v_mul_u32_u24 v{t+1}, {5*3456}, v{t+1}'); I(f'v_lshl_add_u32 v{t+1}, v{t}, 4, v{t+1}'); I(f'v_add_u32 v{a}, {sT[1]}, v{t+1}')
    def w1_dma(self, v, cs):
        I = self.I; tok = None
        for c in cs:
            I(f's_mul_i32 {sT[0]}, {sW}, {160*3456}'); I(f's_add_u32 {sT[0]}, {sT[0]}, {c*3456}')
            I(f's_mul_i32 {sT[1]}, {sW}, 7168'); I(f's_add_u32 {sT[1]}, {sT[1]}, {c*4*7168}')
            for pt in range(7):
                I(f's_add_u32 m0, {sT[1]}, {pt*1024}')
                tok = I(f'buffer_load_dwordx4 v{v + pt}, {W1}, {sT[0]} offen lds')
        return tok
    def w2_addr(self, v):
        I = self.I
        I(f's_mov_b32 {sT[0]}, 6554'); I(f's_and_b32 {sT[1]}, {sM}, 7'); I(f's_mul_i32 {sT[1]}, {sT[1]}, 160')
        for pt in range(5):
            a = v + pt; t = v + 5
            I(f'v_add_u32 v{t}, {64*pt}, {vLane}'); I(f'v_mul_u32_u24 v{t+1}, {sT[0]}, v{t}'); I(f'v_lshrrev_b32 v{t+1}, 16, v{t+1}')
            I(f'v_mul_u32_u24 v{t+2}, 10, v{t+1}'); I(f'v_sub_u32 v{t}, v{t}, v{t+2}')
            I(f'v_mul_u32_u24 v{t+1}, 1280, v{t+1}'); I(f'v_lshl_add_u32 v{t+1}, v{t}, 4, v{t+1}'); I(f'v_add_u32 v{a}, {sT[1]}, v{t+1}')
    def w2_dma(self, v, ks, slot):
        I = self.I; tok = None
        I(f's_add_u32 {sT[0]}, s68, {ks*40960}')
        for pt in range(5):
            I(f's_add_u32 m0, s69, {slot*5120 + pt*1024}')
            tok = I(f'buffer_load_dwordx4 v{v + pt}, {W2}, {sT[0]} offen lds')
        return tok
    def hook(self, name):
        f = getattr(self, 'hooks', {}).get(name)
        if f: f()

    def p4(self):
        I = self.I
        vAcc = 8; vBf = 64; vLx = 120; vAd = 152; vT = 160
        lnreg = lambda mt, k: (ar(4*(k*2 + mt), 4) if k < 16 else vr(vLx + 4*((k - 16)*2 + mt), 4))
        I(f'v_lshrrev_b32 v{vAd}, 2, {vLane}'); I(f'v_mul_u32_u24 v{vAd}, 224, v{vAd}'); I(f'v_and_b32 v{vAd+1}, 3, {vLane}'); I(f'v_lshl_add_u32 v{vAd}, v{vAd+1}, 3, v{vAd}')
        I(f's_xor_b32 {sT[2]}, {sHH}, 1'); I(f's_mul_i32 {sT[2]}, {sT[2]}, 192'); I(f'v_add_u32 v{vAd+1}, {sT[2]}, v{vAd}')
        I(f's_lshl_b32 {sT[2]}, {sHH}, 5'); I(f'v_add_u32 v{vAd}, {sT[2]}, v{vAd}')
        I(f's_mul_i32 {sT[2]}, {sG}, 163840'); I(f's_mul_i32 {sT[3]}, {sW}, 40960'); I(f's_add_u32 {sT[2]}, {sT[2]}, {sT[3]}'); I(f's_add_u32 {sT[2]}, {sT[2]}, {WS_LN}')
        self.wait_vm0(True)
        self.pollg(WS_FL3)
        self.stamp()
        for k in range(20):
            if k % 4 == 0:
                I(f's_add_u32 {sT[3]}, {sT[2]}, {k*1024}'); I(f's_add_u32 {sT[4]}, {sT[2]}, {k*1024 + 20480}')
            for mt in range(2):
                I(f'buffer_load_dwordx4 {lnreg(mt, k)}, {vL16}, {WS}, {sT[3 + mt]} offen offset:{(k & 3)*1024} sc1')
        self.hook('p4_loads_issued')
        def rd(k, nt, hf):
            kk = k % 8
            base = vAd + (1 if nt == 6 else 0); off = kk*7168 + hf*16*224 + (0 if nt == 6 else nt*32)
            I(f'ds_read_b64_tr_b16 {vr(vBf + 28*(k & 1) + 4*nt + 2*hf, 2)}, v{base} offset:{off}')
        def bump():
            I(f'v_add_u32 v{vAd}, {8*7168}, v{vAd}'); I(f'v_add_u32 v{vAd+1}, {8*7168}, v{vAd+1}')
        for nt in range(7): rd(0, nt, 0); rd(0, nt, 1)
        for k in range(20):
            if (k + 1) % 8 == 0: bump()
            for nt in range(7):
                for mt in range(2):
                    d = vr(vAcc + 4*(mt*7 + nt), 4)
                    I(f'v_mfma_f32_16x16x32_bf16 {d}, {vr(vBf + 28*(k & 1) + 4*nt, 4)}, {lnreg(mt, k)}, {"0" if k == 0 else d}')
                    if k + 1 < 20: rd(k + 1, nt, mt)
        self.hook('p4_loop_done')
        I(f's_mov_b32 s70, {f32(-1.4426950408889634)}'); I(f's_mov_b32 s71, {f32(1.0)}')
        def silu(regs4, dst2):
            t = vT + 8*(self.nsilu & 1); self.nsilu += 1
            for h in range(2): self.pk('mul', t + 2*h, regs4 + 2*h, 's[70:71]', bsel=0)
            for i in range(4): I(f'v_exp_f32 v{t+i}, v{t+i}')
            for h in range(2): self.pk('add', t + 2*h, t + 2*h, 's[70:71]', bsel=1)
            for i in range(4): I(f'v_rcp_f32 v{t+i}, v{t+i}')
            for h in range(2): self.pk('mul', t + 2*h, t + 2*h, regs4 + 2*h)
            for h in range(2): I(f'v_cvt_pk_bf16_f32 v{dst2+h}, v{t+2*h}, v{t+2*h+1}')
        self.nsilu = 0
        vO = vBf
        I(f's_mul_i32 {sT[2]}, {sG}, 458752'); I(f's_mul_i32 {sT[3]}, {sW}, 114688'); I(f's_add_u32 {sT[2]}, {sT[2]}, {sT[3]}')
        I(f's_lshr_b32 {sT[3]}, {sM}, 1'); I(f's_mul_i32 {sT[3]}, {sT[3]}, 7168'); I(f's_add_u32 {sT[2]}, {sT[2]}, {sT[3]}'); I(f's_add_u32 {sT[2]}, {sT[2]}, {WS_H1}')
        I(f's_lshl_b32 {sT[3]}, {sHH}, 12'); I(f's_add_u32 {sT[3]}, {sT[3]}, {sT[2]}'); I(f's_add_u32 {sT[4]}, {sT[3]}, 57344')
        for mt in range(2):
            for pr in range(3):
                o = vO + 4*(mt*3 + pr)
                silu(vAcc + 4*(mt*7 + 2*pr), o); silu(vAcc + 4*(mt*7 + 2*pr + 1), o + 2)
                I(f'buffer_store_dwordx4 {vr(o, 4)}, {vL16}, {WS}, {sT[3 + mt]} offen offset:{pr*1024} sc1')
        o = vO + 24
        silu(vAcc + 4*6, o); silu(vAcc + 4*13, o + 2)
        I(f'v_permlane16_swap_b32 v{o}, v{o+2}'); I(f'v_permlane16_swap_b32 v{o+1}, v{o+3}')
        I(f'v_and_b32 v{vT}, 1, {vG}'); I(f'v_mul_u32_u24 v{vT}, 57344, v{vT}'); I(f'v_lshrrev_b32 v{vT+1}, 1, {vG}')
        I(f'v_lshl_add_u32 v{vT}, v{vT+1}, 8, v{vT}'); I(f'v_lshl_add_u32 v{vT}, {vN}, 4, v{vT}')
        I(f's_lshl_b32 {sT[3]}, {sHH}, 9'); I(f's_add_u32 {sT[3]}, {sT[3]}, {sT[2]}')
        I(f'buffer_store_dwordx4 {vr(o, 4)}, v{vT}, {WS}, {sT[3]} offen offset:3072 sc1')

    def p5(self):
        I = self.I
        vAcc = 8; vBf = 88; vHr = 128; vAd = 140; vW2 = self.vW2; vT = 160
        hreg = lambda k, mt: ar(16*k + 4*mt, 4)
        I(f'v_lshrrev_b32 v{vAd}, 2, {vLane}'); I(f'v_mul_u32_u24 v{vAd}, 160, v{vAd}'); I(f'v_and_b32 v{vAd+1}, 3, {vLane}'); I(f'v_mul_u32_u24 v{vAd+1}, 40, v{vAd+1}')
        I(f'v_add3_u32 v{vAd}, v{vAd}, v{vAd+1}, s69'); I(f'v_mul_u32_u24 v{vAd+1}, 640, {vG}'); I(f'v_add_u32 v{vAd+1}, v{vAd+1}, v{vAd}')
        I(f'v_lshrrev_b32 v{vAd+2}, 1, {vG}'); I(f'v_lshlrev_b32 v{vAd+2}, 8, v{vAd+2}'); I(f'v_lshl_add_u32 v{vAd+2}, {vN}, 4, v{vAd+2}')
        I(f'v_and_b32 v{vAd+3}, 1, {vG}'); I(f'v_lshl_add_u32 v{vAd+2}, v{vAd+3}, 3, v{vAd+2}')
        I(f's_lshr_b32 {sT[5]}, {sM}, 3'); I(f's_lshl_b32 {sT[5]}, {sT[5]}, 2')
        I(f's_lshl_b32 {sT[6]}, {sG}, 3'); I(f's_add_u32 {sT[6]}, {sT[6]}, {sT[5]}'); I(f's_add_u32 {sT[6]}, {sT[6]}, {sW}')
        I(f's_mul_i32 {sT[2]}, {sT[6]}, 20480'); I(f's_and_b32 {sT[3]}, {sM}, 7'); I(f's_lshl_b32 {sT[4]}, {sT[3]}, 9'); I(f's_add_u32 {sT[2]}, {sT[2]}, {sT[4]}')
        for c in range(5):
            I(f's_add_u32 {sT[4]}, {sT[2]}, {WS_H + c*4096}')
            I(f'buffer_load_dwordx2 {vr(vHr + 2*c, 2)}, v{vAd+2}, {WS}, {sT[4]} offen sc1')
        I(f'v_mul_u32_u24 v{vAd+3}, 163840, {vN}'); I(f'v_mul_u32_u24 v{vAd+4}, 40, {vG}'); I(f'v_add_u32 v{vAd+3}, v{vAd+3}, v{vAd+4}')
        I(f's_mul_i32 s72, {sT[6]}, 1280'); I(f's_mul_i32 {sT[3]}, {sT[3]}, 160'); I(f's_add_u32 s72, s72, {sT[3]}')
        I(f's_mul_i32 {sT[2]}, {sG}, 458752'); I(f's_mul_i32 {sT[3]}, {sT[5]}, 57344'); I(f's_add_u32 {sT[2]}, {sT[2]}, {sT[3]}')
        I(f's_mul_i32 {sT[3]}, {sW}, 14336'); I(f's_add_u32 {sT[2]}, {sT[2]}, {sT[3]}'); I(f's_add_u32 s73, {sT[2]}, {WS_H1}')
        self.pollg(WS_FL4)
        self.stamp()
        def lda(k):
            for mt in range(4):
                I(f's_add_u32 {sT[2]}, s73, {mt*57344 + (k & ~3)*1024}')
                I(f'buffer_load_dwordx4 {hreg(k, mt)}, {vL16}, {WS}, {sT[2]} offen offset:{(k & 3)*1024} sc1')
        def rd(k, nt, hf):
            sh = k % 7 == 3
            off = (k % 8)*5120 + nt*8 + hf*(4*160 if sh else 16*160)
            I(f'ds_read_b64_tr_b16 {vr(vBf + 20*(k & 1) + 4*nt + 2*hf, 2)}, v{vAd + (1 if sh else 0)} offset:{off}')
        PRE = 8
        for k in range(PRE): lda(k)
        toks = dict(self.w2toks)
        self.wait_tok(toks[0])
        for nt in range(5): rd(0, nt, 0); rd(0, nt, 1)
        for k in range(14):
            if k + 1 < 14: self.wait_tok(toks[k + 1])
            cnt = 0
            for nt in range(5):
                for mt in range(4):
                    d = vr(vAcc + 4*(mt*5 + nt), 4)
                    I(f'v_mfma_f32_16x16x32_bf16 {d}, {vr(vBf + 20*(k & 1) + 4*nt, 4)}, {hreg(k, mt)}, {"0" if k == 0 else d}')
                    if k + 1 < 14 and mt < 2: rd(k + 1, nt, mt)
            if k + 8 < 14: toks[k + 8] = self.w2_dma(vW2, k + 8, k % 8)
            if k + PRE < 14: lda(k + PRE)
        I(f'v_add_u32 v{vAd}, s69, {vL16}')
        for mt in range(4):
            for nt in range(5): I(f'ds_write_b128 v{vAd}, {vr(vAcc + 4*(mt*5 + nt), 4)} offset:{(mt*5 + nt)*1024}')
        I(f's_mul_i32 {sT[2]}, {sW}, 5120'); I(f'v_add_u32 v{vAd}, {sT[2]}, {vL16}'); I(f'v_add_u32 v{vAd+1}, {2*40960}, v{vAd}')
        vHf = vT
        for c in range(5):
            for qq in range(4):
                src = vHr + 2*c + (qq >> 1)
                if qq & 1: I(f'v_and_b32 v{vHf + 5*qq + c}, 0xffff0000, v{src}')
                else: I(f'v_lshlrev_b32 v{vHf + 5*qq + c}, 16, v{src}')
        self.barrier()
        for s in range(4):
            for nt in range(5): I(f'ds_read_b128 {vr(vAcc + 20*s + 4*nt, 4)}, v{vAd + (s >> 1)} offset:{(s & 1)*40960 + nt*1024}')
        for i in range(10):
            self.pk('add', vAcc + 2*i, vAcc + 2*i, vAcc + 20 + 2*i)
        for i in range(10):
            self.pk('add', vAcc + 40 + 2*i, vAcc + 40 + 2*i, vAcc + 60 + 2*i)
        for i in range(10):
            self.pk('add', vAcc + 2*i, vAcc + 2*i, vAcc + 40 + 2*i)
        for i in range(10):
            I(f'v_cvt_pk_bf16_f32 v{vAcc + 20 + i}, v{vAcc + 2*i}, v{vAcc + 2*i + 1}')
        for i in range(10):
            I(f'v_lshlrev_b32 v{vAcc + 2*i}, 16, v{vAcc + 20 + i}'); I(f'v_and_b32 v{vAcc + 2*i + 1}, 0xffff0000, v{vAcc + 20 + i}')
        for i in range(10): self.pk('add', vAcc + 2*i, vAcc + 2*i, vHf + 2*i)
        vO = vAcc + 40
        for i in range(10): I(f'v_cvt_pk_bf16_f32 v{vO + i}, v{vAcc + 2*i}, v{vAcc + 2*i + 1}')
        I(f'buffer_store_dwordx4 {vr(vO, 4)}, v{vAd+3}, {OUT}, s72 offen')
        I(f'buffer_store_dwordx4 {vr(vO + 4, 4)}, v{vAd+3}, {OUT}, s72 offen offset:16')
        I(f'buffer_store_dwordx2 {vr(vO + 8, 2)}, v{vAd+3}, {OUT}, s72 offen offset:32')

    def build(self):
        I = self.I
        self.hooks = {}
        self.prologue()
        self.p1()
        self.stamp()
        self.sig1()
        self.prefetch_tables()
        L2 = 'L_nop2'
        snap = self.cond_begin()
        I(f's_cmp_ge_u32 {sY}, 20'); I(f's_cbranch_scc1 {L2}')
        self.p2()
        self.stamp()
        self.sig2()
        self.cond_end(snap); self.label(L2)
        self.barrier()
        vW1 = 200
        self.w1_addr(vW1)
        self.p3_pre()
        self.poll2()
        self.stamp()
        self.hooks['p3_loads_issued'] = lambda: self.w1_dma(vW1, range(5))
        snap = self.cond_begin(); L = self.newlabel('Lep')
        I(f's_or_b32 {sT[0]}, s2, {sW}'); I(f's_cmp_lg_u32 {sT[0]}, 0'); I(f's_cbranch_scc1 {L}')
        I(f's_mov_b32 {sT[0]}, {WS_EP}'); I('s_mov_b64 exec, 1')
        I(f'buffer_store_dword {vTag}, off, {WS}, {sT[0]} sc1'); I('s_mov_b64 exec, -1')
        self.cond_end(snap); self.label(L)
        self.p3()
        self.stamp()
        self.sigg(WS_FL3)
        self.vW2 = 232
        I(f's_mul_i32 s69, {sW}, 40960'); I(f's_mul_i32 s68, s69, 14')
        self.w2_addr(self.vW2)
        def after_loop():
            self.barrier()
            self.w2toks = {k: self.w2_dma(self.vW2, k, k) for k in range(8)}
        self.hooks['p4_loop_done'] = after_loop
        self.p4()
        self.stamp()
        self.sigg(WS_FL4)
        self.p5()
        self.stamp()
        self.label('L_end'); I('s_endpgm')

HEADER = open('sequential_preLN__spectral_gfnet__dense_activation_silu__prompt.s.ref').read().split('; Override launch')[0]
def make(stamps=False):
    k = K(stamps=stamps); k.build()
    s = HEADER + '; @launch grid=(256,1,1) block=(256,1,1) lds=163840\n'
    s += f'.amdgcn_target "amdgcn-amd-amdhsa--gfx950"\n.text\n.globl {KNAME}\n.p2align 8\n.type {KNAME},@function\n{KNAME}:\n'
    s += k.text()
    s += '.p2align 8\n.type L_tab,@object\nL_tab:\n' + tables.blob_asm(TBLOB) + f'\n.size L_tab, {len(TBLOB)}\n'
    s += f'''.section .rodata,"a"
.p2align 6
.amdhsa_kernel {KNAME}
  .amdhsa_next_free_vgpr 512
  .amdhsa_next_free_sgpr 102
  .amdhsa_accum_offset 256
  .amdhsa_group_segment_fixed_size 0
  .amdhsa_kernarg_size 72
  .amdhsa_user_sgpr_count 2
  .amdhsa_user_sgpr_kernarg_segment_ptr 1
  .amdhsa_system_sgpr_workgroup_id_x 1
.end_amdhsa_kernel
'''
    return s, k
if __name__ == '__main__':
    out = sys.argv[1]; st = len(sys.argv) > 2 and sys.argv[2] == 'stamps'
    s, k = make(st); open(out, 'w').write(s); print('instructions', k.nins, 'bytes', len(s))
```

```python
import numpy as np
from emu import bf16, mats128, twid
def bf16_bits(a): return (bf16(np.asarray(a, np.float32)).view(np.uint32) >> 16).astype(np.uint16)
def f16_bits(a): return np.asarray(a, np.float64).astype(np.float16).view(np.uint16)
def exact_cs(num, den):
    num = np.asarray(num) % den
    c = np.cos(2*np.pi*num/den); s = np.sin(2*np.pi*num/den)
    c[np.abs(c) < 1e-12] = 0; s[np.abs(s) < 1e-12] = 0
    return c, s
def mat128():
    q = np.arange(128)[:, None]; kb = np.arange(64)[None, :]
    c, s = exact_cs(q*kb, 128); sn = -s; sn[:, 0] = (-1.0)**np.arange(128)
    sn[sn == 0] = 0.0
    return np.stack([c, sn])
lane = np.arange(64)
def tab_b1():
    M = mat128(); t = np.zeros((4, 2, 4, 64, 8))
    for kt in range(4):
        for p in range(2):
            for ks in range(4):
                for e in range(8):
                    t[kt, p, ks, :, e] = M[p, 32*ks + 8*(lane >> 4) + e, 16*kt + (lane & 15)]
    return bf16_bits(t).tobytes()
def tab_tw():
    t1, t2, t3 = twid(); t = np.zeros((64, 16), np.float32)
    t[:, 0:4] = t1[1:].T; t[:, 4:8] = t2[1:].T; t[:, 8:12] = t3[1:].T
    t[:, 12] = 1; t[:, 13] = 1; t[0, 12] = 0; t[0, 13] = 0.5
    return t.tobytes()
def tab_f2():
    t = np.zeros((4, 2, 4, 64, 4, 2))
    for c in range(4):
        for tt in range(4):
            for e in range(4):
                k0 = lane & 31; u = 8*tt + 4*(lane >> 5) + e
                co, si = exact_cs((4*u + c)*k0, 128)
                t[c, 0, tt, :, e, 0] = co; t[c, 0, tt, :, e, 1] = si
                t[c, 1, tt, :, e, 0] = -si; t[c, 1, tt, :, e, 1] = co
    return f16_bits(t).tobytes()
def tab_i2():
    t = np.zeros((4, 2, 4, 64, 4, 2))
    for c in range(4):
        for tt in range(4):
            for e in range(4):
                u = lane & 31; k0 = 8*tt + 4*(lane >> 5) + e
                co, si = exact_cs((4*u + c)*k0, 128)
                t[c, 0, tt, :, e, 0] = co; t[c, 0, tt, :, e, 1] = -si
                t[c, 1, tt, :, e, 0] = si; t[c, 1, tt, :, e, 1] = co
    return bf16_bits(t).tobytes()
def tab_a3():
    M = mat128(); t = np.zeros((4, 2, 4, 64, 4, 2))
    m = lane & 15; g = lane >> 4
    for w in range(4):
        for mu in range(2):
            for ks in range(4):
                for e in range(4):
                    for p in range(2):
                        t[w, mu, ks, :, e, p] = M[p, 32*w + 8*(m >> 2) + 4*mu + (m & 3), 16*ks + 4*g + e]
    return bf16_bits(t).tobytes()
def tab_ad():
    t = np.zeros((2, 64, 4), np.uint32)
    for pt in range(7):
        idx = 64*pt + lane; r = idx // 14; pc = idx % 14
        row = 8*((r >> 2) & 3) + 4*(r >> 4) + (r & 3)
        t[pt >> 2, :, pt & 3] = row*5*3456 + pc*16 - (pt & 3)*1024
        assert (row*5*3456 + pc*16 - (pt & 3)*1024).min() >= 0
    return t.tobytes()
def all_tables():
    parts = [('B1', tab_b1()), ('TW', tab_tw()), ('AD', tab_ad()), ('A3', tab_a3())]
    offs = {}; blob = b''
    for n, b in parts:
        offs[n] = len(blob); blob += b
    return offs, blob
def blob_asm(blob):
    q = np.frombuffer(blob, np.uint64)
    lines = []
    for i in range(0, len(q), 8):
        lines.append('.quad ' + ','.join(hex(int(v)) for v in q[i:i+8]))
    return '\n'.join(lines)
if __name__ == '__main__':
    o, b = all_tables(); print(o, len(b), len(blob_asm(b)))
```

```python
import sys, struct, math
from asmgen import *
import tables

KNAME = 'sequential_preLN__spectral_gfnet__dense_activation_silu__prompt_kernel'
TS = 31488
O_T2, O_LN = 10240, 20480
WS_H1, WS_W2 = 0x800000, 0x1000000
WS_FLA, WS_FLB, WS_EP, WS_FL4 = 0x1300000, 0x1310000, 0x1418000, 0x1420000
FREP = 0x18000
WS_STAMP = 0x1500000
WS_SIZE = 0x2000000
TOFF, TBLOB = tables.all_tables()
def f32(x): return hex(struct.unpack('<I', struct.pack('<f', x))[0])
KORD = [0, 4, 7, 11, 1, 5, 8, 12, 2, 6, 9, 13, 3, 10]

X, WR, WI, W1, W2, OUT, WS, TAB = [sr(4 + 4*i, 4) for i in range(8)]
sW, sG, sM, sS1, sHH, sX8, sY, sTILE = 's36', 's37', 's38', 's39', 's40', 's41', 's42', 's43'
sC = 's[44:45]'; sS = 's[46:47]'
sMASK = 's48'; sCNT = 's49'
sT = ['s50', 's51', 's52', 's53', 's54', 's55', 's56', 's57']
sPAIR = 's[58:59]'; sPC = 's[60:61]'; sTAG2 = 's[62:63]'
sP = [f's{i}' for i in range(64, 84)]
sW2B = 's84'
sH1 = ['s60', 's61', 's100']
sBLK = 's101'
vLane, vN, vG, vL16, vTag = 'v1', 'v2', 'v3', 'v4', 'v5'
vXR = 8
vW1A = 20
vMu = 27
vTW3 = 28
vA3 = 44
VW = 48
vWr, vWi = 212, 228
vPo = 244
vFl = 248
vJunk = 252
vWA = 206
aB1, aF2, aI2, aA3 = 0, 32, 64, 96
aBf = 88
L_XF, L_EX, L_R = 114688, 114688 + 24576, 114688 + 24576 + 10240
L_G, L_H = 114688, 114688 + 32768
L_V, L_ST = 143360, 143360 + 48*288
L_W = 86016
L_RP = 57344

class Rec:
    def __init__(self): self.L = []
    def I(self, x): self.L.append(x)

class K(Gen):
    def __init__(self, stamps=False, opt=None):
        super().__init__(); self.stamps = stamps; self.nst = 0; self.stnames = []; self.opt = opt or {}; self.tail = []; self.toks = {}
    bgq = None; bgper = 0; bgcnt = 0; inbg = False
    def I(self, text):
        t2 = text
        if text.startswith('buffer_load'):
            for c, srds in (('x', (X,)), ('W', (WR, WI)), ('1', (W1,)), ('2', (W2,))):
                if c in self.opt.get('nt', 'W21') and any(f' {d},' in text for d in srds) and 'x4' not in text: t2 = text.replace(' lds', ' nt lds') if text.endswith(' lds') else text + ' nt'
        r = super().I(t2)
        if r is not None: self.toks[text] = r
        if self.bgq and self.bgper and not self.inbg and not text.startswith(('s_cmp', 's_cbranch', 's_branch', 's_add_u32 m0')):
            self.bgcnt += 1
            if self.bgcnt >= self.bgper: self.bgcnt = 0; self.bg(1)
        return r
    def bg(self, n=10**9):
        self.inbg = True
        while n > 0 and self.bgq:
            for x in self.bgq.pop(0): self.I(x)
            n -= 1
        self.inbg = False
    def sprinkle(self, items, period):
        assert not self.bgq
        self.bgq = list(items); self.bgper = period; self.bgcnt = 0
    def cond_begin(self):
        assert not self.bgq or self.inbg or self.allow_bg_cond, 'background items pending at a conditional region'
        return super().cond_begin()
    allow_bg_cond = False
    def pk(self, op, d, a, b, c=None, bsel=None, neg_b=False, neg_c=False, neg_a=False):
        n = 3 if c is not None else 2
        ops = [vr(d, 2), vr(a, 2), b if isinstance(b, str) else vr(b, 2)] + ([vr(c, 2)] if c is not None else [])
        mods = ''
        if bsel is not None:
            lo = [0, bsel, 0][:n]; hi = [1, bsel, 1][:n]
            mods += f' op_sel:[{",".join(map(str, lo))}] op_sel_hi:[{",".join(map(str, hi))}]'
        if neg_a or neg_b or neg_c:
            ng = [int(neg_a), int(neg_b), int(neg_c)][:n]; s = ",".join(map(str, ng))
            mods += f' neg_lo:[{s}] neg_hi:[{s}]'
        self.I(f'v_pk_{op}_f32 ' + ', '.join(ops) + mods)
    def bc(self, r): return (r & ~1, r & 1)
    def weave(self, main, fill, per=2, start=0):
        fill = list(fill)
        for i, m in enumerate(main):
            self.I(m)
            if i >= start:
                for _ in range(per):
                    if fill: self.I(fill.pop(0))
        for f in fill: self.I(f)
    def stamp(self, name='', wait=None, fine=False):
        if self.opt.get('probe'):
            if name == self.opt['probe']:
                self.inbg = True
                if wait is not None: self.I(f'v_mov_b32 v7, v{wait}')
                self.I('s_memrealtime s[90:91]'); self.wait_lg0(); self.inbg = False
            if name == 'end':
                I = self.I
                I(f's_cmp_lg_u32 s2, {self.opt.get("pwg", 0)}'); I('s_cbranch_scc1 L_end')
                I('s_sub_u32 s90, s90, s96'); I('s_min_u32 s90, s90, 5000'); I('s_mul_i32 s90, s90, 40')
                self.label('L_spin'); I('s_memrealtime s[92:93]'); self.wait_lg0(); I('s_sub_u32 s92, s92, s96'); I('s_cmp_lt_u32 s92, s90'); I('s_cbranch_scc1 L_spin')
            return
        if not self.stamps or (fine and not self.opt.get('fine')): return
        if self.opt.get('st4') and name.startswith(('p1', 'p2', 'pre', 'p3', 'fla', 'x a', 'joi')): return
        if name not in self.stnames: self.stnames.append(name); self.nst += 1
        self.inbg = True
        if wait is not None: self.I(f'v_mov_b32 v7, v{wait}')
        i = self.stnames.index(name); assert i < 32
        if name == 'entry':
            self.I('v_mov_b32 v6, 0'); a, b = 96, 98
        elif name == 'kernarg': a, b = 92, 94
        else:
            self.I('s_memrealtime s[96:97]'); self.I('s_memtime s[98:99]'); a, b = 96, 98
        self.wait_lg0()
        self.I(f'v_writelane_b32 v6, s{b}, {i}'); self.I(f'v_writelane_b32 v6, s{a}, {32 + i}'); self.I(f'v_writelane_b32 v255, {sCNT}, {i}')
        if name == 'end':
            self.I(f's_lshl_b32 s90, s2, 10'); self.I(f's_add_u32 s90, s90, {WS_STAMP}')
            self.I(f's_lshl_b32 s91, {sW}, 8'); self.I(f's_add_u32 s90, s90, s91')
            self.I(f'v_lshlrev_b32 v7, 2, {vLane}')
            self.I(f'buffer_store_dword v6, v7, {WS}, s90 offen')
            self.I(f's_add_u32 s90, s90, 0x40000'); self.I(f'buffer_store_dword v255, v7, {WS}, s90 offen')
        self.inbg = False

    def dft5_half(self, z, t):
        a, b, c, d, u0, u1, u2, v1, v2 = t
        self.pk('add', a, z[1], z[4]); self.pk('add', b, z[2], z[3])
        self.pk('add', c, z[1], z[4], neg_b=True); self.pk('add', d, z[2], z[3], neg_b=True)
        self.pk('add', u0, z[0], a); self.pk('fma', u1, a, sC, z[0], bsel=0); self.pk('fma', u2, a, sC, z[0], bsel=1)
        self.pk('mul', v1, c, sS, bsel=0); self.pk('mul', v2, c, sS, bsel=1)
        self.pk('add', u0, u0, b); self.pk('fma', u1, b, sC, u1, bsel=1); self.pk('fma', u2, b, sC, u2, bsel=0)
        self.pk('fma', v1, d, sS, v1, bsel=1); self.pk('fma', v2, d, sS, v2, bsel=0, neg_b=True)
        return u0, u1, u2, v1, v2
    def finish_stats(self, vs, vq, scale):
        rnd = [f'v_cvt_pk_bf16_f32 {vq}, {vq}, {vq}', f'v_lshlrev_b32 {vq}, 16, {vq}']
        L = [f'v_mul_f32 {vs}, {f32(1/640.)}, {vs}', f'v_mul_f32 {vq}, {f32(1/640.)}, {vq}',
             f'v_fma_f32 {vq}, -{vs}, {vs}, {vq}', f'v_max_f32 {vq}, 0, {vq}'] + rnd + [f'v_add_f32 {vq}, {f32(1e-5)}, {vq}'] + rnd
        L += [f'v_sqrt_f32 {vq}, {vq}'] + rnd
        if scale is None: return L
        L += [f'v_rcp_f32 {vq}, {vq}']
        if scale != 1.0: L.append(f'v_mul_f32 {vq}, {f32(scale)}, {vq}')
        return L

    def p1(self):
        I = self.I
        sRH = sP[1]
        vX = VW; vF = VW + 20; vTW = VW + 40; vA2 = VW + 56; vAd = VW + 64
        vAf = VW + 76; vAcc = VW + 124; vT = VW + 148
        if self.stamps or self.opt.get('probe'): I('s_memrealtime s[96:97]'); I('s_memtime s[98:99]')
        for d, o in ((4, 0), (28, 64), (8, 8), (12, 16), (16, 32), (20, 40), (24, 48)): I(f's_load_dwordx2 s[{d}:{d+1}], s[0:1], {o}')
        I('s_cmp_ge_u32 s2, 256'); I('s_cbranch_scc1 L_end')
        I(f's_getpc_b64 {sPC}'); self.label('L_pc')
        I(f's_lshr_b32 {sY}, s2, 3'); I(f'v_min_u32 v6, 26, v0'); I(f's_mul_i32 {sT[0]}, {sY}, {27*128}')
        I(f'v_lshl_add_u32 v6, v6, 7, {sT[0]}'); I(f'v_min_u32 v6, (L_tab - L_pc + {len(TBLOB) - 4}), v6')
        I(f'global_load_dword v7, v6, {sPC}')
        I(f's_and_b32 {sX8}, s2, 7'); I(f'v_and_b32 {vN}, 15, v0'); I(f'v_lshrrev_b32 v{vAd+1}, 4, v0')
        if self.opt.get('split2', 4) == 4:
            I(f's_lshr_b32 {sG}, {sX8}, 2'); I(f's_lshr_b32 {sT[0]}, {sY}, 2'); I(f's_lshl3_add_u32 {sG}, {sG}, {sT[0]}')
            I(f's_and_b32 {sM}, s2, 3'); I(f's_and_b32 {sT[0]}, {sY}, 3'); I(f's_lshl2_add_u32 {sM}, {sM}, {sT[0]}')
        elif self.opt.get('split2', 4):
            I(f's_lshr_b32 {sG}, {sX8}, 1'); I(f's_lshl_b32 {sG}, {sG}, 2'); I(f's_lshr_b32 {sT[0]}, {sY}, 3'); I(f's_add_u32 {sG}, {sG}, {sT[0]}')
            I(f's_and_b32 {sM}, s2, 1'); I(f's_lshl_b32 {sM}, {sM}, 3'); I(f's_and_b32 {sT[0]}, {sY}, 7'); I(f's_add_u32 {sM}, {sM}, {sT[0]}')
        else:
            I(f's_lshl_b32 {sG}, {sX8}, 1'); I(f's_lshr_b32 {sT[0]}, {sY}, 4'); I(f's_add_u32 {sG}, {sG}, {sT[0]}'); I(f's_and_b32 {sM}, {sY}, 15')
        I(f's_lshl4_add_u32 {sBLK}, {sG}, {sM}'); I(f's_lshr_b32 {sS1}, {sBLK}, 1')
        I(f'v_mul_u32_u24 v{vF}, 163840, v{vAd+1}'); I(f'v_mul_u32_u24 v{vF+1}, 80, {vN}')
        if self.opt.get('xt'): I(f'v_min_u32 v{vF+2}, 9, {vN}'); I(f'v_lshl_add_u32 v{vF+2}, v{vF+2}, 7, v{vF}')
        I(f'v_add_u32 v{vF}, v{vF}, v{vF+1}')
        I(f's_mul_i32 {sP[12]}, {sS1}, 1280'); I('s_mov_b32 s6, 2621440'); I('s_mov_b32 s7, 0x20000')
        I(f's_mov_b32 s30, {WS_SIZE}'); I(f's_mov_b32 s31, 0x20000'); I(f's_mov_b32 {sP[13]}, {WS_EP}')
        self.wait_lg0()
        if self.stamps and self.opt.get('fine'): I('s_memrealtime s[92:93]'); I('s_memtime s[94:95]')
        if self.opt.get('xt'): I(f'buffer_load_dword v{vF+3}, v{vF+2}, {X}, {sP[12]} offen nt')
        for e in range(5): I(f'buffer_load_dwordx4 {vr(vX + 4*e, 4)}, v{vF}, {X}, {sP[12]} offen offset:{16*e}')
        I(f'buffer_load_dword {vTag}, off, {WS}, {sP[13]} sc1')
        I('v_lshrrev_b32 v6, 6, v0'); I(f'v_and_b32 {vLane}, 63, v0')
        I(f'v_readfirstlane_b32 {sW}, v6')
        I('s_add_u32 s32, s60, (L_tab - L_pc)'); I('s_addc_u32 s33, s61, 0')
        I(f's_mov_b32 s34, {len(TBLOB)}'); I('s_mov_b32 s35, 0x20000')
        I(f'v_lshlrev_b32 {vL16}, 4, {vLane}'); I(f's_and_b32 {sHH}, {sY}, 1'); I(f's_mov_b32 {sCNT}, 0x20000')
        self.stamp('entry'); self.stamp('kernarg', fine=True)
        for srd, n in ((8, 1314816), (12, 1314816), (16, 2211840), (20, 2211840), (24, 2621440)):
            I(f's_mov_b32 s{srd+2}, {n}'); I(f's_mov_b32 s{srd+3}, 0x20000')
        if self.opt.get('no_w1'): I('s_mov_b32 s18, 0')
        if self.opt.get('no_W'): I('s_mov_b32 s10, 0'); I('s_mov_b32 s14, 0'); I('s_mov_b32 s22, 0')
        I(f's_mul_i32 s86, {sW}, 7168'); I(f's_lshl_b32 s63, {sW}, 13')
        I(f's_and_b32 {sT[0]}, {sW}, 1'); I(f's_lshl1_add_u32 {sT[7]}, {sHH}, {sT[0]}')
        I(f's_lshl_b32 {sP[14]}, {sT[7]}, 13'); I(f's_add_u32 {sP[15]}, {sP[14]}, 4096')
        I(f's_lshl_b32 {sP[7]}, {sT[7]}, 10'); I(f's_add_u32 {sP[7]}, {sP[7]}, {TOFF["TW"]}'); I(f'v_lshlrev_b32 v{vAd}, 6, {vN}')
        self.b1 = [[f'buffer_load_dwordx4 {ar(aB1 + 4*f, 4)}, {vL16}, {TAB}, {sP[14 + (f >> 2)]} offen offset:{(f & 3)*1024}'] for f in (0, 4, 1, 5, 2, 6, 3, 7)]
        self.tw = [f'buffer_load_dwordx4 {vr(vTW + 4*f, 4)}, v{vAd}, {TAB}, {sP[7]} offen offset:{16*f}' for f in range(4)]
        self.ad = [f's_mov_b32 s88, {TOFF["AD"]}', f'buffer_load_dwordx4 {vr(vW1A, 4)}, {vL16}, {TAB}, s88 offen', f'buffer_load_dwordx3 {vr(vW1A + 4, 3)}, {vL16}, {TAB}, s88 offen offset:1024']
        self.poC = [[f'buffer_store_dwordx4 {vr(vPo, 4)}, v{vWi}, {WS}, {sP[(10, 10, 12)[i]]} offen offset:{i*128} sc1'] for i in range(3)]
    def touch_addr(self):
        I = self.I; a = vWr
        I(f's_lshl2_add_u32 {sT[0]}, {sY}, {sW}'); I(f's_sub_u32 {sT[0]}, {sT[0]}, 80')
        I(f's_sub_u32 {sT[3]}, 16, {sX8}'); I(f's_cmp_eq_u32 {sX8}, 0'); I(f's_cselect_b32 {sT[3]}, 8, {sT[3]}')
        I(f's_sub_u32 {sT[3]}, {sT[3]}, {sX8}'); I(f's_mul_i32 {sT[3]}, {sT[3]}, 642')
        I(f'v_and_b32 v{a}, 7, v0'); I(f'v_min_u32 v{a}, 5, v{a}'); I(f'v_lshlrev_b32 v{a}, 7, v{a}'); I(f'v_bfe_u32 v{a+1}, v0, 3, 1'); I(f'v_mad_u32_u24 v{a}, v{a+1}, {sT[3]}, v{a}')
        I(f'v_min_u32 v{a+1}, 2, {vG}'); I(f'v_mul_u32_u24 v{a+1}, {16*642}, v{a+1}'); I(f'v_add_u32 v{a}, v{a}, v{a+1}')
        I(f's_mul_i32 {sP[16]}, {sT[0]}, 48'); I(f's_add_u32 {sP[16]}, {sP[16]}, {sX8}'); I(f's_mul_i32 {sP[16]}, {sP[16]}, 642')
        I(f's_lshl3_add_u32 {sP[17]}, {sT[0]}, {sX8}'); I(f's_mul_i32 {sP[17]}, {sP[17]}, {45*128}')
        I(f'v_min_u32 v{a+2}, 22, {vLane}'); I(f'v_lshlrev_b32 v{a+2}, 7, v{a+2}')
        return dict(w=[[f'buffer_load_ushort v{vJunk}, v{a}, {WR}, {sP[16]} offen']], v=[[f'buffer_load_ushort v{vJunk+1}, v{a}, {WI}, {sP[16]} offen']],
                    d=[[f'buffer_load_dword v{vFl+1}, v{a+2}, {W1}, {sP[17]} offen']], e=[[f'buffer_load_dword v{vFl+2}, v{a+2}, {W1}, {sP[17]} offen offset:{23*128}']])
    def touch_all(self):
        I = self.I; a = vWr + 4; u = sP[19]
        I(f's_lshl2_add_u32 {u}, {sY}, {sW}')
        I(f's_sub_u32 {sT[3]}, 16, {sX8}'); I(f's_cmp_eq_u32 {sX8}, 0'); I(f's_cselect_b32 {sT[3]}, 8, {sT[3]}')
        I(f's_sub_u32 {sT[3]}, {sT[3]}, {sX8}'); I(f's_mul_i32 {sT[3]}, {sT[3]}, 642')
        I(f'v_and_b32 v{a}, 7, v0'); I(f'v_min_u32 v{a}, 5, v{a}'); I(f'v_lshlrev_b32 v{a}, 7, v{a}'); I(f'v_bfe_u32 v{a+1}, v0, 3, 1'); I(f'v_mad_u32_u24 v{a}, v{a+1}, {sT[3]}, v{a}')
        I(f'v_bfe_u32 v{a+1}, v0, 4, 2'); I(f'v_lshl_add_u32 v{a}, v{a+1}, 28, v{a}')
        I(f's_lshl4_add_u32 {sP[4]}, {u}, {sX8}'); I(f's_mul_i32 {sP[4]}, {sP[4]}, 642')
        if not self.opt.get('rd', 1): return dict(x=[[f'buffer_load_ushort v{vJunk}, v{a}, {WR}, {sP[4]} offen']], y=[[f'buffer_load_ushort v{vJunk+1}, v{a}, {WI}, {sP[4]} offen']])
        I(f'v_min_u32 v{a+2}, 17, {vLane}'); I(f'v_lshlrev_b32 v{a+2}, 7, v{a+2}')
        I(f's_mul_i32 {sP[5]}, {sX8}, {7*40960}'); I(f's_mul_i32 {sT[3]}, {u}, {18*128}'); I(f's_add_u32 {sP[5]}, {sP[5]}, {sT[3]}')
        I(f'v_and_b32 v{a+3}, 7, v0'); I(f'v_min_u32 v{a+3}, 6, v{a+3}'); I(f'v_lshrrev_b32 v{a+1}, 3, {vLane}'); I(f'v_min_u32 v{a+1}, 4, v{a+1}')
        if self.opt.get('shalf'):
            I(f's_lshr_b32 {sT[3]}, {sX8}, 2'); I(f's_xor_b32 {sT[3]}, {sT[3]}, {u}'); I(f's_and_b32 {sT[3]}, {sT[3]}, 1')
            I(f'v_lshl_add_u32 v{a+1}, v{a+1}, 1, {sT[3]}'); I(f's_sub_u32 {sT[3]}, 4, {sT[3]}'); I(f'v_min_u32 v{a+1}, {sT[3]}, v{a+1}')
        I(f'v_mul_u32_u24 v{a+1}, 3456, v{a+1}'); I(f'v_lshl_add_u32 v{a+3}, v{a+3}, 7, v{a+1}')
        I(f's_and_b32 {sT[3]}, s2, 3'); I(f's_mul_i32 {sT[3]}, {sT[3]}, 896'); I(f's_mul_i32 {sP[6]}, {u}, {5*3456}'); I(f's_add_u32 {sP[6]}, {sP[6]}, {sT[3]}')
        return dict(x=[[f'buffer_load_ushort v{vJunk}, v{a}, {WR}, {sP[4]} offen']], y=[[f'buffer_load_ushort v{vJunk+1}, v{a}, {WI}, {sP[4]} offen']],
                    r=[[f'buffer_load_dword v{vFl+1}, v{a+2}, {W2}, {sP[5]} offen']], s=[[f'buffer_load_dword v{vFl+2}, v{a+3}, {W1}, {sP[6]} offen']])
    def tile(self):
        I = self.I
        I(f's_sub_u32 {sT[3]}, 16, {sX8}'); I(f's_cmp_eq_u32 {sX8}, 0'); I(f's_cselect_b32 {sT[3]}, 8, {sT[3]}')
        I(f's_cmp_lt_u32 {sY}, 10'); I(f's_cselect_b32 {sTILE}, {sX8}, {sT[3]}'); I(f's_cselect_b32 {sT[4]}, 0, 10')
        I(f's_mul_i32 {sTILE}, {sTILE}, 10'); I(f's_add_u32 {sTILE}, {sTILE}, {sY}'); I(f's_sub_u32 {sTILE}, {sTILE}, {sT[4]}')
    def p1a(self, pre, per):
        I = self.I
        sRH = sP[1]
        vX = VW; vF = VW + 20; vTW = VW + 40; vA2 = VW + 56; vAd = VW + 64
        vAf = VW + 76; vAcc = VW + 124; vT = VW + 148
        self.sprinkle(pre, per)
        I(f's_mul_i32 {sBLK}, {sBLK}, {TS}')
        for i in range(4): I(f'v_mov_b32 v{vPo+i}, -1')
        I(f'v_lshrrev_b32 {vG}, 4, {vLane}')
        I(f's_mov_b32 s44, {f32(math.cos(2*math.pi/5))}'); I(f's_mov_b32 s45, {f32(math.cos(4*math.pi/5))}')
        I(f's_mov_b32 s46, {f32(math.sin(2*math.pi/5))}'); I(f's_mov_b32 s47, {f32(math.sin(4*math.pi/5))}')
        I(f's_mov_b32 {sMASK}, 0xffff')
        aWr, aWrO, aRd, aRdO, aRw, aRr, aXc, aExW, aExR, aSt = [vAd + 2 + i for i in range(10)]
        I(f'v_and_b32 v{aWr}, 7, v0'); I(f'v_xor_b32 v{aWr}, v{vAd+1}, v{aWr}'); I(f'v_lshlrev_b32 v{aWr}, 4, v{aWr}')
        I(f'v_lshl_add_u32 v{aWr}, {vN}, 8, v{aWr}'); I(f'v_add_u32 v{aWr}, {L_XF}, v{aWr}'); I(f'v_xor_b32 v{aWrO}, 128, v{aWr}')
        I(f's_lshr_b32 {sRH}, {sW}, 1'); I(f's_lshl_b32 {sT[4]}, {sRH}, 3')
        I(f'v_lshrrev_b32 v{vT}, 2, {vN}'); I(f'v_lshlrev_b32 v{vT}, 1, v{vT}'); I(f'v_and_b32 v{vT+1}, 1, {vN}'); I(f'v_add3_u32 v{vT}, v{vT}, v{vT+1}, {sT[4]}')
        I(f'v_bfe_u32 v{vT+1}, {vN}, 1, 1'); I(f'v_lshlrev_b32 v{vT+2}, 3, v{vT+1}'); I(f'v_xor_b32 v{vT}, v{vT}, v{vT+2}'); I(f'v_xor_b32 v{vT}, v{vT}, {vG}')
        I(f'v_lshlrev_b32 v{vT}, 4, v{vT}'); I(f'v_lshl_add_u32 v{vT}, {vG}, 8, v{vT}'); I(f'v_lshl_add_u32 v{vT}, v{vT+1}, 12, v{vT}')
        I(f'v_add_u32 v{aRd}, {L_XF}, v{vT}'); I(f'v_xor_b32 v{aRdO}, 64, v{aRd}')
        I(f'v_cvt_f32_u32 v{vT}, {vN}'); I(f'v_mul_f32 v{vT}, {f32(1/2048.)}, v{vT}')
        I(f'v_lshlrev_b32 v{vT+1}, 8, {vG}'); I(f'v_add_u32 v{vT+1}, {sS1}, v{vT+1}'); I(f'v_cvt_f32_u32 v{vT+1}, v{vT+1}')
        for e in range(4):
            I(f'v_add_f32 v{vT+2}, {f32(128.0*((e & 1) + 8*(e >> 1)))}, v{vT+1}'); I(f'v_mul_f32 v{vT+2}, v{vT}, v{vT+2}')
            I(f'v_cos_f32 v{vT+3}, v{vT+2}'); I(f'v_sin_f32 v{vT+4}, v{vT+2}')
            I(f'v_cvt_pk_f16_f32 v{vA2+e}, v{vT+3}, v{vT+4}'); I(f'v_cvt_pk_f16_f32 v{vA2+4+e}, -v{vT+4}, v{vT+3}')
        I(f'v_lshlrev_b32 v{aRw}, 2, v{vAd+1}'); I(f'v_add_u32 v{aRw}, {L_R}, v{aRw}')
        I(f's_lshl_b32 {sT[4]}, {sRH}, 5'); I(f's_add_u32 {sT[4]}, {sT[4]}, {L_R}'); I(f'v_lshl_add_u32 v{aRr}, {vG}, 3, {sT[4]}')
        I(f's_lshl_b32 {sT[4]}, {sHH}, 5'); I(f's_add_u32 {sT[4]}, {sT[4]}, {L_R + 64}'); I(f'v_and_b32 v{vMu}, 7, v0'); I(f'v_lshl_add_u32 v{vMu}, v{vMu}, 2, {sT[4]}')
        I(f's_lshl_b32 {sT[4]}, {sHH}, 3'); I(f's_and_b32 {sT[5]}, {sW}, 1'); I(f's_lshl_b32 {sT[6]}, {sT[5]}, 2'); I(f's_xor_b32 {sT[4]}, {sT[4]}, {sT[6]}')
        I(f'v_xor_b32 v{aXc}, {vN}, {vG}'); I(f'v_xor_b32 v{aXc}, {sT[4]}, v{aXc}')
        I(f'v_lshlrev_b32 v{aXc}, 4, v{aXc}'); I(f'v_lshl_add_u32 v{aXc}, {vG}, 8, v{aXc}')
        I(f'v_lshrrev_b32 v{vT+1}, 3, {vN}'); I(f'v_lshl_add_u32 v{aXc}, v{vT+1}, 12, v{aXc}')
        I(f's_lshl_b32 {sT[4]}, {sW}, 10'); I(f's_add_u32 {sT[4]}, {sT[4]}, {L_XF}'); I(f'v_add_u32 v{aXc}, {sT[4]}, v{aXc}')
        I(f's_mul_i32 {sT[4]}, {sT[5]}, 5120'); I(f's_add_u32 {sT[4]}, {sT[4]}, {L_EX}'); I(f's_lshl_b32 {sP[2]}, {sT[5]}, 6')
        I(f's_lshl_b32 {sT[5]}, {sRH}, 3'); I(f's_add_u32 {sT[5]}, {sT[5]}, {sT[4]}'); I(f'v_add_u32 v{aExW}, {sT[5]}, {vL16}')
        I(f's_mul_i32 {sT[5]}, {sRH}, 3072'); I(f's_add_u32 {sT[5]}, {sT[5]}, {sT[4]}'); I(f'v_add_u32 v{aExR}, {sT[5]}, {vL16}')
        I(f'v_mul_u32_u24 v{aSt}, 2560, {vG}'); I(f'v_lshl_add_u32 v{aSt}, {vN}, 2, v{aSt}')
        I(f's_add_u32 {sP[2]}, {sP[2]}, {sBLK}'); I(f's_mul_i32 {sT[5]}, {sRH}, 384'); I(f's_add_u32 {sP[2]}, {sP[2]}, {sT[5]}')
        I(f's_and_b32 {sT[4]}, {sW}, 1'); I(f's_mul_i32 {sT[4]}, {sT[4]}, {5120 - 64}'); I(f's_add_u32 {sP[10]}, {sP[2]}, {sT[4]}'); I(f's_add_u32 {sP[10]}, {sP[10]}, {O_T2}')
        I(f's_lshl_b32 {sT[4]}, {sRH}, 26'); I(f's_add_u32 {sP[12]}, {sP[10]}, {sT[4]}')
        I(f'v_lshrrev_b32 v{vWi}, 3, {vLane}'); I(f'v_mul_u32_u24 v{vWi}, {640 - 128}, v{vWi}'); I(f'v_add_u32 v{vWi}, v{vWi}, {vL16}')
        I(f's_lshl1_add_u32 {sP[3]}, {sS1}, {sHH}'); I(f's_lshl2_add_u32 {sP[3]}, {sP[3]}, {sW}'); I(f's_lshl_b32 {sP[3]}, {sP[3]}, 6'); I(f's_add_u32 {sP[3]}, {sP[3]}, {WS_FLA}')
        I(f's_mul_i32 s85, {sW}, {160*3456}'); I(f's_mul_i32 {sT[5]}, {sM}, 224'); I(f's_add_u32 s85, s85, {sT[5]}');
        I(f'v_mov_b32 v{vT+2}, 0x3f803f80'); I(f'v_lshrrev_b32 v211, 3, {vLane}'); I(f'v_mul_u32_u24 v211, {FREP - 64}, v211'); I(f'v_lshl_add_u32 v211, {vLane}, 3, v211')
        self.pre_rest = self.bgq; self.bgq = None
    def p1b(self, bulk, per):
        I = self.I
        sRH = sP[1]
        vX = VW; vF = VW + 20; vTW = VW + 40; vA2 = VW + 56; vAd = VW + 64
        vAf = VW + 76; vAcc = VW + 124; vT = VW + 148
        aWr, aWrO, aRd, aRdO, aRw, aRr, aXc, aExW, aExR, aSt = [vAd + 2 + i for i in range(10)]
        vs, vq, vone = f'v{vT}', f'v{vT+1}', f'v{vT+2}'
        I(f'v_cmp_gt_u32 vcc, 8, {vN}')
        self.stamp('prework', fine=True)
        self.stamp('x arrived', wait=vX + 19)
        self.wait_regs([vX + 19])
        self.allow_bg_cond = True
        self.sprinkle(bulk, per)
        for c in range(5):
            for e in range(4):
                a = vX + (10*e + c)//2; b = vX + (10*e + 5 + c)//2
                if c % 2 == 0: I(f'v_bfi_b32 v{vF + 4*c + e}, {sMASK}, v{a}, v{b}')
                else: I(f'v_alignbit_b32 v{vF + 4*c + e}, v{b}, v{a}, 16')
            I(f'ds_write_b128 v{aWrO if c & 1 else aWr}, {vr(vF + 4*c, 4)} offset:{c*4096}')
            for e in range(4*c, 4*c + 4):
                I(f'v_dot2_f32_bf16 {vs}, v{vX+e}, {vone}, {vs if e else 0}'); I(f'v_dot2_f32_bf16 {vq}, v{vX+e}, v{vX+e}, {vq if e else 0}')
        I(f'v_readfirstlane_b32 s62, {vTag}')
        self.barrier()
        self.stamp('p1 barA', fine=True)
        for ks in range(4):
            for tau in range(3):
                I(f'ds_read_b128 {vr(vAf + 4*(ks*3 + tau), 4)}, v{aRdO if ks & 1 else aRd} offset:{tau*8192 + ks*1024}')
        I('s_mul_i32 s62, s62, 0x9E3779B1'); I('s_add_u32 s62, s62, 0x7F4A7C15'); I(f'v_mov_b32 {vTag}, s62'); I(f'v_mov_b32 v{vWr+8}, s62'); I(f'v_mov_b32 v{vWr+9}, s62')
        fill = []
        for sh in (8, 4, 2, 1):
            fill += [f'v_add_f32_dpp {vs}, {vs}, {vs} row_ror:{sh} row_mask:0xf bank_mask:0xf', f'v_add_f32_dpp {vq}, {vq}, {vq} row_ror:{sh} row_mask:0xf bank_mask:0xf']
        fill += self.finish_stats(vs, vq, 1.0/(math.sqrt(640.0)*4)) + [f'ds_write_b32 v{aRw}, {vq}', f'ds_write_b32 v{aRw}, {vs} offset:64']
        fill += [f'ds_read_b128 {vr(vXR + 4*tau, 4)}, v{aXc} offset:{tau*8192}' for tau in range(3)]
        mf = []
        for ks in range(4):
            for tau in range(3):
                for p in range(2):
                    d = vr(vAcc + 4*(tau*2 + p), 4)
                    mf.append(f'v_mfma_f32_16x16x32_bf16 {d}, {vr(vAf + 4*(ks*3 + tau), 4)}, {ar(aB1 + 4*(p*4 + ks), 4)}, {"0" if ks == 0 else d}')
        self.weave(mf, fill, per=2)
        self.barrier()
        self.stamp('p1 barB', fine=True)
        vR = vAd
        I(f'ds_read_b64 {vr(vR, 2)}, v{aRr}'); I(f'ds_read_b32 v{vMu}, v{vMu}')
        for i in range(4): I(f'v_cndmask_b32 v{vXR+8+i}, 0, v{vXR+8+i}, vcc')
        Vr = [vAcc + 4*((c >> 1)*2 + 0) + 2*(c & 1) for c in range(5)]
        Vi = [vAcc + 4*((c >> 1)*2 + 1) + 2*(c & 1) for c in range(5)]
        pool = [vX + 2*i for i in range(20)] + [vAf + 2*i for i in range(24)]
        zr = [Vr[0]] + [pool.pop(0) for _ in range(4)]; zi = [Vi[0]] + [pool.pop(0) for _ in range(4)]
        for c in range(1, 5):
            t1, t2, t3 = self.bc(vTW + c - 1), self.bc(vTW + 4 + c - 1), self.bc(vTW + 8 + c - 1)
            self.pk('mul', zr[c], Vr[c], t1[0], bsel=t1[1]); self.pk('mul', zi[c], Vi[c], t3[0], bsel=t3[1])
            self.pk('fma', zr[c], Vi[c], t2[0], zr[c], bsel=t2[1]); self.pk('fma', zi[c], Vr[c], t2[0], zi[c], bsel=t2[1], neg_b=True)
        u0, u1, u2, v1, v2 = self.dft5_half(zr, [pool.pop(0) for _ in range(9)])
        U0, U1, U2, V1, V2 = self.dft5_half(zi, [pool.pop(0) for _ in range(9)])
        mu = self.bc(vTW + 12)
        Xr = [pool.pop(0) for _ in range(5)]; Xi = [U0] + [pool.pop(0) for _ in range(4)]
        fm = lambda d, a, c, neg_c=False: self.pk('fma', d, a, mu[0], c, bsel=mu[1], neg_c=neg_c)
        comb = [lambda: self.pk('mul', Xr[0], u0, mu[0], bsel=mu[1]),
                lambda: (fm(Xr[1], V1, u1), fm(Xi[1], U1, v1, True)), lambda: (fm(Xr[2], V2, u2), fm(Xi[2], U2, v2, True)),
                lambda: (fm(Xr[3], u2, V2, True), fm(Xi[3], v2, U2)), lambda: (fm(Xr[4], u1, V1, True), fm(Xi[4], v1, U1))]
        for m5 in range(5):
            comb[m5]()
            self.pk('mul', Xr[m5], Xr[m5], vR); self.pk('mul', Xi[m5], Xi[m5], vR)
            d = vT + 2*m5
            I(f'v_cvt_pk_f16_f32 v{d}, v{Xr[m5]}, v{Xi[m5]}'); I(f'v_cvt_pk_f16_f32 v{d+1}, v{Xr[m5]+1}, v{Xi[m5]+1}')
            I(f'ds_write_b64 v{aExW}, {vr(d, 2)} offset:{m5*1024}')
        self.stamp('p1 valu', fine=True)
        self.barrier()
        vB = vX; vO = vX + 12; vP = vAf
        for sl in range(3): I(f'ds_read_b128 {vr(vB + 4*sl, 4)}, v{aExR} offset:{sl*1024}')
        rest = self.bgq; self.bgq = None
        for sl in range(3):
            for p in range(2):
                I(f'v_mfma_f32_16x16x32_f16 {vr(vO + 8*sl + 4*p, 4)}, {vr(vA2 + 4*p, 4)}, {vr(vB + 4*sl, 4)}, 0')
        for sl in range(3):
            if sl == 2:
                snap = self.cond_begin(); L = self.newlabel('Lp1')
                I(f's_cmp_eq_u32 {sRH}, 1'); I(f's_cbranch_scc1 {L}')
            for i in range(4):
                I(f'v_cvt_pk_f16_f32 v{vP + 4*sl + i}, v{vO + 8*sl + i}, v{vO + 8*sl + 4 + i}')
                I(f'buffer_store_dword v{vP + 4*sl + i}, v{aSt}, {WS}, {sP[2]} offen offset:{sl*128 + i*640} sc1')
            if sl == 2: self.cond_end(snap); self.label(L)
        self.stamp('p1 end')
        self.toks.pop(self.poC[-1][0])
        self.wait_vm0(True)
        I(f'buffer_store_dwordx2 {vr(vWr+8, 2)}, v211, {WS}, {sP[3]} offen sc1')
        for it in rest:
            for x in it: I(x)

    def frag_items(self, name, areg, sbase, stmp):
        return [([f's_add_u32 {stmp}, {sbase}, {TOFF[name] + f*1024}'] if f % 4 == 0 else []) +
                [f'buffer_load_dwordx4 {ar(areg + 4*f, 4)}, {vL16}, {TAB}, {stmp} offen offset:{(f & 3)*1024}'] for f in range(8)]
    def p3_table_items(self, t, s0, s1):
        L = self.frag_items('A3', aA3, s0, s1)
        L.append([f's_lshl_b32 {s1}, {sW}, 10', f's_add_u32 {s1}, {s1}, {TOFF["TW"]}', f'v_lshlrev_b32 v{t}, 6, {vN}'] +
                 [f'buffer_load_dwordx4 {vr(vTW3 + 4*f, 4)}, v{t}, {TAB}, {s1} offen offset:{16*f}' for f in range(4)])
        return L
    def dft32(self, inv, t):
        I = self.I
        I(f'v_and_b32 v{t}, 31, {vLane}'); I(f'v_lshrrev_b32 v{t+1}, 5, {vLane}')
        if inv: I(f'v_lshl_add_u32 v{t}, v{t}, 2, {sW}'); I(f'v_lshlrev_b32 v{t+1}, 2, v{t+1}')
        else: I(f'v_lshl_add_u32 v{t+1}, v{t+1}, 4, {sW}')
        I(f'v_cvt_f32_u32 v{t}, v{t}'); I(f'v_cvt_f32_u32 v{t+1}, v{t+1}'); I(f'v_mul_f32 v{t}, {f32(1/128.)}, v{t}'); I(f'v_mul_f32 v{t+1}, v{t}, v{t+1}')
        cv = 'v_cvt_pk_bf16_f32' if inv else 'v_cvt_pk_f16_f32'; base = aI2 if inv else aF2
        for i0 in range(0, 16, 2):
            for j in range(2):
                i = i0 + j; k = (8*(i >> 2) + (i & 3))*(1 if inv else 4); r = t + 2 + 3*j
                I(f'v_fmamk_f32 v{r}, v{t}, {f32(float(k))}, v{t+1}'); I(f'v_cos_f32 v{r+1}, v{r}'); I(f'v_sin_f32 v{r+2}, v{r}')
            for j in range(2):
                r = t + 2 + 3*j; s0, s1 = ('-', '') if inv else ('', '-')
                I(f'{cv} v{r}, v{r+1}, {s0}v{r+2}'); I(f'{cv} v{r+1}, {s1}v{r+2}, v{r+1}')
            for j in range(2):
                r = t + 2 + 3*j
                I(f'v_accvgpr_write_b32 a{base + i0 + j}, v{r}'); I(f'v_accvgpr_write_b32 a{base + 16 + i0 + j}, v{r+1}')
    def p3_consts(self):
        I = self.I; t = 196
        sc = 2/math.sqrt(640.0)/4/128
        I(f'v_lshrrev_b32 v{t+1}, 2, {vN}'); I(f'v_and_b32 v{t+2}, 1, {vN}'); I(f'v_lshl_add_u32 v{t+1}, v{t+1}, 1, v{t+2}')
        I(f's_lshl_b32 {sT[0]}, {sHH}, 10'); I(f's_add_u32 {sT[0]}, {sT[0]}, {sS1}')
        I(f'v_lshlrev_b32 v{t+1}, 7, v{t+1}'); I(f'v_add_u32 v{t+1}, {sT[0]}, v{t+1}'); I(f'v_cvt_f32_u32 v{t+1}, v{t+1}'); I(f'v_mul_f32 v{t+1}, {f32(-1/2048.)}, v{t+1}')
        I(f'v_bfe_u32 v{t+2}, {vN}, 1, 1'); I(f'v_cvt_f32_u32 v{t+2}, v{t+2}'); I(f'v_mul_f32 v{t+2}, {f32(0.25)}, v{t+2}')
        I(f'v_lshlrev_b32 v{t+3}, 2, {vG}'); I(f'v_cvt_f32_u32 v{t+3}, v{t+3}')
        for e in range(4):
            I(f'v_add_f32 v{t+4}, {f32(float(e))}, v{t+3}'); I(f'v_fma_f32 v{t+4}, v{t+4}, v{t+1}, v{t+2}')
            I(f'v_cos_f32 v{t+5}, v{t+4}'); I(f'v_sin_f32 v{t+6}, v{t+4}')
            I(f'v_mul_f32 v{t+5}, {f32(sc)}, v{t+5}'); I(f'v_mul_f32 v{t+6}, {f32(sc)}, v{t+6}')
            I(f'v_cvt_pk_bf16_f32 v{vA3+e}, v{t+5}, v{t+6}')

    def flag_off(self, base, idx, dst):
        self.I(f's_lshl_b32 {dst}, {idx}, 7'); self.I(f's_add_u32 {dst}, {dst}, {base}')
    def flag_store(self, soff, voff):
        I = self.I; self.inbg = True
        snap = self.cond_begin(); L = self.newlabel('Lsig')
        I(f's_cmp_lg_u32 {sW}, 0'); I(f's_cbranch_scc1 {L}')
        I(f'buffer_store_dwordx2 {vr(vWr+8, 2)}, v211, {WS}, {soff} offen sc1')
        self.cond_end(snap); self.label(L); self.inbg = False
    def flag_load(self, kind, soff, issue=True):
        I = self.I
        if kind == 'A':
            I(f's_and_b32 {soff}, {sTILE}, 1'); I(f's_lshl1_add_u32 {soff}, {sW}, {soff}'); I(f's_lshl_b32 {soff}, {soff}, 8'); I(f's_add_u32 {soff}, {soff}, {WS_FLA}')
            I(f's_and_b32 {sT[0]}, s89, 0x100'); I(f's_lshr_b32 {sT[0]}, {sT[0]}, 1'); I(f's_add_u32 {soff}, {soff}, {sT[0]}')
            I(f'v_lshrrev_b32 v7, 1, {vLane}'); I('v_lshlrev_b32 v254, 11, v7'); I(f'v_and_b32 v7, 1, {vLane}'); I('v_lshl_add_u32 v254, v7, 6, v254')
        if kind == 'B':
            self.cb5(soff); I(f's_lshr_b32 {soff}, {soff}, 1'); I(f'v_lshrrev_b32 v254, 1, {vLane}'); I(f'v_lshl_add_u32 v254, v254, 2, {soff}')
            for _ in range(2): I(f'v_subrev_u32 v7, 12, v254'); I(f'v_min_u32 v254, v254, v7')
            I(f'v_and_b32 v7, 1, {vLane}'); I(f'v_lshl_add_u32 v254, v254, 3, v7'); I(f'v_lshl_add_u32 v254, {sW}, 1, v254')
            I(f's_mul_i32 {soff}, {sG}, 6'); I(f's_sub_u32 {soff}, {soff}, 14'); I(f'v_add_u32 v7, {soff}, {vLane}')
            I(f'v_cmp_gt_u32 vcc, 14, {vLane}'); I(f'v_cndmask_b32 v254, v7, v254, vcc'); I(f'v_add_u32 v254, {512 + 160}, v254')
            I(f's_lshl1_add_u32 {soff}, {sS1}, {sHH}'); I(f's_xor_b32 {soff}, {soff}, 1'); I(f'v_and_b32 v7, 3, {vLane}'); I(f'v_lshl_add_u32 v7, {soff}, 2, v7')
            I(f'v_lshlrev_b32 v254, 1, v254'); I(f'v_cmp_gt_u32 vcc, 20, {vLane}'); I(f'v_cndmask_b32 v254, v7, v254, vcc'); I(f'v_lshlrev_b32 v254, 6, v254'); I(f's_mov_b32 {soff}, {WS_FLA}')
        if kind == 'H':
            I(f's_mul_i32 {soff}, {sW}, {24*128}'); I(f's_add_u32 {soff}, {soff}, {WS_FLB + 160*128}'); I(f'v_min_u32 v7, 23, {vLane}'); I('v_lshlrev_b32 v254, 7, v7')
        I(f's_mul_i32 {sT[0]}, {sX8}, {FREP}'); I(f's_add_u32 {soff}, {soff}, {sT[0]}')
        ld = f'buffer_load_dword v{vFl}, v254, {WS}, {soff} offen sc1'
        if issue: I(ld)
        return ld
    def retry(self, loads, test, inline=True):
        I = self.I; br = test[-1]; test = test[:-1]
        Lf = self.newlabel('Lfix'); Lb = self.newlabel('Lok')
        inv = {'s_cbranch_vccnz': 's_cbranch_vccz', 's_cbranch_scc1': 's_cbranch_scc0'}[br]
        body = [f'{Lf}:', f'    s_add_i32 {sCNT}, {sCNT}, -1', f'    s_cmp_lt_i32 {sCNT}, 0', f'    s_cbranch_scc1 {Lb}'] + ['    ' + x for x in loads]
        g = Gen(); g.I('s_waitcnt vmcnt(0)')
        for x in test: g.I(x)
        g.I(f'{br} {Lf}')
        body += g.out
        def first():
            for x in test: I(x)
        first.items = list(test)
        def second():
            if inline:
                I(f'{inv} {Lb}'); self.out += body
            else:
                I(f'{br} {Lf}'); self.tail += body + [f'    s_branch {Lb}']
            self.label(Lb)
        return first, second
    def flag_check(self, ld):
        a, b = self.retry([ld], [f'v_cmp_ne_u32 vcc, s62, v{vFl}', 's_cbranch_vccnz'])
        a(); b()
    def max_test(self, regs, t):
        regs = list(regs); L = []
        if len(regs) == 2: L.append(f'v_max_u32 v{t}, v{regs[0]}, v{regs[1]}')
        else:
            L.append(f'v_max3_u32 v{t}, v{regs[0]}, v{regs[1]}, v{regs[2]}'); regs = regs[3:]
            while regs:
                L.append(f'v_max3_u32 v{t}, v{t}, v{regs[0]}, v{regs[1]}' if len(regs) > 1 else f'v_max_u32 v{t}, v{t}, v{regs[0]}'); regs = regs[2:]
        return L + [f'v_cmp_eq_u32 vcc, -1, v{t}', 's_cbranch_vccnz']

    def w_addr(self, t):
        I = self.I
        I(f's_mul_i32 {sT[0]}, {sTILE}, 6554'); I(f's_lshr_b32 {sT[0]}, {sT[0]}, 16')
        I(f's_mul_i32 {sT[1]}, {sT[0]}, 10'); I(f's_sub_u32 {sT[1]}, {sTILE}, {sT[1]}')
        I(f's_lshr_b32 {sT[2]}, {sT[1]}, 1'); I(f's_and_b32 {sT[3]}, {sT[1]}, 1')
        I(f's_lshl_b32 {sT[4]}, {sT[2]}, 7'); I(f's_lshl_b32 {sT[5]}, {sT[3]}, 5'); I(f's_add_u32 {sT[4]}, {sT[4]}, {sT[5]}')
        I(f's_sub_u32 {sT[5]}, {640 - 31}, {sT[4]}')
        I(f's_cmp_lt_u32 {sT[2]}, 3'); I(f's_cselect_b32 {sT[4]}, {sT[4]}, {sT[5]}'); I(f's_cselect_b32 {sT[5]}, 1, -1')
        I(f's_lshl_b32 {sT[4]}, {sT[4]}, 1')
        I(f's_lshl_b32 {sT[6]}, {sT[2]}, 2'); I(f's_lshr_b32 {sT[6]}, 0x31425, {sT[6]}'); I(f's_and_b32 {sT[6]}, {sT[6]}, 15'); I(f's_lshl_b32 {sT[6]}, {sT[6]}, 7')
        I(f's_mul_i32 {sT[7]}, {sT[0]}, {sT[5]}'); I(f's_lshl_b32 {sT[7]}, {sT[7]}, 1'); I(f's_add_u32 {sT[7]}, {sT[7]}, {sT[4]}'); I(f's_and_b32 s89, {sT[7]}, 15')
        I(f's_sub_u32 {sT[4]}, {sT[4]}, s89')
        I(f's_and_b32 {sT[7]}, {sT[5]}, 0x100'); I(f's_or_b32 s89, s89, {sT[7]}')
        I(f's_lshl_b32 {sT[7]}, {sT[0]}, 1'); I(f's_and_b32 {sT[7]}, {sT[7]}, 15'); I(f's_sub_u32 {sT[6]}, {sT[6]}, {sT[7]}')
        I(f's_lshl_b32 {sT[7]}, {sT[7]}, 16'); I(f's_or_b32 s89, s89, {sT[7]}')
        I(f's_xor_b32 {sT[7]}, {sT[3]}, 1'); I(f's_lshl_b32 {sT[7]}, {sT[7]}, 24'); I(f's_or_b32 s89, s89, {sT[7]}')
        I(f's_lshl_b32 {sT[3]}, {sT[3]}, 30'); I(f's_add_u32 {sT[6]}, {sT[6]}, {sT[3]}')
        I(f's_lshl_b32 {sT[7]}, {sW}, 7'); I(f's_add_u32 {sT[0]}, {sT[0]}, {sT[7]}')
        I(f's_movk_i32 {sT[1]}, 10923'); I(f's_movk_i32 {sT[2]}, 642');
        I(f'v_mov_b32 v{t+4}, {sT[5]}'); I(f'v_mov_b32 v{t+5}, {sT[6]}')
        for pt in range(3):
            I(f'v_add_u32 v{t}, {64*pt}, {vLane}'); I(f'v_mul_u32_u24 v{t+1}, {sT[1]}, v{t}'); I(f'v_lshrrev_b32 v{t+1}, 16, v{t+1}')
            I(f'v_mul_u32_u24 v{t+2}, 6, v{t+1}'); I(f'v_sub_u32 v{t}, v{t}, v{t+2}')
            I(f'v_lshrrev_b32 v{t+2}, 3, v{t+1}'); I(f'v_mul_u32_u24 v{t+2}, 24, v{t+2}'); I(f'v_add_u32 v{t+1}, v{t+1}, v{t+2}')
            I(f'v_lshl_add_u32 v{t+1}, v{t+1}, 4, {sT[0]}')
            I(f'v_cmp_eq_u32 vcc, 5, v{t}'); I(f'v_lshl_add_u32 v{t}, v{t}, 4, {sT[4]}')
            I(f'v_cndmask_b32 v{t+2}, v{t+4}, 1, vcc'); I(f'v_cndmask_b32 v{t}, v{t}, v{t+5}, vcc')
            I(f'v_mul_i32_i24 v{t+1}, v{t+1}, v{t+2}'); I(f'v_and_b32 v{t+1}, 0x7ff, v{t+1}'); I(f'v_mad_u32_u24 v{vWA+pt}, v{t+1}, {sT[2]}, v{t}')
        self.lastW = f'buffer_load_dwordx4 v{vWA+2}, {WI}, 0 offen lds'
        return [[f's_add_u32 m0, s86, {L_W + a*3072 + pt*1024}', f'buffer_load_dwordx4 v{vWA+pt}, {(WR, WI)[a]}, 0 offen lds'] for pt in range(3) for a in range(2)]
    def w_regs(self, t):
        I = self.I
        I(f's_and_b32 {sT[0]}, s89, 15'); I(f's_bfe_u32 {sT[1]}, s89, 0x10008'); I(f's_bfe_u32 {sT[2]}, s89, 0x40010'); I(f's_lshr_b32 {sT[3]}, s89, 24')
        I(f'v_and_b32 v{t}, 31, {vLane}'); I(f's_mul_i32 {sT[4]}, {sT[1]}, 31'); I(f'v_xor_b32 v{t+1}, {sT[4]}, v{t}')
        I(f'v_lshl_add_u32 v{t+1}, v{t+1}, 1, {sT[0]}')
        I(f's_add_u32 {sT[2]}, {sT[2]}, 80'); I(f'v_mov_b32 v{t+2}, {sT[2]}'); I(f's_lshl_b32 {sT[1]}, {sT[1]}, 31'); I(f'v_mov_b32 v{t+3}, {sT[1]}')
        I(f'v_cmp_gt_u32 vcc, {sT[3]}, v{t}')
        I(f'v_cndmask_b32 v{t+1}, v{t+1}, v{t+2}, vcc'); I(f'v_cndmask_b32 v{t+3}, v{t+3}, 0, vcc')
        I(f's_mul_i32 {sT[4]}, {sW}, 7168'); I(f's_add_u32 {sT[4]}, {sT[4]}, {L_W}')
        I(f'v_lshrrev_b32 v{t}, 5, {vLane}'); I(f'v_mul_u32_u24 v{t}, 384, v{t}'); I(f'v_add3_u32 v{t+1}, v{t+1}, v{t}, {sT[4]}')
        if self.opt.get('wlate', 0):
            for i in range(32): I(f'v_mov_b32 v{vWr + i}, 0')
            I(f'v_or_b32 v{t+2}, 1.0, v{t+3}')
            self.wrd = [f'ds_read_u16_d16_hi v{base + i}, v{t+1} offset:{arr*3072 + ((i >> 2)*8 + (i & 3))*96}' for arr, base in ((1, vWi), (0, vWr)) for i in range(16)]
            return
        self.wait_tok(self.toks[self.lastW])
        for arr, base in ((0, vWr), (1, vWi)):
            for half in range(2):
                for i in range(8*half, 8*half + 8): I(f'ds_read_u16 v{base + i}, v{t+1} offset:{arr*3072 + ((i >> 2)*8 + (i & 3))*96}')
            for i in range(16):
                I(f'v_lshl_add_u32 v{base + i}, v{base + i}, 16, v{t+3}' if arr else f'v_lshlrev_b32 v{base + i}, 16, v{base + i}')

    def p2(self):
        I = self.I
        vB = VW + 32; vGa = VW + 48; vE = VW + 80; vZ = VW + 112; vH = VW + 144; vAd = VW + 8
        I(f'v_lshrrev_b32 v{vAd}, 5, {vLane}'); I(f'v_mul_u32_u24 v{vAd}, {32*TS}, v{vAd}'); I(f'v_and_b32 v{vAd+1}, 31, {vLane}'); I(f'v_lshl_add_u32 v{vAd}, v{vAd+1}, 2, v{vAd}')
        I(f'v_add_u32 v{vAd+4}, {O_T2}, v{vAd}')
        I(f's_lshr_b32 {sT[2]}, {sTILE}, 1'); I(f's_lshl_b32 {sT[2]}, {sT[2]}, 7'); I(f's_and_b32 {sT[3]}, {sTILE}, 1'); I(f's_lshl1_add_u32 {sT[3]}, {sW}, {sT[3]}')
        I(f's_mul_i32 {sT[3]}, {sT[3]}, {TS}'); I(f's_add_u32 {sP[0]}, {sT[2]}, {sT[3]}')
        for i in range(1, 16): I(f's_add_u32 {sP[i]}, {sP[0]}, {(32*(i >> 2) + 4*(i & 3))*2*TS}')
        self.run(self.sel(self.opt.get('x1_bulk', 'aW')))
        self.p3_consts()
        if self.opt.get('wlate', 0) and self.opt.get('wr_early', 1): self.w_regs(VW)
        self.stamp('p2 pre', fine=True)
        I(self.ldA)
        if self.opt.get('f2_at', 0) == 1: self.dft32(False, vZ)
        if self.opt.get('i2_at', 1) == 1: self.dft32(True, vZ)
        self.flag_check(self.ldA)
        self.stamp('flagA')
        lds = [f'buffer_load_dword v{vB + i}, v{vAd}, {WS}, {sP[i]} offen sc1' for i in range(16)]
        for x in lds: I(x)
        I(f's_lshl_b32 {sT[3]}, {sW}, 13'); I(f's_add_u32 {sT[3]}, {sT[3]}, {L_G}'); I(f'v_add_u32 v{vAd+1}, {sT[3]}, {vL16}')
        I(f's_lshl_b32 {sT[3]}, {sW}, 10'); I(f's_add_u32 {sT[3]}, {sT[3]}, {L_G}'); I(f'v_add_u32 v{vAd+2}, {sT[3]}, {vL16}')
        I(f's_lshl_b32 {sT[3]}, {sW}, 12'); I(f's_add_u32 {sT[3]}, {sT[3]}, {L_H}'); I(f'v_add_u32 v{vAd+3}, {sT[3]}, {vL16}')
        if not (self.opt.get('wlate', 0) and self.opt.get('wr_early', 1)): self.w_regs(VW)
        self.ldB = self.flag_load('B', sP[18], False)
        if self.opt.get('i2_at', 1) == 2: self.dft32(True, vZ)
        I('s_barrier')
        self.stamp('p2 T', wait=vB + 15)
        self.sprinkle(self.sel(self.opt.get('p2_bulk', 'A012')), self.opt.get('p2_per1', 1))
        for tt in range(4):
            for p in range(2):
                d = vr(vGa + 16*p, 16)
                I(f'v_mfma_f32_32x32x16_f16 {d}, {ar(aF2 + 4*(p*4 + tt), 4)}, {vr(vB + 4*tt, 4)}, {"0" if tt == 0 else d}')
        self.bgper = 0
        for p in range(2):
            for gq in range(4): I(f'ds_write_b128 v{vAd+1}, {vr(vGa + 16*p + 4*gq, 4)} offset:{(p*4 + gq)*1024}')
        self.bg(self.opt.get('p2_n1', 4))
        if self.opt.get('wlate', 0) == 1:
            self.wait_tok(self.toks[self.lastW])
            for x in self.wrd: I(x)
        self.barrier()
        self.stamp('p2 bar1', fine=True)
        for c in (0, 2, 1, 3):
            for p in range(2): I(f'ds_read_b128 {vr(vE + 8*c + 4*p, 4)}, v{vAd+2} offset:{c*8192 + p*4096}')
        self.bgper = self.opt.get('p2_per2', 12)
        def bfly(src, dst, tmp, inv, after=None):
            s = lambda c, p, h: src + 8*c + 4*p + 2*h
            d = lambda m, p, h: dst + 8*m + 4*p + 2*h
            t_ = lambda i, p, h: tmp + 8*i + 4*p + 2*h
            for c in range(2):
                for p in range(2):
                    for h in range(2):
                        self.pk('add', t_(2*c, p, h), s(c, p, h), s(c + 2, p, h)); self.pk('add', t_(2*c + 1, p, h), s(c, p, h), s(c + 2, p, h), neg_b=True)
            a, b = (3, 1) if inv else (1, 3)
            for m in (0, 2, a, b):
                for h in range(2):
                    if m in (0, 2):
                        for p in range(2): self.pk('add', d(m, p, h), t_(0, p, h), t_(2, p, h), neg_b=(m == 2))
                    else:
                        self.pk('add', d(m, 0, h), t_(1, 0, h), t_(3, 1, h), neg_b=(m == b)); self.pk('add', d(m, 1, h), t_(1, 1, h), t_(3, 0, h), neg_b=(m == a))
                if after: after(m)
        if self.opt.get('wlate', 0) == 2:
            self.wait_lg0(); self.wait_tok(self.toks[self.lastW])
            q, per = self.bgq, self.bgper; self.bgq = None
            self.sprinkle([[x] for x in self.wrd], 1)
        bfly(vE, vZ, vGa, False)
        if self.opt.get('wlate', 0) == 2: self.bg(); self.bgq, self.bgper = q, per
        if self.opt.get('wlate', 0):
            for i in range(8): self.pk('mul', vWi + 2*i, vWi + 2*i, VW + 2, bsel=0)
        for m in range(4):
            for h in range(2):
                zr, zi = vZ + 8*m + 2*h, vZ + 8*m + 4 + 2*h; wr, wi = vWr + 4*m + 2*h, vWi + 4*m + 2*h
                dr, di = vE + 8*m + 2*h, vE + 8*m + 4 + 2*h
                self.pk('mul', dr, zr, wr); self.pk('mul', di, zi, wr)
                self.pk('fma', dr, zi, wi, dr, neg_b=True); self.pk('fma', di, zr, wi, di)
        def outH(c):
            for e in range(4): I(f'v_cvt_pk_bf16_f32 v{vH + 4*c + e}, v{vZ + 8*c + e}, v{vZ + 8*c + 4 + e}')
            I(f'ds_write_b128 v{vAd+2}, {vr(vH + 4*c, 4)} offset:{L_H - L_G + c*4096}')
        bfly(vE, vZ, vGa, True, outH)
        self.barrier()
        self.stamp('p2 bar2', fine=True)
        for tt in range(4): I(f'ds_read_b128 {vr(vB + 4*tt, 4)}, v{vAd+3} offset:{tt*1024}')
        I(self.ldB)
        self.bgper = 1
        for tt in range(4):
            for p in range(2):
                d = vr(vGa + 16*p, 16)
                I(f'v_mfma_f32_32x32x16_bf16 {d}, {ar(aI2 + 4*(p*4 + tt), 4)}, {vr(vB + 4*tt, 4)}, {"0" if tt == 0 else d}')
        print('p2 bulk left:', len(self.bgq)); self.bgper = 0
        for i in range(16):
            I(f'v_cvt_pk_bf16_f32 v{vH + i}, v{vGa + i}, v{vGa + 16 + i}')
            I(f'buffer_store_dword v{vH + i}, v{vAd+4}, {WS}, {sP[i]} offen sc1')
        self.stamp('p2 end', fine=True)
        self.flag_check(self.ldB)
        self.bg()
        self.run(self.sel(self.opt.get('x2_bulk', '34')))

    def repack_unit(self):
        I = self.I
        I(f's_mul_i32 {sT[2]}, {sW}, 12'); I(f's_add_u32 {sT[2]}, {sT[2]}, {sY}'); I(f's_sub_u32 {sT[2]}, {sT[2]}, 20')
        I(f's_mul_i32 {sT[3]}, {sX8}, 28'); I(f's_cmp_lt_u32 {sT[2]}, 28'); I(f's_cselect_b32 {sT[3]}, {sT[3]}, 224'); I(f's_add_u32 {sT[2]}, {sT[2]}, {sT[3]}')
        I(f's_lshr_b32 {sT[3]}, {sT[2]}, 2'); I(f's_and_b32 {sT[4]}, {sT[2]}, 3')
        I(f's_mul_i32 {sT[6]}, {sW}, 10240'); I(f's_add_u32 {sT[6]}, {sT[6]}, {L_RP}')
    def repack_addr(self, t):
        I = self.I
        self.repack_unit()
        I(f's_mul_i32 {sP[8]}, {sT[3]}, 40960'); I(f's_mul_i32 {sT[0]}, {sT[4]}, 320'); I(f's_add_u32 {sP[8]}, {sP[8]}, {sT[0]}')
        I(f's_add_u32 {sP[9]}, {sP[8]}, {16*1280}'); I(f's_movk_i32 {sT[0]}, 3277'); I(f's_mov_b32 {sP[11]}, {sT[6]}')
        for pt in range(5):
            I(f'v_add_u32 v{t}, {64*pt}, {vLane}'); I(f'v_mul_u32_u24 v{t+1}, {sT[0]}, v{t}'); I(f'v_lshrrev_b32 v{t+1}, 16, v{t+1}')
            I(f'v_mul_u32_u24 v{t+1}, {1280 - 320}, v{t+1}'); I(f'v_lshl_add_u32 v{vWA+pt}, v{t}, 4, v{t+1}')
        L = [[f's_add_u32 m0, {sP[11]}, {h*5120 + pt*1024}', f'buffer_load_dwordx4 v{vWA+pt}, {W2}, {sP[8+h]} offen lds'] for pt in range(5) for h in range(2)]
        self.lastR = L[-1][-1]
        return L
    def repack(self):
        I = self.I; t = VW + 10; vF = VW + 16
        self.repack_unit()
        snap = self.cond_begin(); L = self.newlabel('Lrp')
        I(f's_cmp_ge_u32 {sT[2]}, 224'); I(f's_cbranch_scc1 {L}')
        I(f's_mul_i32 {sT[0]}, {sT[3]}, 9363'); I(f's_lshr_b32 {sT[0]}, {sT[0]}, 16'); I(f's_mul_i32 {sT[0]}, {sT[0]}, 7'); I(f's_sub_u32 {sT[0]}, {sT[3]}, {sT[0]}')
        I(f's_cmp_eq_u32 {sT[0]}, 3'); I(f's_cselect_b32 {sT[0]}, {4*320}, 0'); I(f's_mul_i32 {sT[1]}, {sT[0]}, 3'); I(f's_sub_u32 {sT[1]}, {16*320}, {sT[1]}')
        I(f'v_lshrrev_b32 v{t}, 2, {vLane}'); I(f'v_mul_u32_u24 v{t}, 320, v{t}'); I(f'v_and_b32 v{t+1}, 3, {vLane}'); I(f'v_mul_u32_u24 v{t+1}, 40, v{t+1}')
        I(f'v_add3_u32 v{t}, v{t}, v{t+1}, {sT[6]}'); I(f'v_mad_u32_u24 v{t}, {vG}, {sT[0]}, v{t}'); I(f'v_add_u32 v{t+1}, {sT[1]}, v{t}')
        rk = sum(KORD.index(k) << (4*k) for k in range(14))
        I(f's_mul_i32 {sT[0]}, {sT[3]}, 4682'); I(f's_lshr_b32 {sT[0]}, {sT[0]}, 16'); I(f's_mul_i32 {sT[0]}, {sT[0]}, 14'); I(f's_sub_u32 {sT[1]}, {sT[3]}, {sT[0]}')
        I(f's_lshl_b32 {sT[1]}, {sT[1]}, 2'); I(f's_mov_b32 s58, {rk & 0xffffffff}'); I(f's_mov_b32 s59, {rk >> 32}'); I(f's_lshr_b64 {sPAIR}, {sPAIR}, {sT[1]}')
        I(f's_and_b32 s58, s58, 15'); I(f's_add_u32 {sT[3]}, {sT[0]}, s58')
        self.wait_tok(self.toks[self.lastR])
        I(f's_mul_i32 {sT[5]}, {sT[4]}, {2*286720}'); I(f's_mul_i32 {sT[6]}, {sT[3]}, 5120'); I(f's_add_u32 {sT[5]}, {sT[5]}, {sT[6]}'); I(f's_add_u32 {sT[5]}, {sT[5]}, {WS_W2}')
        for cb in range(2):
            for nt in range(5):
                for hf in range(2): I(f'ds_read_b64_tr_b16 {vr(vF + 4*(cb*5 + nt) + 2*hf, 2)}, v{t+hf} offset:{cb*160 + nt*8}')
        for cb in range(2):
            for nt in range(5):
                if nt in (0, 4): I(f's_add_u32 {sT[6]}, {sT[5]}, {cb*286720 + nt*1024}')
                I(f'buffer_store_dwordx4 {vr(vF + 4*(cb*5 + nt), 4)}, {vL16}, {WS}, {sT[6]} offen offset:{(nt & 3)*1024} sc1')
        self.cond_end(snap); self.label(L)
    def epoch(self):
        I = self.I
        snap = self.cond_begin(); L = self.newlabel('Lep')
        I(f's_lshl2_add_u32 {sT[0]}, s2, {sW}'); I(f's_cmp_lg_u32 {sT[0]}, 3'); I(f's_cbranch_scc1 {L}')
        I(f's_mov_b32 {sT[0]}, {WS_EP}'); I('s_mov_b64 exec, 1')
        I(f'buffer_store_dword {vTag}, off, {WS}, {sT[0]} sc1'); I('s_mov_b64 exec, -1')
        self.cond_end(snap); self.label(L)
    def h1_vaddr(self, a):
        I = self.I
        I(f'v_and_b32 v{a}, 1, {vG}'); I(f'v_mul_u32_u24 v{a}, 57344, v{a}'); I(f'v_lshrrev_b32 v7, 1, {vG}')
        I(f'v_lshl_add_u32 v{a}, v7, 8, v{a}'); I(f'v_lshl_add_u32 v{a}, {vN}, 4, v{a}')
    def h1_addr(self, a):
        I = self.I
        I(f's_mul_i32 {sT[2]}, {sG}, 458752'); I(f's_mul_i32 {sT[3]}, {sW}, 114688'); I(f's_add_u32 {sT[2]}, {sT[2]}, {sT[3]}')
        I(f's_lshr_b32 {sT[3]}, {sM}, 1'); I(f's_mul_i32 {sT[3]}, {sT[3]}, 7168'); I(f's_add_u32 {sT[2]}, {sT[2]}, {sT[3]}'); I(f's_add_u32 {sT[2]}, {sT[2]}, {WS_H1}')
        I(f's_lshl_b32 {sT[3]}, {sHH}, 12'); I(f's_add_u32 {sH1[0]}, {sT[3]}, {sT[2]}'); I(f's_add_u32 {sH1[1]}, {sH1[0]}, 57344')
        I(f's_lshl_b32 {sT[3]}, {sHH}, 9'); I(f's_add_u32 {sH1[2]}, {sT[3]}, {sT[2]}')
        self.h1_vaddr(a)
    def h1_store(self, reg, pr, mt, a):
        if pr == 3: return f'buffer_store_dwordx4 {vr(reg, 4)}, v{a}, {WS}, {sH1[2]} offen offset:3072 sc1'
        return f'buffer_store_dwordx4 {vr(reg, 4)}, {vL16}, {WS}, {sH1[mt]} offen offset:{pr*1024} sc1'
    def h1_poison(self, a):
        return [[self.h1_store(vPo, pr, mt, a)] for pr in range(3) for mt in range(2)] + [[self.h1_store(vPo, 3, 0, a)]]
    def w2_base(self):
        I = self.I
        self.cb5(sT[0]); I(f's_mul_i32 {sW2B}, {sT[0]}, 286720'); I(f's_mul_i32 {sT[0]}, {sW}, 71680'); I(f's_add_u32 {sW2B}, {sW2B}, {sT[0]}'); I(f's_add_u32 {sW2B}, {sW2B}, {WS_W2 + (0x4000000 if self.opt.get("no_w2") else 0)}')
    def cb5(self, d):
        I = self.I
        if self.opt.get('split2', 4) == 1: I(f's_and_b32 {d}, s2, 1'); I(f's_and_b32 {sT[1]}, {sY}, 3'); I(f's_lshl2_add_u32 {d}, {d}, {sT[1]}')
        else: I(f's_and_b32 {d}, {sM}, 7')
    def tile0(self, d):
        I = self.I
        if self.opt.get('split2', 4) == 1: I(f's_and_b32 {d}, {sY}, 4')
        else: I(f's_lshr_b32 {d}, {sM}, 1'); I(f's_and_b32 {d}, {d}, 4')
        I(f's_lshl3_add_u32 {d}, {sG}, {d}')
    def w1_touch(self):
        I = self.I; four = self.opt.get('split2', 4) == 4
        nl, nr, sh = (7, 8, 4) if four else (14, 4, 5)
        I(f'v_and_b32 v7, {64//nr - 1}, {vLane}'); I(f'v_min_u32 v7, {nl - 1}, v7'); I(f'v_lshrrev_b32 v{vWr}, {7 - sh}, {vLane}' if four else f'v_mov_b32 v{vWr}, {vG}')
        I(f'v_mul_u32_u24 v{vWr}, {5*3456}, v{vWr}'); I(f'v_lshl_add_u32 v{vWr}, v7, 7, v{vWr}')
        I(f's_lshl2_add_u32 {sT[0]}, {sY}, {sW}'); I(f's_and_b32 {sT[3]}, s2, {3 if four else 1}'); I(f's_mul_i32 {sT[3]}, {sT[3]}, {nl*128}')
        for r in range(2 if four else 4):
            I(f's_add_u32 {sT[1]}, {sT[0]}, {48*r - 80}'); I(f's_and_b32 {sT[2]}, {sT[1]}, {(1 << sh) - 1}'); I(f's_lshr_b32 {sT[1]}, {sT[1]}, {sh}')
            I(f's_cmp_gt_u32 {sT[1]}, 4'); I(f's_cselect_b32 {sT[1]}, 640, {sT[1]}')
            I(f's_mul_i32 {sT[2]}, {sT[2]}, {5*nr}'); I(f's_add_u32 {sT[1]}, {sT[1]}, {sT[2]}'); I(f's_mul_i32 {sT[1]}, {sT[1]}, 3456'); I(f's_add_u32 {sT[1]}, {sT[1]}, {sT[3]}')
            I(f'buffer_load_dword v{vWr + 1 + r}, v{vWr}, {W1}, {sT[1]} offen')
    def w2_touch(self):
        I = self.I
        I(f's_lshl2_add_u32 {sT[0]}, {sY}, {sW}'); I(f's_sub_u32 {sT[0]}, {sT[0]}, 80'); I(f's_and_b32 {sT[1]}, {sT[0]}, 15'); I(f's_lshr_b32 {sT[0]}, {sT[0]}, 4')
        I(f's_and_b32 {sT[2]}, s2, 1'); I(f's_lshl4_add_u32 {sT[1]}, {sT[2]}, {sT[1]}'); I(f's_mul_i32 {sT[1]}, {sT[1]}, 71680'); I(f's_lshl_b32 {sT[0]}, {sT[0]}, 13')
        I(f's_add_u32 {sT[0]}, {sT[0]}, {sT[1]}'); I(f'v_lshlrev_b32 v{vWA}, 7, {vLane}')
        for r in range(3):
            I(f's_add_u32 {sT[1]}, {sT[0]}, {WS_W2 + r*3*8192 + (0x4000000 if self.opt.get("no_w2") else 0)}')
            I(f'buffer_load_dword v{vWA + 1 + r}, v{vWA}, {WS}, {sT[1]} offen sc1')
    def run(self, items):
        for it in items:
            for x in it: self.I(x)
    def helper(self):
        I = self.I
        self.run(self.sel(self.opt.get('H_x1', 'aR')))
        self.p3_consts()
        if self.opt.get('h_sync'):
            I(f's_mov_b32 {sTILE}, {sY}'); I('s_mov_b32 s89, 0')
            for _ in range(self.opt['h_sync']): self.flag_check(self.flag_load('A', sP[18]))
        self.run(self.sel(self.opt.get('H_x2', '')))
        if self.opt.get('w1t', 2) == 1: self.w1_touch()
        self.stamp('flagA')
        self.repack()
        I(f's_sub_u32 {sT[0]}, s2, 160'); I(f's_mul_i32 {sT[4]}, {sT[0]}, 10923'); I(f's_lshr_b32 {sT[4]}, {sT[4]}, 16'); I(f's_mul_i32 {sT[1]}, {sT[4]}, 6'); I(f's_sub_u32 {sT[0]}, {sT[0]}, {sT[1]}')
        I(f's_lshl2_add_u32 {sT[0]}, {sT[0]}, {sW}'); I(f's_mul_i32 {sT[4]}, {sT[4]}, {16*TS}'); I(f's_add_u32 {sT[4]}, {sT[4]}, {O_LN}')
        for r in range(7):
            I(f's_add_u32 {sT[1]}, {sT[0]}, {24*r}'); I(f's_mul_i32 {sT[2]}, {sT[1]}, 6554'); I(f's_lshr_b32 {sT[2]}, {sT[2]}, 16')
            I(f's_mul_i32 {sT[2]}, {sT[2]}, {TS - 10240}'); I(f's_lshl_b32 {sT[3]}, {sT[1]}, 10'); I(f's_add_u32 {sT[2]}, {sT[2]}, {sT[3]}'); I(f's_add_u32 {sT[2]}, {sT[2]}, {sT[4]}')
            if r == 6: I(f's_cmp_lt_u32 {sT[1]}, 160'); I(f's_cselect_b32 {sT[2]}, {sT[2]}, {WS_SIZE}')
            I(f'buffer_store_dwordx4 {vr(vPo, 4)}, {vL16}, {WS}, {sT[2]} offen sc1')
        tok = self.vm[-1][0]
        if self.opt.get('w1t', 2) == 2: self.w1_touch()
        self.flag_off(WS_FLB, 's2', sP[0])
        self.wait_tok(tok); self.barrier()
        self.flag_store(sP[0], VW)
        self.stamp('p2 bar1', fine=True)
        self.run(self.w1_items([c for c in range(5) if c not in [int(c) for c in self.opt.get('H_x1', 'aR') + self.opt.get('H_x2', '') if c.isdigit()]]))
        if self.opt.get('w2touch', 0):
            self.flag_check(self.flag_load('H', sP[18])); I('s_barrier')
            self.stamp('p2 bar2', fine=True)
            self.w2_touch()
        if 'A' not in self.opt.get('H_p1', '') + self.opt.get('H_x1', ''): self.run(self.sel('A'))
        self.flag_check(self.flag_load('B', sP[18]))

    def p3_pre(self):
        I = self.I; vAd = VW
        I(f'v_mov_b32 v{vAd+8}, 0'); I(f'v_mov_b32 v{vAd+9}, 0'); I(f'v_mov_b32 v{vAd+10}, 0'); I(f'v_mov_b32 v{vAd+11}, 0')
        I(f'v_min_u32 v{vAd+7}, 143, v0'); I(f'v_lshlrev_b32 v{vAd+7}, 4, v{vAd+7}'); I(f'v_add_u32 v{vAd+7}, {L_V + 40*288}, v{vAd+7}')
        I(f'v_mul_u32_u24 v{vAd}, 2560, {vG}'); I(f'v_lshl_add_u32 v{vAd}, {vN}, 2, v{vAd}')
        I(f's_lshr_b32 {sT[2]}, {sW}, 1'); I(f's_lshl1_add_u32 {sT[2]}, {sS1}, {sT[2]}'); I(f's_mul_i32 {sT[2]}, {sT[2]}, {TS}')
        I(f's_and_b32 {sT[3]}, {sW}, 1'); I(f's_lshl_b32 {sT[3]}, {sT[3]}, 6'); I(f's_add_u32 {sP[0]}, {sT[2]}, {sT[3]}'); I(f's_add_u32 {sP[0]}, {sP[0]}, {O_T2}')
        self.w2_base()
        self.barrier()
        I(f'ds_write_b128 v{vAd+7}, {vr(vAd+8, 4)}')
    def p3_pre2(self):
        I = self.I; vAd = VW
        I(f'v_mul_u32_u24 v{vAd+1}, 576, {vG}'); I(f'v_lshl_add_u32 v{vAd+1}, {vN}, 2, v{vAd+1}')
        I(f's_lshl_b32 {sT[4]}, {sW}, 6'); I(f's_add_u32 {sT[4]}, {sT[4]}, {L_V}'); I(f'v_add_u32 v{vAd+1}, {sT[4]}, v{vAd+1}')
        I(f'v_mul_u32_u24 v{vAd+2}, 288, {vN}'); I(f'v_lshl_add_u32 v{vAd+2}, {vG}, 4, v{vAd+2}'); I(f'v_add_u32 v{vAd+2}, {L_V}, v{vAd+2}')
        I(f'v_and_b32 v{vAd+4}, 7, {vN}'); I(f'v_lshlrev_b32 v{vAd+4}, 5, v{vAd+4}'); I(f'v_add_u32 v{vAd+4}, {L_ST}, v{vAd+4}')
        I(f's_lshl_b32 {sT[4]}, {sW}, 3'); I(f'v_add_u32 v{vAd+3}, {sT[4]}, v{vAd+4}')
        I(f'v_and_b32 v{vAd+5}, 7, {vN}'); I(f'v_lshlrev_b32 v{vAd+5}, 4, v{vAd+5}'); I(f'v_lshl_add_u32 v{vAd+5}, {vG}, 7, v{vAd+5}')
        I(f'v_lshrrev_b32 v{vAd+7}, 3, {vN}'); I(f'v_lshl_add_u32 v{vAd+6}, v{vAd+7}, 30, v{vAd+5}')
        I(f's_mov_b32 {sT[4]}, {TS}'); I(f'v_mad_u32_u24 v227, v{vAd+7}, {sT[4]}, v{vAd+5}'); I(f'v_add_u32 v228, {2*TS}, v227')
        I(f'v_lshl_add_u32 v{vAd+5}, v{vAd+7}, 11, v{vAd+5}')
        I(f's_lshl_b32 {sT[5]}, {sW}, 9'); I(f's_add_u32 {sT[4]}, {sBLK}, {sT[5]}')
        for tau in range(3): I(f's_add_u32 {sP[1+tau]}, {sT[4]}, {O_LN + tau*4096}')
        vXf = VW + 12
        for i in range(12):
            I(f'v_lshlrev_b32 v{vXf + 2*i}, 16, v{vXR + i}'); I(f'v_and_b32 v{vXf + 2*i + 1}, 0xffff0000, v{vXR + i}')
        I(f'v_mov_b32 v{vAd+7}, 0x3f803f80')
        I(f'v_cvt_pk_bf16_f32 v{vMu}, -v{vMu}, -v{vMu}'); I(f'v_lshlrev_b32 v{vMu}, 16, v{vMu}')
    def p3_pre3(self):
        I = self.I
        I(f'v_lshrrev_b32 v224, 2, {vLane}'); I(f'v_mul_u32_u24 v224, 224, v224'); I(f'v_and_b32 v225, 3, {vLane}'); I(f'v_lshl_add_u32 v224, v225, 3, v224')
        I(f's_xor_b32 {sT[2]}, {sHH}, 1'); I(f's_mul_i32 {sT[2]}, {sT[2]}, 192'); I(f'v_add_u32 v252, {sT[2]}, v224')
        I(f's_lshl_b32 {sT[2]}, {sHH}, 5'); I(f'v_add_u32 v224, {sT[2]}, v224')
        for i in (1, 2): I(f'v_add_u32 v{224+i}, {i*57344}, v224'); I(f'v_add_u32 v{252+i}, {i*57344}, v252')
        I(f's_lshl2_add_u32 {sT[2]}, {sG}, {sW}'); I(f's_mul_i32 {sT[2]}, {sT[2]}, {4*TS}')
        for i in range(3): I(f's_add_u32 {sP[4+i]}, {sT[2]}, {O_LN + i*4096 + (0x4000000 if self.opt.get("no_ln") and i < 2 else 0)}')
        self.h1_addr(229)
        self.p5_offsets((1, 2, 3))
    def p5_offsets(self, mus):
        I = self.I
        self.tile0(sT[5]); I(f's_mul_i32 {sT[3]}, {sW}, 14336')
        for mu in mus:
            I(f's_add_u32 {sT[2]}, {sW}, {mu}'); I(f's_and_b32 {sT[2]}, {sT[2]}, 3'); I(f's_add_u32 {sT[2]}, {sT[2]}, {sT[5]}'); I(f's_mul_i32 {sT[2]}, {sT[2]}, 57344'); I(f's_add_u32 {sT[2]}, {sT[2]}, {sT[3]}')
            for q in range(4): I(f's_add_u32 {self.sH(mu, q)}, {sT[2]}, {WS_H1 + q*4096 + (0x4000000 if self.opt.get("no_h1") else 0)}')
    def sH(self, mu, q): return sP[4 + 4*mu + q] if mu else sP[q]
    def p3(self):
        I = self.I; vAd = VW; vXf = VW + 12; vB = VW + 36; vZ = VW + 56; vP = VW + 76
        lds = [f'buffer_load_dword v{vB + 4*m5 + i}, v{vAd}, {WS}, {sP[0]} offen offset:{m5*128 + i*640} sc1' for m5 in (2, 3, 1, 4, 0) for i in range(4)]
        self.p3_pre2()
        for x in lds: I(x)
        self.p3_pre3()
        a, b = self.retry(lds, self.max_test([vB + 4*m5 + i for m5 in (2, 3, 1, 4, 0) for i in range(4)], vZ)); a(); b()
        self.stamp('p3 T')
        self.sprinkle(self.w2_items(self.opt.get('w2_p3', 24)), self.opt.get('p3_per', 6))
        for m5 in (2, 3, 1, 4, 0):
            I(f'v_mfma_f32_16x16x32_bf16 {vr(vZ + 4*m5, 4)}, {vr(vA3, 4)}, {vr(vB + 4*m5, 4)}, 0')
        Zr = [vZ + 4*m for m in range(5)]; Zi = [vZ + 4*m + 2 for m in range(5)]
        pool = [vP + 2*i for i in range(48)]
        mu = self.bc(vTW3 + 12); nu = self.bc(vTW3 + 13)
        u0, U0, u1, V1, U1, v1, u2, V2, U2, v2 = [pool.pop(0) for _ in range(10)]
        fm = lambda d, a, c, neg_c=False: self.pk('fma', d, a, mu[0], c, bsel=mu[1], neg_c=neg_c)
        fm(u2, Zr[3], Zr[2]); fm(V2, Zr[2], Zr[3], True); fm(U2, Zi[2], Zi[3]); fm(v2, Zi[3], Zi[2], True)
        fm(u1, Zr[4], Zr[1]); fm(V1, Zr[1], Zr[4], True); fm(U1, Zi[1], Zi[4]); fm(v1, Zi[4], Zi[1], True)
        self.pk('mul', u0, Zr[0], mu[0], bsel=mu[1]); self.pk('mul', U0, Zi[0], nu[0], bsel=nu[1])
        def half(a0, a1, a2, b1, b2):
            p1, p2, q1, q2, z0, z1, z2, z3, z4 = [pool.pop(0) for _ in range(9)]
            self.pk('fma', p1, a1, sC, a0, bsel=0); self.pk('fma', p2, a1, sC, a0, bsel=1)
            self.pk('mul', q1, b1, sS, bsel=0); self.pk('mul', q2, b1, sS, bsel=1); self.pk('add', z0, a0, a1)
            self.pk('fma', p1, a2, sC, p1, bsel=1); self.pk('fma', p2, a2, sC, p2, bsel=0)
            self.pk('fma', q1, b2, sS, q1, bsel=1); self.pk('fma', q2, b2, sS, q2, bsel=0, neg_b=True); self.pk('add', z0, z0, a2)
            self.pk('add', z1, p1, q1); self.pk('add', z2, p2, q2); self.pk('add', z3, p2, q2, neg_b=True); self.pk('add', z4, p1, q1, neg_b=True)
            return [z0, z1, z2, z3, z4]
        zr = half(u0, u1, u2, v1, v2); zi = half(U0, U1, U2, V1, V2)
        Vr = [zr[0]] + [pool.pop(0) for _ in range(4)]; Vi = [zi[0]] + [pool.pop(0) for _ in range(4)]
        for c in range(5):
            if c:
                t1, t2, t3 = self.bc(vTW3 + c - 1), self.bc(vTW3 + 4 + c - 1), self.bc(vTW3 + 8 + c - 1)
                self.pk('mul', Vr[c], zr[c], t1[0], bsel=t1[1]); self.pk('mul', Vi[c], zi[c], t3[0], bsel=t3[1])
                self.pk('fma', Vr[c], zi[c], t2[0], Vr[c], bsel=t2[1], neg_b=True); self.pk('fma', Vi[c], zr[c], t2[0], Vi[c], bsel=t2[1])
            d = vB + 2*c
            for jb in range(2): I(f'v_cvt_pk_bf16_f32 v{d+jb}, v{Vr[c] + jb}, v{Vi[c] + jb}')
            for jb in range(2): I(f'ds_write_b32 v{vAd+1}, v{d+jb} offset:{(c*8 + jb)*288}')
        I('s_mov_b32 s44, 0x3f80'); I('s_mov_b32 s45, 0x3f800000')
        self.barrier()
        self.stamp('p3 bar1', fine=True)
        vF = vP; vY = vP + 48
        for tau in range(3):
            for ks in range(4): I(f'ds_read_b128 {vr(vF + 4*(tau*4 + ks), 4)}, v{vAd+2} offset:{tau*16*288 + ks*64}')
        rest = self.bgq; self.bgq = None
        vHp = vB; vL = vZ
        vS = 246; vs, vq, vone = f'v{vS}', f'v{vS+1}', f'v{vAd+7}'
        def mf(tau):
            L = []
            for ks in range(4):
                for mu_ in range(2):
                    d = vr(vY + 8*tau + 4*mu_, 4)
                    L.append(f'v_mfma_f32_16x16x32_bf16 {d}, {ar(aA3 + 4*(mu_*4 + ks), 4)}, {vr(vF + 4*(tau*4 + ks), 4)}, {vr(vXf + 8*tau + 4*mu_, 4) if ks == 0 else d}')
            return L
        def post(tau):
            R = range(4*tau, 4*tau + 4)
            L = [f'v_cvt_pk_bf16_f32 v{vHp + i}, v{vY + 2*i}, v{vY + 2*i + 1}' for i in R]
            for i in R: L += [f'v_dot2_f32_bf16 v{vY + 2*i + e}, v{vHp+i}, s{44+e}, v{vMu}' for e in range(2)]
            L += [f'v_cvt_pk_bf16_f32 v{vL + i}, v{vY + 2*i}, v{vY + 2*i + 1}' for i in R]
            return L + [f'buffer_store_dwordx4 {vr(vL + 4*tau, 4)}, v{vAd + (6 if tau == 2 else 5)}, {WS}, {sP[1+tau]} offen sc1']
        self.weave(mf(0), []); self.weave(mf(1), post(0), per=3, start=2); self.weave(mf(2), post(1), per=3, start=2)
        for x in post(2): I(x)
        self.stamp('p3 end')
        for it in rest:
            for x in it: I(x)
        self.w2_loads(self.opt.get('w2_s3', 4))
        for i in range(12):
            I(f'v_dot2_f32_bf16 {vs}, v{vHp+i}, {vone}, {vs if i else 0}'); I(f'v_dot2_f32_bf16 {vq}, v{vHp+i}, v{vHp+i}, {vq if i else 0}')
        I(f'v_add_f32_dpp {vs}, {vs}, {vs} row_ror:8 row_mask:0xf bank_mask:0xf'); I(f'v_add_f32_dpp {vq}, {vq}, {vq} row_ror:8 row_mask:0xf bank_mask:0xf')
        for sw in ('v_permlane16_swap_b32', 'v_permlane32_swap_b32'):
            I(f'v_mov_b32 v{vS-2}, {vs}'); I(f'v_mov_b32 v{vS-1}, {vq}')
            I(f'{sw} {vs}, v{vS-2}'); I(f'{sw} {vq}, v{vS-1}')
            I(f'v_add_f32 {vs}, {vs}, v{vS-2}'); I(f'v_add_f32 {vq}, {vq}, v{vS-1}')
        I(f'ds_write_b64 v{vAd+3}, {vr(vS, 2)}')
        self.barrier()
    def p3_stats(self):
        I = self.I; vAd = VW; vS = 246; t = 236; vs, vq = f'v{vS}', f'v{vS+1}'
        snap = self.cond_begin(); L = self.newlabel('Lst')
        I(f's_cmp_lg_u32 {sW}, 0'); I(f's_cbranch_scc1 {L}')
        I(f'ds_read_b128 {vr(t, 4)}, v{vAd+4}'); I(f'ds_read_b128 {vr(t+4, 4)}, v{vAd+4} offset:16')
        self.pk('add', t, t, t + 2); self.pk('add', t + 4, t + 4, t + 6); self.pk('add', vS, t, t + 4)
        for x in self.finish_stats(vs, vq, None): I(x)
        I(f'v_lshrrev_b32 {vs}, 16, v{vMu}'); I(f'v_or_b32 v{vS-2}, {vs}, {vq}'); I(f'v_mov_b32 v{vS-1}, {vTag}')
        I(f'buffer_store_dwordx4 {vr(vS-2, 4)}, v{vAd+6}, {WS}, {sP[3]} offen offset:2048 sc1')
        self.cond_end(snap); self.label(L)

    def w1_items(self, cs):
        L = []
        for c in cs:
            for pt in range(7):
                L.append(([f's_add_u32 m0, s86, {c*4*7168 + pt*1024}'] if pt % 4 == 0 else []) + ([f's_add_u32 s88, s85, {c*3456}'] if pt == 0 else []) +
                         [f'buffer_load_dwordx4 v{vW1A + pt}, {W1}, s88 offen offset:{(pt & 3)*1024} lds'])
        return L
    def w2reg(self, f):
        if f < 32: return ar(128 + 4*f, 4)
        if f < 54: return ar(4*(f - 32), 4)
        return vr([8, 12, 36, 40, 16, 20, 44, 48, 24, 28, 52, 56, 184, 188, 32, 60][f - 54], 4)
    def w2_items(self, n, lim=54):
        L = []
        for i in range(n):
            f = self.w2next
            if f >= lim: break
            self.w2next += 1
            L.append(([f's_add_u32 s87, {sW2B}, {(f & ~3)*1024}'] if f % 4 == 0 else []) +
                     [f'buffer_load_dwordx4 {self.w2reg(f)}, {vL16}, {WS}, s87 offen offset:{(f & 3)*1024} sc1'])
        return L
    def w2_loads(self, n, lim=54):
        for x in sum(self.w2_items(n, lim), []): self.I(x)

    def emit(self, x):
        if callable(x): x()
        else: self.I(x)
    def wait_regs(self, regs):
        regs = {('v', r) for r in regs}; last = None
        for p in self.vm:
            if p[1] & regs: last = p[0]
        if last is not None: self.wait_tok(last)
    def p5_plan(self):
        oe = self.opt.get('own_early', 0)
        order = [(kp, mu) for kp in range(12) for mu in (1, 2, 3)] + [(kp, 0) for kp in range(oe)]
        order += [(kp, mu) for mu in (1, 2, 3) for kp in (12, 13)] + [(kp, 0) for kp in range(oe, 14)]
        self.gen_ok = 0
        self.gen_of = lambda i: order[i][0] >> 2
        self.order5 = order; self.NRF = 20
        self.hreg = lambda i: 64 + 4*(i % self.NRF)
        self.ldh = lambda i: f'buffer_load_dwordx4 {vr(self.hreg(i), 4)}, {vL16}, {WS}, {self.sH(order[i][1], KORD[order[i][0]] >> 2)} offen offset:{(KORD[order[i][0]] & 3)*1024} sc1'
        self.nxt5 = 0
    def f4_signal(self, gen, last):
        def w():
            if self.opt.get('st4'): self.stamp(f'sig{gen}a')
            self.wait_tok(self.toks[last])
            if self.opt.get('st4'): self.stamp(f'sig{gen}b')
        return [w, f'buffer_store_dword {vTag}, v235, {WS}, s45 offen offset:{gen*128} sc1']
    def f4_load(self, gen): return f'buffer_load_dword v234, v0, {WS}, s46 offen offset:{gen*128} sc1'
    def f4_ld(self, gen):
        def touch():
            self.I(f'buffer_load_dword v234, v7, {WS}, s47 offen offset:{gen*1024} sc1'); self.vm[-1] = (self.vm[-1][0], set())
        return ([touch] if self.opt.get('h1touch', 0) else []) + [self.f4_load(gen)]
    def f4_check(self, gen):
        a, b = self.retry([self.f4_load(gen)], ['v_cmp_ne_u32 vcc, s62, v234', 's_cbranch_vccnz'], inline=False)
        def fin():
            b(); self.gen_ok = gen + 1
            if self.opt.get('st4'): self.stamp(f'chk{gen}b')
        def w():
            if self.opt.get('st4'): self.stamp(f'chk{gen}a')
            self.wait_regs([234])
        return [w, a.items[0], fin]
    def p4(self):
        I = self.I; opt = self.opt
        vAcc = 8; vLn = 64; vK = 230; vT = 236; vO = 244; vC = 234
        lnreg = lambda mt, k: vLn + 8*k + 4*mt
        blocks = [(0, 1, 2, 3), (4, 5), (6,)]
        frags = [(k, nt) for b in blocks for k in range(20) for nt in b]
        D = 7
        bf = lambda i: aBf + 4*(i % 10)
        def rd(i, hf):
            k, nt = frags[i]
            base = (252 if nt == 6 else 224) + k // 8; off = (k % 8)*7168 + hf*16*224 + (0 if nt == 6 else nt*32)
            return f'ds_read_b64_tr_b16 {ar(bf(i) + 2*hf, 2)}, v{base} offset:{off}'
        lda = lambda k, mt: f'buffer_load_dwordx4 {vr(lnreg(mt, k), 4)}, v{227 + mt}, {WS}, {sP[4 + (k >> 3)]} offen offset:{(k & 7)*512} sc1'
        PRE = opt.get('p4_pre', 8); CH = opt.get('p4_chk', 4)
        first = [lda(k, mt) for k in range(PRE) for mt in range(2)]
        for x in first: I(x)
        self.p3_stats()
        self.epoch()
        self.p5_offsets((0,))
        for i in range(D): I(rd(i, 0)); I(rd(i, 1))
        I(f's_mov_b32 s44, {f32(-1.4426950408889634)}')
        I(f's_lshl_b32 s46, {sG}, 15'); I(f's_add_u32 s46, s46, {WS_FL4}'); I(f's_lshr_b32 {sT[0]}, {sW}, 1'); I(f's_lshl4_add_u32 {sT[0]}, {sT[0]}, {sM}')
        I(f's_and_b32 {sT[1]}, {sW}, 1'); I(f's_lshl1_add_u32 {sT[0]}, {sT[0]}, {sT[1]}'); I(f's_lshl_b32 {sT[0]}, {sT[0]}, 9'); I(f's_add_u32 s45, s46, {sT[0]}')
        I(f's_and_b32 {sT[0]}, {sT[5]}, 4'); I(f's_add_u32 {sT[0]}, {sT[0]}, {sW}'); I(f's_lshl_b32 {sT[0]}, {sT[0]}, 12'); I(f's_add_u32 s46, s46, {sT[0]}')
        I(f'v_lshrrev_b32 v235, 5, {vLane}'); I(f'v_lshlrev_b32 v235, 26, v235'); I(f'v_lshl_add_u32 v235, {vLane}, 2, v235'); I(f'v_and_b32 v0, 7, {vLane}'); I('v_lshlrev_b32 v0, 9, v0')
        I(f's_and_b32 {sT[0]}, {sY}, 3'); I(f's_add_u32 {sT[0]}, {sT[0]}, {sT[5]}'); I(f's_mul_i32 s47, {sT[0]}, 57344'); I(f's_add_u32 s47, s47, {sT[3]}'); I(f's_add_u32 s47, s47, {WS_H1}')
        I(f'v_bfe_u32 v7, {vLane}, 3, 2'); I('v_mad_u32_u24 v7, v7, 7, 1'); I('v_lshrrev_b32 v7, 1, v7'); I('v_lshlrev_b32 v7, 12, v7'); I('v_add_u32 v7, v7, v0'); I('v_lshrrev_b32 v7, 2, v7')
        self.stamp('p4 pre', fine=True)
        a, b = self.retry(first, self.max_test([lnreg(mt, k) + 3 for k in range(CH) for mt in range(2)], vC)); a(); b()
        self.stamp('p4 LN')
        self.p5_plan()
        def silu(nt, mt, dst2, t, pk):
            r = vAcc + 4*(mt*7 + nt); kn, sg = vK + 2*mt, vK + 2*mt + 1
            if pk:
                L = [f'v_pk_mul_f32 {vr(t+2*h, 2)}, {vr(r+2*h, 2)}, {vr(kn, 2)} op_sel:[0,0] op_sel_hi:[1,0]' for h in range(2)]
                L += [f'v_exp_f32 v{t+i}, v{t+i}' for i in range(4)]
                L += [f'v_pk_fma_f32 {vr(t+2*h, 2)}, {vr(t+2*h, 2)}, {vr(kn, 2)}, {vr(kn, 2)} op_sel:[0,1,1] op_sel_hi:[1,1,1]' for h in range(2)]
                L += [f'v_rcp_f32 v{t+i}, v{t+i}' for i in range(4)]
                L += [f'v_pk_mul_f32 {vr(t+2*h, 2)}, {vr(t+2*h, 2)}, {vr(r+2*h, 2)}' for h in range(2)]
            else:
                L = [f'v_mul_f32 v{t+i}, v{r+i}, v{kn}' for i in range(4)] + [f'v_exp_f32 v{t+i}, v{t+i}' for i in range(4)]
                L += [f'v_fma_f32 v{t+i}, v{t+i}, v{sg}, v{sg}' for i in range(4)] + [f'v_rcp_f32 v{t+i}, v{t+i}' for i in range(4)]
                L += [f'v_mul_f32 v{t+i}, v{t+i}, v{r+i}' for i in range(4)]
            return L + [f'v_cvt_pk_bf16_f32 v{dst2+h}, v{t+2*h}, v{t+2*h+1}' for h in range(2)]
        units = [(pr, mt) for pr in range(3) for mt in range(2)] + [(3, 0)]
        def unit(u, half, pk):
            pr, mt = units[u]; o = vO + 4*(u & 1)
            if pr < 3: L = silu(2*pr + half, mt, o + 2*half, vT + 4*half, pk)
            else: L = silu(6, half, o + 2*half, vT + 4*half, pk)
            if half:
                if pr == 3: L += [f'v_permlane16_swap_b32 v{o}, v{o+2}', f'v_permlane16_swap_b32 v{o+1}, v{o+3}']
                L.append(self.h1_store(o, pr, mt, 229))
            return L
        todo = [(u, h) for u in range(7) for h in range(2)]
        cur = []
        def next_fill(limit):
            nonlocal cur
            if not cur and todo and todo[0][0] < limit: cur = unit(*todo.pop(0), False)
            return cur.pop(0) if cur else None
        ldst = [f'buffer_load_dwordx2 {vr(vK + 2*mt, 2)}, v{227 + mt}, {WS}, {sP[6]} offen offset:2048 sc1' for mt in range(2)]
        sa, sb = self.retry(ldst, [f'v_cmp_ne_u32 vcc, s62, v{vK+1}', f'v_cmp_ne_u32 {sPAIR}, s62, v{vK+3}', f's_or_b64 vcc, vcc, {sPAIR}', 's_cbranch_scc1'], inline=False)
        stc = []
        for mt in range(2): stc += [f'v_and_b32 v{vK+2*mt+1}, 0xffff0000, v{vK+2*mt}', f'v_rcp_f32 v{vK+2*mt}, v{vK+2*mt+1}']
        stc += [f'v_mul_f32 v{vK+2*mt}, s44, v{vK+2*mt}' for mt in range(2)]
        nxt = PRE; q = []; done = CH
        w2B = []
        def w2one(lim):
            if not w2B: w2B.extend(sum(self.w2_items(1, lim), []))
            if w2B: I(w2B.pop(0)); return True
        def burst(n, lim):
            for j in range(n):
                L = unit(*todo.pop(0), True)
                for p, x in enumerate(L):
                    I(x)
                    if p == 5 or (p == 11 and j % 2 < opt.get('w2_burst', 1)):
                        w2one(lim)
                        if w2B: w2one(lim)
        H0 = opt.get('h1_at', 1); HN = opt.get('h1_pre', 10)
        fix = {}
        for i, (k, nt) in enumerate(frags):
            blk = 0 if i < 80 else 1 if i < 120 else 2
            if blk == 0 and nt == 0:
                fix = {}
                assert k < done
                if nxt < 20: fix[0] = [lda(nxt, 0)]; fix[1] = [lda(nxt, 1)]; nxt += 1
                elif k == opt.get('st_at', 14): fix[0] = [ldst[0]]; fix[1] = [ldst[1]]
                if k + 1 == done and done < 20:
                    assert nxt >= done + 2
                    regs = [lnreg(m, kk) + 3 for kk in (done, done + 1) for m in range(2)]
                    a, b = self.retry([lda(kk, m) for kk in range(done, nxt) for m in range(2)], self.max_test(regs, vC), inline=False)
                    fix[2] = [lambda regs=regs: self.wait_regs(regs)]
                    fix[4], fix[5], fix[6], fix[7] = [a.items[0]], [a.items[1]], [a.items[2]], [b]
                    done += 2
                if k == 18:
                    fix[0] = [lambda: self.wait_regs([vK + 3])]; fix[1] = [sa.items[0]]; fix[2] = [sa.items[1]]; fix[4] = [sa.items[2], sb]
                if k == 19:
                    for p, x in zip((0, 1, 2, 4, 5, 6), stc): fix[p] = [x]
            if i == 80:
                self.stamp('p4 A', fine=True)
                burst(8, 54)
                self.stamp('p4 burst', fine=True)
            if i == 80 + opt.get('sig0', 4): q += self.f4_signal(0, self.h1_store(vO + 4, 0, 1, 229))
            if i == 80 + opt.get('sig1', 18): q += self.f4_signal(1, self.h1_store(vO + 4, 1, 1, 229))
            if i == 80 + opt.get('ld0', 36): q += self.f4_ld(0)
            if i == 120 + opt.get('chk0', 3): q += self.f4_check(0)
            if i == 120:
                self.stamp('p4 B1', fine=True)
                assert not q and not cur
                burst(4, 62)
                self.stamp('p4 burst2', fine=True)
            if blk == 2 and self.gen_ok:
                if self.nxt5 < HN and self.hreg(self.nxt5) + 4 <= lnreg(0, k) and not q and k % opt.get('h1_per', 2) == 0: q.append(self.ldh(self.nxt5)); self.nxt5 += 1
            if i % 2 == 0:
                for p in list(self.lg):
                    if ('a', bf(min(i + 1, len(frags) - 1)) + 3) in p[1]: self.wait_tok(p[0])
            for mt in range(2):
                d = vr(vAcc + 4*(mt*7 + nt), 4)
                I(f'v_mfma_f32_16x16x32_bf16 {d}, {ar(bf(i), 4)}, {vr(lnreg(mt, k), 4)}, {"0" if k == 0 else d}')
                if i + D < len(frags): I(rd(i + D, mt))
                if blk == 0:
                    for x in fix.get(2*nt + mt, []): self.emit(x)
                elif not (i % 2 == 1 and mt == 1):
                    if q: self.emit(q.pop(0))
                    elif w2B or (i % 2 == 0 and mt == 0 and (blk == 1 or not self.gen_ok)): w2one(62 if blk == 1 else 66)
        assert not q
        self.stamp('p4 loop')
        for x in self.f4_signal(2, self.h1_store(vO + 4, 2, 1, 229)): self.emit(x)
        for x in self.f4_ld(1): self.emit(x)
        for x in w2B: I(x)
        self.sprinkle([[self.ldh(i)] for i in range(self.nxt5, HN)] + self.w2_items(opt.get('w2_tail', 2), 68), opt.get('tail_per', 8)); self.nxt5 = max(self.nxt5, HN)
        for x in cur: I(x)
        for u, h in todo:
            for x in unit(u, h, True): I(x)
        self.bg()

    def p5(self):
        I = self.I; opt = self.opt
        order = self.order5; NRF = self.NRF; vC = 234
        acc = lambda mu, nt: vr(164 + 4*nt, 4) if mu == 0 else vr(144 + 4*nt, 4) if mu == 3 else ar(68 + 20*mu + 4*nt, 4)
        par = lambda s, nt: [144 + 4*nt, 64 + 4*nt, (84, 88, 92, 128, 132)[nt]][s]
        vHr = 192; vHf = 202; vAd = 224; vM = 222
        PD = opt.get('p5_pd', 10)
        print('late w2:', 70 - self.w2next)
        late = sum(self.w2_items(70, 70), [])
        rec = Rec()
        J = rec.I
        J(f'v_lshrrev_b32 v{vAd}, 1, {vG}'); J(f'v_sub_u32 v{vAd}, v{vAd}, {vG}'); J(f'v_lshl_add_u32 v{vAd}, v{vAd}, 7, v227')
        J(f'v_and_b32 v{vAd+1}, 1, {vG}'); J(f'v_lshl_add_u32 v{vAd}, v{vAd+1}, 3, v{vAd}')
        rec.opt = opt; K.tile0(rec, sT[5]); J(f's_add_u32 {sT[6]}, {sT[5]}, {sW}'); K.cb5(rec, sT[3])
        J(f's_mul_i32 {sP[4]}, {sT[6]}, {2*TS}'); J(f's_add_u32 {sP[4]}, {sP[4]}, {O_LN}'); J(f's_add_u32 {sP[7]}, {sP[4]}, 8192')
        J(f's_lshl_b32 {sT[4]}, {sT[3]}, 8'); J(f's_add_u32 {sP[4]}, {sP[4]}, {sT[4]}'); J(f's_add_u32 {sP[5]}, {sP[4]}, 4096'); J(f's_add_u32 {sP[6]}, {sP[4]}, 8192')
        J(f's_mul_i32 s44, {sT[6]}, 1280'); J(f's_mul_i32 {sT[3]}, {sT[3]}, 160'); J(f's_add_u32 s44, s44, {sT[3]}')
        resl = [f'buffer_load_dwordx2 {vr(vHr + 2*c, 2)}, v{vAd}, {WS}, {sP[4 + (c >> 1)]} offen offset:{(c & 1)*2048} sc1' for c in range(5)]
        resl += [f'buffer_load_dword v{vM}, v227, {WS}, {sP[7]} offen offset:2048 sc1']
        resc = [f'v_lshlrev_b32 v{vM}, 16, v{vM}']
        for c in range(5):
            for qq in range(4):
                src = vHr + 2*c + (qq >> 1); d = vHf + 5*qq + c
                resc += [f'v_and_b32 v{d}, 0xffff0000, v{src}' if qq & 1 else f'v_lshlrev_b32 v{d}, 16, v{src}']
        resc += [f'v_sub_f32 v{vHf + i}, v{vHf + i}, v{vM}' for i in range(20)]
        resc += [f'v_cvt_pk_bf16_f32 v{vHr + i}, v{vHf + 2*i}, v{vHf + 2*i + 1}' for i in range(10)]
        for i in range(10): resc += [f'v_lshlrev_b32 v{vHf + 2*i}, 16, v{vHr + i}', f'v_and_b32 v{vHf + 2*i + 1}, 0xffff0000, v{vHr + i}']
        adr = []
        for mu in range(1, 4):
            adr += [f's_add_u32 {sT[2]}, {sW}, {mu}', f's_and_b32 {sT[2]}, {sT[2]}, 3', f's_mul_i32 {sT[2]}, {sT[2]}, 15360', f's_add_u32 {sT[2]}, {sT[2]}, {(mu - 1)*5120}',
                    f'v_add_u32 v{vAd + 5 + mu}, {sT[2]}, {vL16}']
        adr += [f's_mul_i32 {sT[2]}, {sW}, 15360', f'v_add_u32 v{vAd+5}, {sT[2]}, {vL16}']
        adr += [f'v_mul_u32_u24 v{vAd+1}, 163840, {vN}', f'v_mul_u32_u24 v{vAd+2}, 40, {vG}', f'v_add_u32 v{vAd+1}, v{vAd+1}, v{vAd+2}']
        lastof = {mu: max(i for i, o in enumerate(order) if o[1] == mu) for mu in range(4)}
        seen = set(); wr = []; slow = rec.L + adr; mem = []
        B1 = opt.get('p5_bar1', 8); B2 = lastof[3] + opt.get('p5_bar2', 7)
        ev = {opt.get('chk1', 2): self.f4_check(1), opt.get('ld2', 6): self.f4_ld(2), opt.get('sig3', 7): self.f4_signal(3, self.h1_store(244, 3, 0, 229)),
              opt.get('chk2', 14): self.f4_check(2), opt.get('ld3', 18): self.f4_ld(3), opt.get('chk3', 26): self.f4_check(3)}
        for i, (kp, mu) in enumerate(order):
            if i == B1:
                assert not slow
                I('s_barrier'); mem += resl
            if i == opt.get('res_at', 32): assert not mem; slow += resc
            for m in (1, 2, 3):
                if i == lastof[m] + 1: wr += [f'ds_write_b128 v{vAd + 5 + m}, {acc(m, nt)} offset:{nt*1024}' for nt in range(5)]
            if i == B2:
                assert not wr and i >= 48 and self.nxt5 == 56
                self.barrier()
                slow += [f'ds_read_b128 {vr(par(s, nt), 4)}, v{vAd+5} offset:{s*5120 + nt*1024}' for nt in range(5) for s in range(3)]
                for nt in range(5):
                    slow += [f'v_add_f32 v{par(1, nt) + e}, v{par(1, nt) + e}, v{par(2, nt) + e}' for e in range(4)]
                    slow += [f'v_add_f32 v{par(0, nt) + e}, v{par(0, nt) + e}, v{par(1, nt) + e}' for e in range(4)]
            c = list(ev.get(i, []))
            if i in (14, 28, 42) and opt.get('st5'): self.stamp(f'p5 {i}')
            for nt in range(5):
                d = acc(mu, nt)
                assert not any(f' {self.w2reg(kp*5 + nt)},' in x for x in late)
                I(f'v_mfma_f32_16x16x32_bf16 {d}, {self.w2reg(kp*5 + nt)}, {vr(self.hreg(i), 4)}, {d if mu in seen else "0"}')
                n0 = self.nins
                assert i < self.nxt5
                if nt == 0 and self.nxt5 < len(order) and self.nxt5 <= i + PD and self.nxt5 < i + NRF and self.gen_of(self.nxt5) < self.gen_ok:
                    I(self.ldh(self.nxt5)); self.nxt5 += 1
                if nt == 1 and i % opt.get('late_per', 2) == 0:
                    if late:
                        if late[0].startswith('s_add'): I(late.pop(0))
                        I(late.pop(0))
                    elif mem: I(mem.pop(0))
                if c and nt >= 2: self.emit(c.pop(0)); continue
                if wr and (5*i + nt) % opt.get('wr_per', 3) == 0: I(wr.pop(0)); continue
                if nt == 4 and i + 1 < len(order): self.wait_regs([self.hreg(i + 1)])
                while self.nins - n0 < opt.get('fill5', 2) and slow: I(slow.pop(0))
            seen.add(mu)
        assert not late and not mem
        for x in slow: I(x)
        self.stamp('p5 loop')
        vO = 64; S = 144
        for i in range(10): self.pk('add', S + 2*i, S + 2*i, 164 + 2*i)
        for i in range(10): I(f'v_cvt_pk_bf16_f32 v{vO + i}, v{S + 2*i}, v{S + 2*i + 1}')
        for i in range(10):
            I(f'v_lshlrev_b32 v{S + 2*i}, 16, v{vO + i}'); I(f'v_and_b32 v{S + 2*i + 1}, 0xffff0000, v{vO + i}')
        vO = 76
        for i in range(10):
            self.pk('add', S + 2*i, S + 2*i, vHf + 2*i)
            I(f'v_cvt_pk_bf16_f32 v{vO + i}, v{S + 2*i}, v{S + 2*i + 1}')
            if i == 3: I(f'buffer_store_dwordx4 {vr(vO, 4)}, v{vAd+1}, {OUT}, s44 offen')
            if i == 7: I(f'buffer_store_dwordx4 {vr(vO + 4, 4)}, v{vAd+1}, {OUT}, s44 offen offset:16')
        I(f'buffer_store_dwordx2 {vr(vO + 8, 2)}, v{vAd+1}, {OUT}, s44 offen offset:32')

    def build(self):
        I = self.I
        self.w2next = 0; self.vW2X = 168
        opt = self.opt
        self.p1()
        nm = dict(B=self.b1, t=[self.tw], a=[self.ad], A=self.p3_table_items(vFl + 3, 's63', 's87'))
        sel = self.sel = lambda s: sum([nm[c] if c in nm else self.w1_items([int(c)]) for c in s], [])
        nm['p'] = self.poC
        if opt.get('tall', 1): nm.update(self.touch_all())
        nm['_'] = [[]]
        self.p1a(sel(opt.get('pre', '_Btxyr')), opt.get('pre_per', 12))
        snap = self.cond_begin()
        I(f's_cmp_ge_u32 {sY}, 20'); I('s_cbranch_scc1 L_nop2')
        self.tile()
        self.sprinkle(self.pre_rest, opt.get('pre_per2', 20))
        if opt.get('f2_at', 0) == 0: self.dft32(False, VW + 76)
        self.bg()
        if opt.get('wa_at', 1) == 0: nm['W'] = self.w_addr(VW + 152)
        self.p1b(sel(opt.get('P_p1', '___________p')), opt.get('p1_per', 14))
        self.stamp('p1 sig')
        if opt.get('wa_at', 1) == 1: nm['W'] = self.w_addr(VW + 152)
        self.ldA = self.flag_load('A', sP[18], False)
        self.p2()
        self.cond_end(snap, True); I('s_branch L_join2'); self.label('L_nop2')
        self.vm = list(snap[0]); self.lg = list(snap[1])
        snap = self.cond_begin()
        if set('wvde') & set(opt.get('H_pre', '') + opt.get('H_p1', '') + opt.get('H_x1', '') + opt.get('H_x2', '')): nm.update(self.touch_addr())
        self.run(sel(opt.get('H_pre', '')))
        if opt.get('stT'): self.stamp('tch iss'); self.wait_vm0(); self.stamp('tch ret')
        nm['R'] = self.repack_addr(VW + 152)
        self.run(self.pre_rest)
        self.p1b(sel(opt.get('H_p1', '___________p')), opt.get('p1_perH', 14))
        self.stamp('p1 sig')
        self.helper()
        self.cond_end(snap, True); self.label('L_join2')
        self.vm = [(-1, set())]
        self.stamp('join2')
        self.p3_pre()
        self.stamp('flagB')
        self.w2_loads(self.opt.get('w2_s2', 0))
        self.p3()
        self.p4()
        self.stamp('p4 end')
        self.p5()
        self.stamp('end')
        self.label('L_end'); I('s_endpgm')
        self.out += self.tail

HEADER = open('sequential_preLN__spectral_gfnet__dense_activation_silu__prompt.s.ref').read().split('; Override launch')[0]
def make(stamps=False, **kw):
    k = K(stamps=stamps, **kw); k.build()
    s = HEADER + '; @launch grid=(256,1,1) block=(256,1,1) lds=163840\n'
    s += '; stamps: ' + '|'.join(k.stnames) + '\n'
    s += f'.amdgcn_target "amdgcn-amd-amdhsa--gfx950"\n.text\n.globl {KNAME}\n.p2align 8\n.type {KNAME},@function\n{KNAME}:\n'
    s += k.text()
    s += '.p2align 8\n.type L_tab,@object\nL_tab:\n' + tables.blob_asm(TBLOB) + f'\n.size L_tab, {len(TBLOB)}\n'
    s += f'''.section .rodata,"a"
.p2align 6
.amdhsa_kernel {KNAME}
  .amdhsa_next_free_vgpr 512
  .amdhsa_next_free_sgpr 102
  .amdhsa_accum_offset 256
  .amdhsa_group_segment_fixed_size 0
  .amdhsa_kernarg_size 72
  .amdhsa_user_sgpr_count 2
  .amdhsa_user_sgpr_kernarg_segment_ptr 1
  .amdhsa_system_sgpr_workgroup_id_x 1
.end_amdhsa_kernel
'''
    return s, k
if __name__ == '__main__':
    out = sys.argv[1]; st = 'stamps' in sys.argv[2:]
    kw = {}; opt = {}
    for a in sys.argv[2:]:
        if '=' in a:
            n, v = a.split('=', 1); v = eval(v)
            opt[n] = v
    s, k = make(st, opt=opt, **kw); open(out, 'w').write(s); print('instructions', k.nins, 'bytes', len(s), 'stamps', k.nst)
```

```python
import sys, struct, math
from asmgen import *
import tables

KNAME = 'sequential_preLN__spectral_gfnet__dense_activation_silu__prompt_kernel'
TS = 31488
O_T2, O_LN = 10240, 20480
WS_H1, WS_W2 = 0x800000, 0x1000000
WS_FLA, WS_FLB, WS_EP, WS_FL4 = 0x1300000, 0x1310000, 0x1418000, 0x1420000
FREP = 0x18000
WS_STAMP = 0x1500000
WS_SIZE = 0x2000000
TOFF, TBLOB = tables.all_tables()
def f32(x): return hex(struct.unpack('<I', struct.pack('<f', x))[0])
KORD = [0, 4, 7, 11, 1, 5, 8, 12, 2, 6, 9, 13, 3, 10]

X, WR, WI, W1, W2, OUT, WS, TAB = [sr(4 + 4*i, 4) for i in range(8)]
sW, sG, sM, sS1, sHH, sX8, sY, sTILE = 's36', 's37', 's38', 's39', 's40', 's41', 's42', 's43'
sC = 's[44:45]'; sS = 's[46:47]'
sMASK = 's48'; sCNT = 's49'
sT = ['s50', 's51', 's52', 's53', 's54', 's55', 's56', 's57']
sPAIR = 's[58:59]'; sPC = 's[60:61]'; sTAG2 = 's[62:63]'
sP = [f's{i}' for i in range(64, 84)]
sW2B = 's84'
sH1 = ['s60', 's61', 's100']
sBLK = 's101'
vLane, vN, vG, vL16, vTag = 'v1', 'v2', 'v3', 'v4', 'v5'
vXR = 8
vW1A = 20
vMu = 27
vTW3 = 28
vA3 = 44
VW = 48
vWr, vWi = 212, 228
vPo = 244
vFl = 248
vJunk = 252
vWA = 206
aB1, aF2, aI2, aA3 = 0, 32, 64, 96
aBf = 88
L_XF, L_EX, L_R = 114688, 114688 + 24576, 114688 + 24576 + 10240
L_G, L_H = 114688, 114688 + 32768
L_V, L_ST = 143360, 143360 + 48*288
L_W = 86016
L_RP = 57344

class Rec:
    def __init__(self): self.L = []
    def I(self, x): self.L.append(x)

class K(Gen):
    def __init__(self, stamps=False, opt=None):
        super().__init__(); self.stamps = stamps; self.nst = 0; self.stnames = []; self.opt = opt or {}; self.tail = []; self.toks = {}
    bgq = None; bgper = 0; bgcnt = 0; inbg = False
    def I(self, text):
        t2 = text
        if text.startswith('buffer_load'):
            for c, srds in (('x', (X,)), ('W', (WR, WI)), ('1', (W1,)), ('2', (W2,))):
                if c in self.opt.get('nt', 'W21') and any(f' {d},' in text for d in srds) and 'x4' not in text: t2 = text.replace(' lds', ' nt lds') if text.endswith(' lds') else text + ' nt'
        r = super().I(t2)
        if r is not None: self.toks[text] = r
        if self.bgq and self.bgper and not self.inbg and not text.startswith(('s_cmp', 's_cbranch', 's_branch', 's_add_u32 m0')):
            self.bgcnt += 1
            if self.bgcnt >= self.bgper: self.bgcnt = 0; self.bg(1)
        return r
    def bg(self, n=10**9):
        self.inbg = True
        while n > 0 and self.bgq:
            for x in self.bgq.pop(0): self.I(x)
            n -= 1
        self.inbg = False
    def sprinkle(self, items, period):
        assert not self.bgq
        self.bgq = list(items); self.bgper = period; self.bgcnt = 0
    def cond_begin(self):
        assert not self.bgq or self.inbg or self.allow_bg_cond, 'background items pending at a conditional region'
        return super().cond_begin()
    allow_bg_cond = False
    def pk(self, op, d, a, b, c=None, bsel=None, neg_b=False, neg_c=False, neg_a=False):
        n = 3 if c is not None else 2
        ops = [vr(d, 2), vr(a, 2), b if isinstance(b, str) else vr(b, 2)] + ([vr(c, 2)] if c is not None else [])
        mods = ''
        if bsel is not None:
            lo = [0, bsel, 0][:n]; hi = [1, bsel, 1][:n]
            mods += f' op_sel:[{",".join(map(str, lo))}] op_sel_hi:[{",".join(map(str, hi))}]'
        if neg_a or neg_b or neg_c:
            ng = [int(neg_a), int(neg_b), int(neg_c)][:n]; s = ",".join(map(str, ng))
            mods += f' neg_lo:[{s}] neg_hi:[{s}]'
        self.I(f'v_pk_{op}_f32 ' + ', '.join(ops) + mods)
    def bc(self, r): return (r & ~1, r & 1)
    def weave(self, main, fill, per=2, start=0):
        fill = list(fill)
        for i, m in enumerate(main):
            self.I(m)
            if i >= start:
                for _ in range(per):
                    if fill: self.I(fill.pop(0))
        for f in fill: self.I(f)
    def stamp(self, name='', wait=None, fine=False):
        if self.opt.get('probe2') is not None:
            if name == self.opt.get('pst', 'end') and name != 'end':
                self.inbg = True
                if wait is not None: self.I(f'v_mov_b32 v7, v{wait}')
                self.I('s_memrealtime s[90:91]'); self.wait_lg0(); self.inbg = False
            if name == 'end':
                if not self.opt.get('nodrain'): self.wait_vm0(True)
                self.settle(); I = lambda t: self.raw('    ' + t); W = lambda: I('s_waitcnt vmcnt(0) lgkmcnt(0)'); pm = self.opt['probe2']
                if self.opt.get('pst', 'end') == 'end': I('s_memrealtime s[90:91]')
                I('s_load_dwordx2 s[92:93], s[0:1], 64'); I('s_waitcnt lgkmcnt(0)')
                I(f's_add_u32 s92, s92, {WS_STAMP}'); I('s_addc_u32 s93, s93, 0')
                I('s_lshl_b32 s94, s2, 2'); I(f's_add_u32 s94, s94, {sW}'); I('s_lshl_b32 s94, s94, 6')
                I('s_mov_b64 exec, 1'); I('s_nop 4'); I('v_mov_b32 v10, s94'); I('v_mov_b32 v12, s96'); I('v_mov_b32 v13, s90'); I('s_nop 4')
                I('global_store_dwordx2 v10, v[12:13], s[92:93] sc0 sc1'); W()
                I('s_cmp_lg_u32 s2, 0'); I('s_cbranch_scc1 L_end')
                S0 = self.opt.get("spin0", 4000)
                self.label('L_spin0'); I('s_memrealtime s[94:95]'); W(); I('s_sub_u32 s94, s94, s96'); I(f's_cmp_lt_u32 s94, {S0}'); I('s_cbranch_scc1 L_spin0')
                I('s_mov_b64 exec, -1'); I('s_nop 4'); I('v_mbcnt_lo_u32_b32 v10, -1, 0'); I('v_mbcnt_hi_u32_b32 v10, -1, v10'); I('v_lshlrev_b32 v10, 6, v10'); I('s_nop 4')
                lo, hi = self.opt.get('prange', (0, 16))
                for i in range(16):
                    I(f'global_load_dwordx2 v[{16+2*i}:{17+2*i}], v10, s[92:93] sc0 sc1'); I('v_add_u32 v10, 0x1000, v10'); I('s_nop 4')
                W(); I('s_sub_u32 s94, s96, 100'); I('s_nop 4')
                o = 0 if pm in (2, 3) else 1
                for i in range(16): I(f'v_subrev_u32 v{16+2*i+o}, s94, v{16+2*i+o}')
                if pm == 4:
                    I('v_mbcnt_lo_u32_b32 v10, -1, 0'); I('v_mbcnt_hi_u32_b32 v10, -1, v10')
                    for i in range(16): I(f'v_lshlrev_b32 v{16+2*i+o}, 10, v{16+2*i+o}'); I(f'v_or_b32 v{16+2*i+o}, v{16+2*i+o}, v10'); I(f'v_add_u32 v10, 64, v10')
                op = {1: 'max', 2: 'max', 3: 'min', 4: 'max', 5: 'min', 6: 'add'}[pm]
                I(f'v_mov_b32 v11, v{16+2*lo+o}')
                for i in range(lo + 1, hi): I(f'v_{op}_u32 v11, v11, v{16+2*i+o}')
                I('s_nop 4'); I('v_readlane_b32 s90, v11, 0')
                for i in range(1, 64): I(f'v_readlane_b32 s91, v11, {i}'); I('s_nop 4'); I(f's_{op}_u32 s90, s90, s91')
                if pm == 6: I('s_mul_i32 s90, s90, 40'); I('s_lshr_b32 s90, s90, 10')
                elif pm == 4: I('s_and_b32 s90, s90, 1023'); I('s_mul_i32 s90, s90, 100')
                else: I('s_mul_i32 s90, s90, 40')
                I('s_min_u32 s90, s90, 200000'); I(f's_add_u32 s90, s90, {S0 + 1000}')
                self.label('L_spin'); I('s_memrealtime s[92:93]'); W(); I('s_sub_u32 s92, s92, s96'); I('s_cmp_lt_u32 s92, s90'); I('s_cbranch_scc1 L_spin')
            return
        if self.opt.get('probe'):
            if name == self.opt['probe']:
                self.inbg = True
                if wait is not None: self.I(f'v_mov_b32 v7, v{wait}')
                self.I('s_memrealtime s[90:91]'); self.wait_lg0(); self.inbg = False
            if name == 'end':
                I = self.I
                I(f's_cmp_lg_u32 s2, {self.opt.get("pwg", 0)}'); I('s_cbranch_scc1 L_end')
                I('s_sub_u32 s90, s90, s96'); I('s_min_u32 s90, s90, 5000'); I('s_mul_i32 s90, s90, 40')
                self.label('L_spin'); I('s_memrealtime s[92:93]'); self.wait_lg0(); I('s_sub_u32 s92, s92, s96'); I('s_cmp_lt_u32 s92, s90'); I('s_cbranch_scc1 L_spin')
            return
        if not self.stamps or (fine and not self.opt.get('fine')): return
        if self.opt.get('st4') and name.startswith(('p1', 'p2', 'pre', 'p3', 'fla', 'x a', 'joi')): return
        if name not in self.stnames: self.stnames.append(name); self.nst += 1
        self.inbg = True
        if wait is not None: self.I(f'v_mov_b32 v7, v{wait}')
        i = self.stnames.index(name); assert i < 32
        if name == 'entry':
            self.I('v_mov_b32 v6, 0'); a, b = 96, 98
        elif name == 'kernarg': a, b = 92, 94
        else:
            self.I('s_memrealtime s[96:97]'); self.I('s_memtime s[98:99]'); a, b = 96, 98
        self.wait_lg0()
        self.I(f'v_writelane_b32 v6, s{b}, {i}'); self.I(f'v_writelane_b32 v6, s{a}, {32 + i}'); self.I(f'v_writelane_b32 v255, {sCNT}, {i}')
        if name == 'end':
            self.I(f's_lshl_b32 s90, s2, 10'); self.I(f's_add_u32 s90, s90, {WS_STAMP}')
            self.I(f's_lshl_b32 s91, {sW}, 8'); self.I(f's_add_u32 s90, s90, s91')
            self.I(f'v_lshlrev_b32 v7, 2, {vLane}')
            self.I(f'buffer_store_dword v6, v7, {WS}, s90 offen')
            self.I(f's_add_u32 s90, s90, 0x40000'); self.I(f'buffer_store_dword v255, v7, {WS}, s90 offen')
        self.inbg = False

    def dft5_half(self, z, t):
        a, b, c, d, u0, u1, u2, v1, v2 = t
        self.pk('add', a, z[1], z[4]); self.pk('add', b, z[2], z[3])
        self.pk('add', c, z[1], z[4], neg_b=True); self.pk('add', d, z[2], z[3], neg_b=True)
        self.pk('add', u0, z[0], a); self.pk('fma', u1, a, sC, z[0], bsel=0); self.pk('fma', u2, a, sC, z[0], bsel=1)
        self.pk('mul', v1, c, sS, bsel=0); self.pk('mul', v2, c, sS, bsel=1)
        self.pk('add', u0, u0, b); self.pk('fma', u1, b, sC, u1, bsel=1); self.pk('fma', u2, b, sC, u2, bsel=0)
        self.pk('fma', v1, d, sS, v1, bsel=1); self.pk('fma', v2, d, sS, v2, bsel=0, neg_b=True)
        return u0, u1, u2, v1, v2
    def finish_stats(self, vs, vq, scale):
        rnd = [f'v_cvt_pk_bf16_f32 {vq}, {vq}, {vq}', f'v_lshlrev_b32 {vq}, 16, {vq}']
        L = [f'v_mul_f32 {vs}, {f32(1/640.)}, {vs}', f'v_mul_f32 {vq}, {f32(1/640.)}, {vq}',
             f'v_fma_f32 {vq}, -{vs}, {vs}, {vq}', f'v_max_f32 {vq}, 0, {vq}'] + rnd + [f'v_add_f32 {vq}, {f32(1e-5)}, {vq}'] + rnd
        L += [f'v_sqrt_f32 {vq}, {vq}'] + rnd
        if scale is None: return L
        L += [f'v_rcp_f32 {vq}, {vq}']
        if scale != 1.0: L.append(f'v_mul_f32 {vq}, {f32(scale)}, {vq}')
        return L

    def p1(self):
        I = self.I
        sRH = sP[1]
        vX = VW; vF = VW + 20; vTW = VW + 40; vA2 = VW + 56; vAd = VW + 64
        vAf = VW + 76; vAcc = VW + 124; vT = VW + 148
        if self.stamps or self.opt.get('probe') or self.opt.get('probe2') is not None: I('s_memrealtime s[96:97]'); I('s_memtime s[98:99]')
        for d, o in ((4, 0), (28, 64), (8, 8), (12, 16), (16, 32), (20, 40), (24, 48)): I(f's_load_dwordx2 s[{d}:{d+1}], s[0:1], {o}')
        I('s_cmp_ge_u32 s2, 256'); I('s_cbranch_scc1 L_end')
        I(f's_getpc_b64 {sPC}'); self.label('L_pc')
        I(f's_lshr_b32 {sY}, s2, 3'); I(f'v_min_u32 v6, 26, v0'); I(f's_mul_i32 {sT[0]}, {sY}, {27*128}')
        I(f'v_lshl_add_u32 v6, v6, 7, {sT[0]}'); I(f'v_min_u32 v6, (L_tab - L_pc + {len(TBLOB) - 4}), v6')
        I(f'global_load_dword v7, v6, {sPC}')
        I(f's_and_b32 {sX8}, s2, 7'); I(f'v_and_b32 {vN}, 15, v0'); I(f'v_lshrrev_b32 v{vAd+1}, 4, v0')
        if self.opt.get('split2', 4) == 4:
            I(f's_lshr_b32 {sG}, {sX8}, 2'); I(f's_lshr_b32 {sT[0]}, {sY}, 2'); I(f's_lshl3_add_u32 {sG}, {sG}, {sT[0]}')
            I(f's_and_b32 {sM}, s2, 3'); I(f's_and_b32 {sT[0]}, {sY}, 3'); I(f's_lshl2_add_u32 {sM}, {sM}, {sT[0]}')
        elif self.opt.get('split2', 4):
            I(f's_lshr_b32 {sG}, {sX8}, 1'); I(f's_lshl_b32 {sG}, {sG}, 2'); I(f's_lshr_b32 {sT[0]}, {sY}, 3'); I(f's_add_u32 {sG}, {sG}, {sT[0]}')
            I(f's_and_b32 {sM}, s2, 1'); I(f's_lshl_b32 {sM}, {sM}, 3'); I(f's_and_b32 {sT[0]}, {sY}, 7'); I(f's_add_u32 {sM}, {sM}, {sT[0]}')
        else:
            I(f's_lshl_b32 {sG}, {sX8}, 1'); I(f's_lshr_b32 {sT[0]}, {sY}, 4'); I(f's_add_u32 {sG}, {sG}, {sT[0]}'); I(f's_and_b32 {sM}, {sY}, 15')
        I(f's_lshl4_add_u32 {sBLK}, {sG}, {sM}'); I(f's_lshr_b32 {sS1}, {sBLK}, 1')
        I(f'v_mul_u32_u24 v{vF}, 163840, v{vAd+1}'); I(f'v_mul_u32_u24 v{vF+1}, 80, {vN}')
        if self.opt.get('xt'): I(f'v_min_u32 v{vF+2}, 9, {vN}'); I(f'v_lshl_add_u32 v{vF+2}, v{vF+2}, 7, v{vF}')
        I(f'v_add_u32 v{vF}, v{vF}, v{vF+1}')
        I(f's_mul_i32 {sP[12]}, {sS1}, 1280'); I('s_mov_b32 s6, 2621440'); I('s_mov_b32 s7, 0x20000')
        I(f's_mov_b32 s30, {WS_SIZE}'); I(f's_mov_b32 s31, 0x20000'); I(f's_mov_b32 {sP[13]}, {WS_EP}')
        self.wait_lg0()
        if self.stamps and self.opt.get('fine'): I('s_memrealtime s[92:93]'); I('s_memtime s[94:95]')
        if self.opt.get('xt'): I(f'buffer_load_dword v{vF+3}, v{vF+2}, {X}, {sP[12]} offen nt')
        for e in range(5): I(f'buffer_load_dwordx4 {vr(vX + 4*e, 4)}, v{vF}, {X}, {sP[12]} offen offset:{16*e}')
        I(f'buffer_load_dword {vTag}, off, {WS}, {sP[13]} sc1')
        I('v_lshrrev_b32 v6, 6, v0'); I(f'v_and_b32 {vLane}, 63, v0')
        I(f'v_readfirstlane_b32 {sW}, v6')
        I('s_add_u32 s32, s60, (L_tab - L_pc)'); I('s_addc_u32 s33, s61, 0')
        I(f's_mov_b32 s34, {len(TBLOB)}'); I('s_mov_b32 s35, 0x20000')
        I(f'v_lshlrev_b32 {vL16}, 4, {vLane}'); I(f's_and_b32 {sHH}, {sY}, 1'); I(f's_mov_b32 {sCNT}, 0x20000')
        self.stamp('entry'); self.stamp('kernarg', fine=True)
        for srd, n in ((8, 1314816), (12, 1314816), (16, 2211840), (20, 2211840), (24, 2621440)):
            I(f's_mov_b32 s{srd+2}, {n}'); I(f's_mov_b32 s{srd+3}, 0x20000')
        if self.opt.get('no_w1'): I('s_mov_b32 s18, 0')
        if self.opt.get('no_W'): I('s_mov_b32 s10, 0'); I('s_mov_b32 s14, 0'); I('s_mov_b32 s22, 0')
        I(f's_mul_i32 s86, {sW}, 7168'); I(f's_lshl_b32 s63, {sW}, 13')
        I(f's_and_b32 {sT[0]}, {sW}, 1'); I(f's_lshl1_add_u32 {sT[7]}, {sHH}, {sT[0]}')
        I(f's_lshl_b32 {sP[14]}, {sT[7]}, 13'); I(f's_add_u32 {sP[15]}, {sP[14]}, 4096')
        I(f's_lshl_b32 {sP[7]}, {sT[7]}, 10'); I(f's_add_u32 {sP[7]}, {sP[7]}, {TOFF["TW"]}'); I(f'v_lshlrev_b32 v{vAd}, 6, {vN}')
        self.b1 = [[f'buffer_load_dwordx4 {ar(aB1 + 4*f, 4)}, {vL16}, {TAB}, {sP[14 + (f >> 2)]} offen offset:{(f & 3)*1024}'] for f in (0, 4, 1, 5, 2, 6, 3, 7)]
        self.tw = [f'buffer_load_dwordx4 {vr(vTW + 4*f, 4)}, v{vAd}, {TAB}, {sP[7]} offen offset:{16*f}' for f in range(4)]
        self.ad = [f's_mov_b32 s88, {TOFF["AD"]}', f'buffer_load_dwordx4 {vr(vW1A, 4)}, {vL16}, {TAB}, s88 offen', f'buffer_load_dwordx3 {vr(vW1A + 4, 3)}, {vL16}, {TAB}, s88 offen offset:1024']
        self.poC = [[f'buffer_store_dwordx4 {vr(vPo, 4)}, v{vWi}, {WS}, {sP[(10, 10, 12)[i]]} offen offset:{i*128} sc1'] for i in range(3)]
    def touch_addr(self):
        I = self.I; a = vWr
        I(f's_lshl2_add_u32 {sT[0]}, {sY}, {sW}'); I(f's_sub_u32 {sT[0]}, {sT[0]}, 80')
        I(f's_sub_u32 {sT[3]}, 16, {sX8}'); I(f's_cmp_eq_u32 {sX8}, 0'); I(f's_cselect_b32 {sT[3]}, 8, {sT[3]}')
        I(f's_sub_u32 {sT[3]}, {sT[3]}, {sX8}'); I(f's_mul_i32 {sT[3]}, {sT[3]}, 642')
        I(f'v_and_b32 v{a}, 7, v0'); I(f'v_min_u32 v{a}, 5, v{a}'); I(f'v_lshlrev_b32 v{a}, 7, v{a}'); I(f'v_bfe_u32 v{a+1}, v0, 3, 1'); I(f'v_mad_u32_u24 v{a}, v{a+1}, {sT[3]}, v{a}')
        I(f'v_min_u32 v{a+1}, 2, {vG}'); I(f'v_mul_u32_u24 v{a+1}, {16*642}, v{a+1}'); I(f'v_add_u32 v{a}, v{a}, v{a+1}')
        I(f's_mul_i32 {sP[16]}, {sT[0]}, 48'); I(f's_add_u32 {sP[16]}, {sP[16]}, {sX8}'); I(f's_mul_i32 {sP[16]}, {sP[16]}, 642')
        I(f's_lshl3_add_u32 {sP[17]}, {sT[0]}, {sX8}'); I(f's_mul_i32 {sP[17]}, {sP[17]}, {45*128}')
        I(f'v_min_u32 v{a+2}, 22, {vLane}'); I(f'v_lshlrev_b32 v{a+2}, 7, v{a+2}')
        return dict(w=[[f'buffer_load_ushort v{vJunk}, v{a}, {WR}, {sP[16]} offen']], v=[[f'buffer_load_ushort v{vJunk+1}, v{a}, {WI}, {sP[16]} offen']],
                    d=[[f'buffer_load_dword v{vFl+1}, v{a+2}, {W1}, {sP[17]} offen']], e=[[f'buffer_load_dword v{vFl+2}, v{a+2}, {W1}, {sP[17]} offen offset:{23*128}']])
    def touch_all(self):
        I = self.I; a = vWr + 4; u = sP[19]
        I(f's_lshl2_add_u32 {u}, {sY}, {sW}')
        I(f's_sub_u32 {sT[3]}, 16, {sX8}'); I(f's_cmp_eq_u32 {sX8}, 0'); I(f's_cselect_b32 {sT[3]}, 8, {sT[3]}')
        I(f's_sub_u32 {sT[3]}, {sT[3]}, {sX8}'); I(f's_mul_i32 {sT[3]}, {sT[3]}, 642')
        I(f'v_and_b32 v{a}, 7, v0'); I(f'v_min_u32 v{a}, 5, v{a}'); I(f'v_lshlrev_b32 v{a}, 7, v{a}'); I(f'v_bfe_u32 v{a+1}, v0, 3, 1'); I(f'v_mad_u32_u24 v{a}, v{a+1}, {sT[3]}, v{a}')
        I(f'v_bfe_u32 v{a+1}, v0, 4, 2'); I(f'v_lshl_add_u32 v{a}, v{a+1}, 28, v{a}')
        I(f's_lshl4_add_u32 {sP[4]}, {u}, {sX8}'); I(f's_mul_i32 {sP[4]}, {sP[4]}, 642')
        if not self.opt.get('rd', 1): return dict(x=[[f'buffer_load_ushort v{vJunk}, v{a}, {WR}, {sP[4]} offen']], y=[[f'buffer_load_ushort v{vJunk+1}, v{a}, {WI}, {sP[4]} offen']])
        I(f'v_min_u32 v{a+2}, 17, {vLane}'); I(f'v_lshlrev_b32 v{a+2}, 7, v{a+2}')
        I(f's_mul_i32 {sP[5]}, {sX8}, {7*40960}'); I(f's_mul_i32 {sT[3]}, {u}, {18*128}'); I(f's_add_u32 {sP[5]}, {sP[5]}, {sT[3]}')
        I(f'v_and_b32 v{a+3}, 7, v0'); I(f'v_min_u32 v{a+3}, 6, v{a+3}'); I(f'v_lshrrev_b32 v{a+1}, 3, {vLane}'); I(f'v_min_u32 v{a+1}, 4, v{a+1}')
        if self.opt.get('shalf'):
            I(f's_lshr_b32 {sT[3]}, {sX8}, 2'); I(f's_xor_b32 {sT[3]}, {sT[3]}, {u}'); I(f's_and_b32 {sT[3]}, {sT[3]}, 1')
            I(f'v_lshl_add_u32 v{a+1}, v{a+1}, 1, {sT[3]}'); I(f's_sub_u32 {sT[3]}, 4, {sT[3]}'); I(f'v_min_u32 v{a+1}, {sT[3]}, v{a+1}')
        I(f'v_mul_u32_u24 v{a+1}, 3456, v{a+1}'); I(f'v_lshl_add_u32 v{a+3}, v{a+3}, 7, v{a+1}')
        I(f's_and_b32 {sT[3]}, s2, 3'); I(f's_mul_i32 {sT[3]}, {sT[3]}, 896'); I(f's_mul_i32 {sP[6]}, {u}, {5*3456}'); I(f's_add_u32 {sP[6]}, {sP[6]}, {sT[3]}')
        return dict(x=[[f'buffer_load_ushort v{vJunk}, v{a}, {WR}, {sP[4]} offen']], y=[[f'buffer_load_ushort v{vJunk+1}, v{a}, {WI}, {sP[4]} offen']],
                    r=[[f'buffer_load_dword v{vFl+1}, v{a+2}, {W2}, {sP[5]} offen']], s=[[f'buffer_load_dword v{vFl+2}, v{a+3}, {W1}, {sP[6]} offen']])
    def tile(self):
        I = self.I
        I(f's_sub_u32 {sT[3]}, 16, {sX8}'); I(f's_cmp_eq_u32 {sX8}, 0'); I(f's_cselect_b32 {sT[3]}, 8, {sT[3]}')
        I(f's_cmp_lt_u32 {sY}, 10'); I(f's_cselect_b32 {sTILE}, {sX8}, {sT[3]}'); I(f's_cselect_b32 {sT[4]}, 0, 10')
        I(f's_mul_i32 {sTILE}, {sTILE}, 10'); I(f's_add_u32 {sTILE}, {sTILE}, {sY}'); I(f's_sub_u32 {sTILE}, {sTILE}, {sT[4]}')
    def p1a(self, pre, per):
        I = self.I
        sRH = sP[1]
        vX = VW; vF = VW + 20; vTW = VW + 40; vA2 = VW + 56; vAd = VW + 64
        vAf = VW + 76; vAcc = VW + 124; vT = VW + 148
        self.sprinkle(pre, per)
        I(f's_mul_i32 {sBLK}, {sBLK}, {TS}')
        for i in range(4): I(f'v_mov_b32 v{vPo+i}, -1')
        I(f'v_lshrrev_b32 {vG}, 4, {vLane}')
        I(f's_mov_b32 s44, {f32(math.cos(2*math.pi/5))}'); I(f's_mov_b32 s45, {f32(math.cos(4*math.pi/5))}')
        I(f's_mov_b32 s46, {f32(math.sin(2*math.pi/5))}'); I(f's_mov_b32 s47, {f32(math.sin(4*math.pi/5))}')
        I(f's_mov_b32 {sMASK}, 0xffff')
        aWr, aWrO, aRd, aRdO, aRw, aRr, aXc, aExW, aExR, aSt = [vAd + 2 + i for i in range(10)]
        I(f'v_and_b32 v{aWr}, 7, v0'); I(f'v_xor_b32 v{aWr}, v{vAd+1}, v{aWr}'); I(f'v_lshlrev_b32 v{aWr}, 4, v{aWr}')
        I(f'v_lshl_add_u32 v{aWr}, {vN}, 8, v{aWr}'); I(f'v_add_u32 v{aWr}, {L_XF}, v{aWr}'); I(f'v_xor_b32 v{aWrO}, 128, v{aWr}')
        I(f's_lshr_b32 {sRH}, {sW}, 1'); I(f's_lshl_b32 {sT[4]}, {sRH}, 3')
        I(f'v_lshrrev_b32 v{vT}, 2, {vN}'); I(f'v_lshlrev_b32 v{vT}, 1, v{vT}'); I(f'v_and_b32 v{vT+1}, 1, {vN}'); I(f'v_add3_u32 v{vT}, v{vT}, v{vT+1}, {sT[4]}')
        I(f'v_bfe_u32 v{vT+1}, {vN}, 1, 1'); I(f'v_lshlrev_b32 v{vT+2}, 3, v{vT+1}'); I(f'v_xor_b32 v{vT}, v{vT}, v{vT+2}'); I(f'v_xor_b32 v{vT}, v{vT}, {vG}')
        I(f'v_lshlrev_b32 v{vT}, 4, v{vT}'); I(f'v_lshl_add_u32 v{vT}, {vG}, 8, v{vT}'); I(f'v_lshl_add_u32 v{vT}, v{vT+1}, 12, v{vT}')
        I(f'v_add_u32 v{aRd}, {L_XF}, v{vT}'); I(f'v_xor_b32 v{aRdO}, 64, v{aRd}')
        I(f'v_cvt_f32_u32 v{vT}, {vN}'); I(f'v_mul_f32 v{vT}, {f32(1/2048.)}, v{vT}')
        I(f'v_lshlrev_b32 v{vT+1}, 8, {vG}'); I(f'v_add_u32 v{vT+1}, {sS1}, v{vT+1}'); I(f'v_cvt_f32_u32 v{vT+1}, v{vT+1}')
        for e in range(4):
            I(f'v_add_f32 v{vT+2}, {f32(128.0*((e & 1) + 8*(e >> 1)))}, v{vT+1}'); I(f'v_mul_f32 v{vT+2}, v{vT}, v{vT+2}')
            I(f'v_cos_f32 v{vT+3}, v{vT+2}'); I(f'v_sin_f32 v{vT+4}, v{vT+2}')
            I(f'v_cvt_pk_f16_f32 v{vA2+e}, v{vT+3}, v{vT+4}'); I(f'v_cvt_pk_f16_f32 v{vA2+4+e}, -v{vT+4}, v{vT+3}')
        I(f'v_lshlrev_b32 v{aRw}, 2, v{vAd+1}'); I(f'v_add_u32 v{aRw}, {L_R}, v{aRw}')
        I(f's_lshl_b32 {sT[4]}, {sRH}, 5'); I(f's_add_u32 {sT[4]}, {sT[4]}, {L_R}'); I(f'v_lshl_add_u32 v{aRr}, {vG}, 3, {sT[4]}')
        I(f's_lshl_b32 {sT[4]}, {sHH}, 5'); I(f's_add_u32 {sT[4]}, {sT[4]}, {L_R + 64}'); I(f'v_and_b32 v{vMu}, 7, v0'); I(f'v_lshl_add_u32 v{vMu}, v{vMu}, 2, {sT[4]}')
        I(f's_lshl_b32 {sT[4]}, {sHH}, 3'); I(f's_and_b32 {sT[5]}, {sW}, 1'); I(f's_lshl_b32 {sT[6]}, {sT[5]}, 2'); I(f's_xor_b32 {sT[4]}, {sT[4]}, {sT[6]}')
        I(f'v_xor_b32 v{aXc}, {vN}, {vG}'); I(f'v_xor_b32 v{aXc}, {sT[4]}, v{aXc}')
        I(f'v_lshlrev_b32 v{aXc}, 4, v{aXc}'); I(f'v_lshl_add_u32 v{aXc}, {vG}, 8, v{aXc}')
        I(f'v_lshrrev_b32 v{vT+1}, 3, {vN}'); I(f'v_lshl_add_u32 v{aXc}, v{vT+1}, 12, v{aXc}')
        I(f's_lshl_b32 {sT[4]}, {sW}, 10'); I(f's_add_u32 {sT[4]}, {sT[4]}, {L_XF}'); I(f'v_add_u32 v{aXc}, {sT[4]}, v{aXc}')
        I(f's_mul_i32 {sT[4]}, {sT[5]}, 5120'); I(f's_add_u32 {sT[4]}, {sT[4]}, {L_EX}'); I(f's_lshl_b32 {sP[2]}, {sT[5]}, 6')
        I(f's_lshl_b32 {sT[5]}, {sRH}, 3'); I(f's_add_u32 {sT[5]}, {sT[5]}, {sT[4]}'); I(f'v_add_u32 v{aExW}, {sT[5]}, {vL16}')
        I(f's_mul_i32 {sT[5]}, {sRH}, 3072'); I(f's_add_u32 {sT[5]}, {sT[5]}, {sT[4]}'); I(f'v_add_u32 v{aExR}, {sT[5]}, {vL16}')
        I(f'v_mul_u32_u24 v{aSt}, 2560, {vG}'); I(f'v_lshl_add_u32 v{aSt}, {vN}, 2, v{aSt}')
        I(f's_add_u32 {sP[2]}, {sP[2]}, {sBLK}'); I(f's_mul_i32 {sT[5]}, {sRH}, 384'); I(f's_add_u32 {sP[2]}, {sP[2]}, {sT[5]}')
        I(f's_and_b32 {sT[4]}, {sW}, 1'); I(f's_mul_i32 {sT[4]}, {sT[4]}, {5120 - 64}'); I(f's_add_u32 {sP[10]}, {sP[2]}, {sT[4]}'); I(f's_add_u32 {sP[10]}, {sP[10]}, {O_T2}')
        I(f's_lshl_b32 {sT[4]}, {sRH}, 26'); I(f's_add_u32 {sP[12]}, {sP[10]}, {sT[4]}')
        I(f'v_lshrrev_b32 v{vWi}, 3, {vLane}'); I(f'v_mul_u32_u24 v{vWi}, {640 - 128}, v{vWi}'); I(f'v_add_u32 v{vWi}, v{vWi}, {vL16}')
        I(f's_lshl1_add_u32 {sP[3]}, {sS1}, {sHH}'); I(f's_lshl2_add_u32 {sP[3]}, {sP[3]}, {sW}'); I(f's_lshl_b32 {sP[3]}, {sP[3]}, 6'); I(f's_add_u32 {sP[3]}, {sP[3]}, {WS_FLA}')
        I(f's_mul_i32 s85, {sW}, {160*3456}'); I(f's_mul_i32 {sT[5]}, {sM}, 224'); I(f's_add_u32 s85, s85, {sT[5]}');
        I(f'v_mov_b32 v{vT+2}, 0x3f803f80'); I(f'v_lshrrev_b32 v211, 3, {vLane}'); I(f'v_mul_u32_u24 v211, {FREP - 64}, v211'); I(f'v_lshl_add_u32 v211, {vLane}, 3, v211')
        self.pre_rest = self.bgq; self.bgq = None
    def p1b(self, bulk, per):
        I = self.I
        sRH = sP[1]
        vX = VW; vF = VW + 20; vTW = VW + 40; vA2 = VW + 56; vAd = VW + 64
        vAf = VW + 76; vAcc = VW + 124; vT = VW + 148
        aWr, aWrO, aRd, aRdO, aRw, aRr, aXc, aExW, aExR, aSt = [vAd + 2 + i for i in range(10)]
        vs, vq, vone = f'v{vT}', f'v{vT+1}', f'v{vT+2}'
        I(f'v_cmp_gt_u32 vcc, 8, {vN}')
        self.stamp('prework', fine=True)
        self.stamp('x arrived', wait=vX + 19)
        self.wait_regs([vX + 19])
        self.allow_bg_cond = True
        self.sprinkle(bulk, per)
        for c in range(5):
            for e in range(4):
                a = vX + (10*e + c)//2; b = vX + (10*e + 5 + c)//2
                if c % 2 == 0: I(f'v_bfi_b32 v{vF + 4*c + e}, {sMASK}, v{a}, v{b}')
                else: I(f'v_alignbit_b32 v{vF + 4*c + e}, v{b}, v{a}, 16')
            I(f'ds_write_b128 v{aWrO if c & 1 else aWr}, {vr(vF + 4*c, 4)} offset:{c*4096}')
            for e in range(4*c, 4*c + 4):
                I(f'v_dot2_f32_bf16 {vs}, v{vX+e}, {vone}, {vs if e else 0}'); I(f'v_dot2_f32_bf16 {vq}, v{vX+e}, v{vX+e}, {vq if e else 0}')
        I(f'v_readfirstlane_b32 s62, {vTag}')
        self.barrier()
        self.stamp('p1 barA', fine=True)
        for ks in range(4):
            for tau in range(3):
                I(f'ds_read_b128 {vr(vAf + 4*(ks*3 + tau), 4)}, v{aRdO if ks & 1 else aRd} offset:{tau*8192 + ks*1024}')
        I('s_mul_i32 s62, s62, 0x9E3779B1'); I('s_add_u32 s62, s62, 0x7F4A7C15'); I(f'v_mov_b32 {vTag}, s62'); I(f'v_mov_b32 v{vWr+8}, s62'); I(f'v_mov_b32 v{vWr+9}, s62')
        fill = []
        for sh in (8, 4, 2, 1):
            fill += [f'v_add_f32_dpp {vs}, {vs}, {vs} row_ror:{sh} row_mask:0xf bank_mask:0xf', f'v_add_f32_dpp {vq}, {vq}, {vq} row_ror:{sh} row_mask:0xf bank_mask:0xf']
        fill += self.finish_stats(vs, vq, 1.0/(math.sqrt(640.0)*4)) + [f'ds_write_b32 v{aRw}, {vq}', f'ds_write_b32 v{aRw}, {vs} offset:64']
        fill += [f'ds_read_b128 {vr(vXR + 4*tau, 4)}, v{aXc} offset:{tau*8192}' for tau in range(3)]
        mf = []
        for ks in range(4):
            for tau in range(3):
                for p in range(2):
                    d = vr(vAcc + 4*(tau*2 + p), 4)
                    mf.append(f'v_mfma_f32_16x16x32_bf16 {d}, {vr(vAf + 4*(ks*3 + tau), 4)}, {ar(aB1 + 4*(p*4 + ks), 4)}, {"0" if ks == 0 else d}')
        self.weave(mf, fill, per=2)
        self.barrier()
        self.stamp('p1 barB', fine=True)
        vR = vAd
        I(f'ds_read_b64 {vr(vR, 2)}, v{aRr}'); I(f'ds_read_b32 v{vMu}, v{vMu}')
        for i in range(4): I(f'v_cndmask_b32 v{vXR+8+i}, 0, v{vXR+8+i}, vcc')
        Vr = [vAcc + 4*((c >> 1)*2 + 0) + 2*(c & 1) for c in range(5)]
        Vi = [vAcc + 4*((c >> 1)*2 + 1) + 2*(c & 1) for c in range(5)]
        pool = [vX + 2*i for i in range(20)] + [vAf + 2*i for i in range(24)]
        zr = [Vr[0]] + [pool.pop(0) for _ in range(4)]; zi = [Vi[0]] + [pool.pop(0) for _ in range(4)]
        for c in range(1, 5):
            t1, t2, t3 = self.bc(vTW + c - 1), self.bc(vTW + 4 + c - 1), self.bc(vTW + 8 + c - 1)
            self.pk('mul', zr[c], Vr[c], t1[0], bsel=t1[1]); self.pk('mul', zi[c], Vi[c], t3[0], bsel=t3[1])
            self.pk('fma', zr[c], Vi[c], t2[0], zr[c], bsel=t2[1]); self.pk('fma', zi[c], Vr[c], t2[0], zi[c], bsel=t2[1], neg_b=True)
        u0, u1, u2, v1, v2 = self.dft5_half(zr, [pool.pop(0) for _ in range(9)])
        U0, U1, U2, V1, V2 = self.dft5_half(zi, [pool.pop(0) for _ in range(9)])
        mu = self.bc(vTW + 12)
        Xr = [pool.pop(0) for _ in range(5)]; Xi = [U0] + [pool.pop(0) for _ in range(4)]
        fm = lambda d, a, c, neg_c=False: self.pk('fma', d, a, mu[0], c, bsel=mu[1], neg_c=neg_c)
        comb = [lambda: self.pk('mul', Xr[0], u0, mu[0], bsel=mu[1]),
                lambda: (fm(Xr[1], V1, u1), fm(Xi[1], U1, v1, True)), lambda: (fm(Xr[2], V2, u2), fm(Xi[2], U2, v2, True)),
                lambda: (fm(Xr[3], u2, V2, True), fm(Xi[3], v2, U2)), lambda: (fm(Xr[4], u1, V1, True), fm(Xi[4], v1, U1))]
        for m5 in range(5):
            comb[m5]()
            self.pk('mul', Xr[m5], Xr[m5], vR); self.pk('mul', Xi[m5], Xi[m5], vR)
            d = vT + 2*m5
            I(f'v_cvt_pk_f16_f32 v{d}, v{Xr[m5]}, v{Xi[m5]}'); I(f'v_cvt_pk_f16_f32 v{d+1}, v{Xr[m5]+1}, v{Xi[m5]+1}')
            I(f'ds_write_b64 v{aExW}, {vr(d, 2)} offset:{m5*1024}')
        self.stamp('p1 valu', fine=True)
        self.barrier()
        vB = vX; vO = vX + 12; vP = vAf
        for sl in range(3): I(f'ds_read_b128 {vr(vB + 4*sl, 4)}, v{aExR} offset:{sl*1024}')
        rest = self.bgq; self.bgq = None
        for sl in range(3):
            for p in range(2):
                I(f'v_mfma_f32_16x16x32_f16 {vr(vO + 8*sl + 4*p, 4)}, {vr(vA2 + 4*p, 4)}, {vr(vB + 4*sl, 4)}, 0')
        for sl in range(3):
            if sl == 2:
                snap = self.cond_begin(); L = self.newlabel('Lp1')
                I(f's_cmp_eq_u32 {sRH}, 1'); I(f's_cbranch_scc1 {L}')
            for i in range(4):
                I(f'v_cvt_pk_f16_f32 v{vP + 4*sl + i}, v{vO + 8*sl + i}, v{vO + 8*sl + 4 + i}')
                I(f'buffer_store_dword v{vP + 4*sl + i}, v{aSt}, {WS}, {sP[2]} offen offset:{sl*128 + i*640} sc1')
            if sl == 2: self.cond_end(snap); self.label(L)
        self.stamp('p1 end')
        self.toks.pop(self.poC[-1][0])
        self.wait_vm0(True)
        I(f'buffer_store_dwordx2 {vr(vWr+8, 2)}, v211, {WS}, {sP[3]} offen sc1')
        for it in rest:
            for x in it: I(x)

    def frag_items(self, name, areg, sbase, stmp):
        return [([f's_add_u32 {stmp}, {sbase}, {TOFF[name] + f*1024}'] if f % 4 == 0 else []) +
                [f'buffer_load_dwordx4 {ar(areg + 4*f, 4)}, {vL16}, {TAB}, {stmp} offen offset:{(f & 3)*1024}'] for f in range(8)]
    def p3_table_items(self, t, s0, s1):
        L = self.frag_items('A3', aA3, s0, s1)
        L.append([f's_lshl_b32 {s1}, {sW}, 10', f's_add_u32 {s1}, {s1}, {TOFF["TW"]}', f'v_lshlrev_b32 v{t}, 6, {vN}'] +
                 [f'buffer_load_dwordx4 {vr(vTW3 + 4*f, 4)}, v{t}, {TAB}, {s1} offen offset:{16*f}' for f in range(4)])
        return L
    def dft32(self, inv, t):
        I = self.I
        I(f'v_and_b32 v{t}, 31, {vLane}'); I(f'v_lshrrev_b32 v{t+1}, 5, {vLane}')
        if inv: I(f'v_lshl_add_u32 v{t}, v{t}, 2, {sW}'); I(f'v_lshlrev_b32 v{t+1}, 2, v{t+1}')
        else: I(f'v_lshl_add_u32 v{t+1}, v{t+1}, 4, {sW}')
        I(f'v_cvt_f32_u32 v{t}, v{t}'); I(f'v_cvt_f32_u32 v{t+1}, v{t+1}'); I(f'v_mul_f32 v{t}, {f32(1/128.)}, v{t}'); I(f'v_mul_f32 v{t+1}, v{t}, v{t+1}')
        cv = 'v_cvt_pk_bf16_f32' if inv else 'v_cvt_pk_f16_f32'; base = aI2 if inv else aF2
        for i0 in range(0, 16, 2):
            for j in range(2):
                i = i0 + j; k = (8*(i >> 2) + (i & 3))*(1 if inv else 4); r = t + 2 + 3*j
                I(f'v_fmamk_f32 v{r}, v{t}, {f32(float(k))}, v{t+1}'); I(f'v_cos_f32 v{r+1}, v{r}'); I(f'v_sin_f32 v{r+2}, v{r}')
            for j in range(2):
                r = t + 2 + 3*j; s0, s1 = ('-', '') if inv else ('', '-')
                I(f'{cv} v{r}, v{r+1}, {s0}v{r+2}'); I(f'{cv} v{r+1}, {s1}v{r+2}, v{r+1}')
            for j in range(2):
                r = t + 2 + 3*j
                I(f'v_accvgpr_write_b32 a{base + i0 + j}, v{r}'); I(f'v_accvgpr_write_b32 a{base + 16 + i0 + j}, v{r+1}')
    def p3_consts(self):
        I = self.I; t = 196
        sc = 2/math.sqrt(640.0)/4/128
        I(f'v_lshrrev_b32 v{t+1}, 2, {vN}'); I(f'v_and_b32 v{t+2}, 1, {vN}'); I(f'v_lshl_add_u32 v{t+1}, v{t+1}, 1, v{t+2}')
        I(f's_lshl_b32 {sT[0]}, {sHH}, 10'); I(f's_add_u32 {sT[0]}, {sT[0]}, {sS1}')
        I(f'v_lshlrev_b32 v{t+1}, 7, v{t+1}'); I(f'v_add_u32 v{t+1}, {sT[0]}, v{t+1}'); I(f'v_cvt_f32_u32 v{t+1}, v{t+1}'); I(f'v_mul_f32 v{t+1}, {f32(-1/2048.)}, v{t+1}')
        I(f'v_bfe_u32 v{t+2}, {vN}, 1, 1'); I(f'v_cvt_f32_u32 v{t+2}, v{t+2}'); I(f'v_mul_f32 v{t+2}, {f32(0.25)}, v{t+2}')
        I(f'v_lshlrev_b32 v{t+3}, 2, {vG}'); I(f'v_cvt_f32_u32 v{t+3}, v{t+3}')
        for e in range(4):
            I(f'v_add_f32 v{t+4}, {f32(float(e))}, v{t+3}'); I(f'v_fma_f32 v{t+4}, v{t+4}, v{t+1}, v{t+2}')
            I(f'v_cos_f32 v{t+5}, v{t+4}'); I(f'v_sin_f32 v{t+6}, v{t+4}')
            I(f'v_mul_f32 v{t+5}, {f32(sc)}, v{t+5}'); I(f'v_mul_f32 v{t+6}, {f32(sc)}, v{t+6}')
            I(f'v_cvt_pk_bf16_f32 v{vA3+e}, v{t+5}, v{t+6}')

    def flag_off(self, base, idx, dst):
        self.I(f's_lshl_b32 {dst}, {idx}, 7'); self.I(f's_add_u32 {dst}, {dst}, {base}')
    def flag_store(self, soff, voff):
        I = self.I; self.inbg = True
        snap = self.cond_begin(); L = self.newlabel('Lsig')
        I(f's_cmp_lg_u32 {sW}, 0'); I(f's_cbranch_scc1 {L}')
        I(f'buffer_store_dwordx2 {vr(vWr+8, 2)}, v211, {WS}, {soff} offen sc1')
        self.cond_end(snap); self.label(L); self.inbg = False
    def flag_load(self, kind, soff, issue=True):
        I = self.I
        if kind == 'A':
            I(f's_and_b32 {soff}, {sTILE}, 1'); I(f's_lshl1_add_u32 {soff}, {sW}, {soff}'); I(f's_lshl_b32 {soff}, {soff}, 8'); I(f's_add_u32 {soff}, {soff}, {WS_FLA}')
            I(f's_and_b32 {sT[0]}, s89, 0x100'); I(f's_lshr_b32 {sT[0]}, {sT[0]}, 1'); I(f's_add_u32 {soff}, {soff}, {sT[0]}')
            I(f'v_lshrrev_b32 v7, 1, {vLane}'); I('v_lshlrev_b32 v254, 11, v7'); I(f'v_and_b32 v7, 1, {vLane}'); I('v_lshl_add_u32 v254, v7, 6, v254')
        if kind == 'B':
            self.cb5(soff); I(f's_lshr_b32 {soff}, {soff}, 1'); I(f'v_lshrrev_b32 v254, 1, {vLane}'); I(f'v_lshl_add_u32 v254, v254, 2, {soff}')
            for _ in range(2): I(f'v_subrev_u32 v7, 12, v254'); I(f'v_min_u32 v254, v254, v7')
            I(f'v_and_b32 v7, 1, {vLane}'); I(f'v_lshl_add_u32 v254, v254, 3, v7'); I(f'v_lshl_add_u32 v254, {sW}, 1, v254')
            I(f's_mul_i32 {soff}, {sG}, 6'); I(f's_sub_u32 {soff}, {soff}, 14'); I(f'v_add_u32 v7, {soff}, {vLane}')
            I(f'v_cmp_gt_u32 vcc, 14, {vLane}'); I(f'v_cndmask_b32 v254, v7, v254, vcc'); I(f'v_add_u32 v254, {512 + 160}, v254')
            I(f's_lshl1_add_u32 {soff}, {sS1}, {sHH}'); I(f's_xor_b32 {soff}, {soff}, 1'); I(f'v_and_b32 v7, 3, {vLane}'); I(f'v_lshl_add_u32 v7, {soff}, 2, v7')
            I(f'v_lshlrev_b32 v254, 1, v254'); I(f'v_cmp_gt_u32 vcc, 20, {vLane}'); I(f'v_cndmask_b32 v254, v7, v254, vcc'); I(f'v_lshlrev_b32 v254, 6, v254'); I(f's_mov_b32 {soff}, {WS_FLA}')
        if kind == 'H':
            I(f's_mul_i32 {soff}, {sW}, {24*128}'); I(f's_add_u32 {soff}, {soff}, {WS_FLB + 160*128}'); I(f'v_min_u32 v7, 23, {vLane}'); I('v_lshlrev_b32 v254, 7, v7')
        I(f's_mul_i32 {sT[0]}, {sX8}, {FREP}'); I(f's_add_u32 {soff}, {soff}, {sT[0]}')
        ld = f'buffer_load_dword v{vFl}, v254, {WS}, {soff} offen sc1'
        if issue: I(ld)
        return ld
    def retry(self, loads, test, inline=True):
        I = self.I; br = test[-1]; test = test[:-1]
        Lf = self.newlabel('Lfix'); Lb = self.newlabel('Lok')
        inv = {'s_cbranch_vccnz': 's_cbranch_vccz', 's_cbranch_scc1': 's_cbranch_scc0'}[br]
        body = [f'{Lf}:', f'    s_add_i32 {sCNT}, {sCNT}, -1', f'    s_cmp_lt_i32 {sCNT}, 0', f'    s_cbranch_scc1 {Lb}'] + ['    ' + x for x in loads]
        g = Gen(); g.I('s_waitcnt vmcnt(0)')
        for x in test: g.I(x)
        g.I(f'{br} {Lf}')
        body += g.out
        def first():
            for x in test: I(x)
        first.items = list(test)
        def second():
            if inline:
                I(f'{inv} {Lb}'); self.out += body
            else:
                I(f'{br} {Lf}'); self.tail += body + [f'    s_branch {Lb}']
            self.label(Lb)
        return first, second
    def flag_check(self, ld):
        a, b = self.retry([ld], [f'v_cmp_ne_u32 vcc, s62, v{vFl}', 's_cbranch_vccnz'])
        a(); b()
    def max_test(self, regs, t):
        regs = list(regs); L = []
        if len(regs) == 2: L.append(f'v_max_u32 v{t}, v{regs[0]}, v{regs[1]}')
        else:
            L.append(f'v_max3_u32 v{t}, v{regs[0]}, v{regs[1]}, v{regs[2]}'); regs = regs[3:]
            while regs:
                L.append(f'v_max3_u32 v{t}, v{t}, v{regs[0]}, v{regs[1]}' if len(regs) > 1 else f'v_max_u32 v{t}, v{t}, v{regs[0]}'); regs = regs[2:]
        return L + [f'v_cmp_eq_u32 vcc, -1, v{t}', 's_cbranch_vccnz']

    def w_addr(self, t):
        I = self.I
        I(f's_mul_i32 {sT[0]}, {sTILE}, 6554'); I(f's_lshr_b32 {sT[0]}, {sT[0]}, 16')
        I(f's_mul_i32 {sT[1]}, {sT[0]}, 10'); I(f's_sub_u32 {sT[1]}, {sTILE}, {sT[1]}')
        I(f's_lshr_b32 {sT[2]}, {sT[1]}, 1'); I(f's_and_b32 {sT[3]}, {sT[1]}, 1')
        I(f's_lshl_b32 {sT[4]}, {sT[2]}, 7'); I(f's_lshl_b32 {sT[5]}, {sT[3]}, 5'); I(f's_add_u32 {sT[4]}, {sT[4]}, {sT[5]}')
        I(f's_sub_u32 {sT[5]}, {640 - 31}, {sT[4]}')
        I(f's_cmp_lt_u32 {sT[2]}, 3'); I(f's_cselect_b32 {sT[4]}, {sT[4]}, {sT[5]}'); I(f's_cselect_b32 {sT[5]}, 1, -1')
        I(f's_lshl_b32 {sT[4]}, {sT[4]}, 1')
        I(f's_lshl_b32 {sT[6]}, {sT[2]}, 2'); I(f's_lshr_b32 {sT[6]}, 0x31425, {sT[6]}'); I(f's_and_b32 {sT[6]}, {sT[6]}, 15'); I(f's_lshl_b32 {sT[6]}, {sT[6]}, 7')
        I(f's_mul_i32 {sT[7]}, {sT[0]}, {sT[5]}'); I(f's_lshl_b32 {sT[7]}, {sT[7]}, 1'); I(f's_add_u32 {sT[7]}, {sT[7]}, {sT[4]}'); I(f's_and_b32 s89, {sT[7]}, 15')
        I(f's_sub_u32 {sT[4]}, {sT[4]}, s89')
        I(f's_and_b32 {sT[7]}, {sT[5]}, 0x100'); I(f's_or_b32 s89, s89, {sT[7]}')
        I(f's_lshl_b32 {sT[7]}, {sT[0]}, 1'); I(f's_and_b32 {sT[7]}, {sT[7]}, 15'); I(f's_sub_u32 {sT[6]}, {sT[6]}, {sT[7]}')
        I(f's_lshl_b32 {sT[7]}, {sT[7]}, 16'); I(f's_or_b32 s89, s89, {sT[7]}')
        I(f's_xor_b32 {sT[7]}, {sT[3]}, 1'); I(f's_lshl_b32 {sT[7]}, {sT[7]}, 24'); I(f's_or_b32 s89, s89, {sT[7]}')
        I(f's_lshl_b32 {sT[3]}, {sT[3]}, 30'); I(f's_add_u32 {sT[6]}, {sT[6]}, {sT[3]}')
        I(f's_lshl_b32 {sT[7]}, {sW}, 7'); I(f's_add_u32 {sT[0]}, {sT[0]}, {sT[7]}')
        I(f's_movk_i32 {sT[1]}, 10923'); I(f's_movk_i32 {sT[2]}, 642');
        I(f'v_mov_b32 v{t+4}, {sT[5]}'); I(f'v_mov_b32 v{t+5}, {sT[6]}')
        for pt in range(3):
            I(f'v_add_u32 v{t}, {64*pt}, {vLane}'); I(f'v_mul_u32_u24 v{t+1}, {sT[1]}, v{t}'); I(f'v_lshrrev_b32 v{t+1}, 16, v{t+1}')
            I(f'v_mul_u32_u24 v{t+2}, 6, v{t+1}'); I(f'v_sub_u32 v{t}, v{t}, v{t+2}')
            I(f'v_lshrrev_b32 v{t+2}, 3, v{t+1}'); I(f'v_mul_u32_u24 v{t+2}, 24, v{t+2}'); I(f'v_add_u32 v{t+1}, v{t+1}, v{t+2}')
            I(f'v_lshl_add_u32 v{t+1}, v{t+1}, 4, {sT[0]}')
            I(f'v_cmp_eq_u32 vcc, 5, v{t}'); I(f'v_lshl_add_u32 v{t}, v{t}, 4, {sT[4]}')
            I(f'v_cndmask_b32 v{t+2}, v{t+4}, 1, vcc'); I(f'v_cndmask_b32 v{t}, v{t}, v{t+5}, vcc')
            I(f'v_mul_i32_i24 v{t+1}, v{t+1}, v{t+2}'); I(f'v_and_b32 v{t+1}, 0x7ff, v{t+1}'); I(f'v_mad_u32_u24 v{vWA+pt}, v{t+1}, {sT[2]}, v{t}')
        self.lastW = f'buffer_load_dwordx4 v{vWA+2}, {WI}, 0 offen lds'
        return [[f's_add_u32 m0, s86, {L_W + a*3072 + pt*1024}', f'buffer_load_dwordx4 v{vWA+pt}, {(WR, WI)[a]}, 0 offen lds'] for pt in range(3) for a in range(2)]
    def w_regs(self, t):
        I = self.I
        I(f's_and_b32 {sT[0]}, s89, 15'); I(f's_bfe_u32 {sT[1]}, s89, 0x10008'); I(f's_bfe_u32 {sT[2]}, s89, 0x40010'); I(f's_lshr_b32 {sT[3]}, s89, 24')
        I(f'v_and_b32 v{t}, 31, {vLane}'); I(f's_mul_i32 {sT[4]}, {sT[1]}, 31'); I(f'v_xor_b32 v{t+1}, {sT[4]}, v{t}')
        I(f'v_lshl_add_u32 v{t+1}, v{t+1}, 1, {sT[0]}')
        I(f's_add_u32 {sT[2]}, {sT[2]}, 80'); I(f'v_mov_b32 v{t+2}, {sT[2]}'); I(f's_lshl_b32 {sT[1]}, {sT[1]}, 31'); I(f'v_mov_b32 v{t+3}, {sT[1]}')
        I(f'v_cmp_gt_u32 vcc, {sT[3]}, v{t}')
        I(f'v_cndmask_b32 v{t+1}, v{t+1}, v{t+2}, vcc'); I(f'v_cndmask_b32 v{t+3}, v{t+3}, 0, vcc')
        I(f's_mul_i32 {sT[4]}, {sW}, 7168'); I(f's_add_u32 {sT[4]}, {sT[4]}, {L_W}')
        I(f'v_lshrrev_b32 v{t}, 5, {vLane}'); I(f'v_mul_u32_u24 v{t}, 384, v{t}'); I(f'v_add3_u32 v{t+1}, v{t+1}, v{t}, {sT[4]}')
        if self.opt.get('wlate', 0):
            for i in range(32): I(f'v_mov_b32 v{vWr + i}, 0')
            I(f'v_or_b32 v{t+2}, 1.0, v{t+3}')
            self.wrd = [f'ds_read_u16_d16_hi v{base + i}, v{t+1} offset:{arr*3072 + ((i >> 2)*8 + (i & 3))*96}' for arr, base in ((1, vWi), (0, vWr)) for i in range(16)]
            return
        self.wait_tok(self.toks[self.lastW])
        for arr, base in ((0, vWr), (1, vWi)):
            for half in range(2):
                for i in range(8*half, 8*half + 8): I(f'ds_read_u16 v{base + i}, v{t+1} offset:{arr*3072 + ((i >> 2)*8 + (i & 3))*96}')
            for i in range(16):
                I(f'v_lshl_add_u32 v{base + i}, v{base + i}, 16, v{t+3}' if arr else f'v_lshlrev_b32 v{base + i}, 16, v{base + i}')

    def p2(self):
        I = self.I
        vB = VW + 32; vGa = VW + 48; vE = VW + 80; vZ = VW + 112; vH = VW + 144; vAd = VW + 8
        I(f'v_lshrrev_b32 v{vAd}, 5, {vLane}'); I(f'v_mul_u32_u24 v{vAd}, {32*TS}, v{vAd}'); I(f'v_and_b32 v{vAd+1}, 31, {vLane}'); I(f'v_lshl_add_u32 v{vAd}, v{vAd+1}, 2, v{vAd}')
        I(f'v_add_u32 v{vAd+4}, {O_T2}, v{vAd}')
        I(f's_lshr_b32 {sT[2]}, {sTILE}, 1'); I(f's_lshl_b32 {sT[2]}, {sT[2]}, 7'); I(f's_and_b32 {sT[3]}, {sTILE}, 1'); I(f's_lshl1_add_u32 {sT[3]}, {sW}, {sT[3]}')
        I(f's_mul_i32 {sT[3]}, {sT[3]}, {TS}'); I(f's_add_u32 {sP[0]}, {sT[2]}, {sT[3]}')
        for i in range(1, 16): I(f's_add_u32 {sP[i]}, {sP[0]}, {(32*(i >> 2) + 4*(i & 3))*2*TS}')
        self.run(self.sel(self.opt.get('x1_bulk', 'aW')))
        self.p3_consts()
        if self.opt.get('wlate', 0) and self.opt.get('wr_early', 1): self.w_regs(VW)
        self.stamp('p2 pre', fine=True)
        I(self.ldA)
        if self.opt.get('f2_at', 0) == 1: self.dft32(False, vZ)
        if self.opt.get('i2_at', 1) == 1: self.dft32(True, vZ)
        self.flag_check(self.ldA)
        self.stamp('flagA')
        lds = [f'buffer_load_dword v{vB + i}, v{vAd}, {WS}, {sP[i]} offen sc1' for i in range(16)]
        for x in lds: I(x)
        I(f's_lshl_b32 {sT[3]}, {sW}, 13'); I(f's_add_u32 {sT[3]}, {sT[3]}, {L_G}'); I(f'v_add_u32 v{vAd+1}, {sT[3]}, {vL16}')
        I(f's_lshl_b32 {sT[3]}, {sW}, 10'); I(f's_add_u32 {sT[3]}, {sT[3]}, {L_G}'); I(f'v_add_u32 v{vAd+2}, {sT[3]}, {vL16}')
        I(f's_lshl_b32 {sT[3]}, {sW}, 12'); I(f's_add_u32 {sT[3]}, {sT[3]}, {L_H}'); I(f'v_add_u32 v{vAd+3}, {sT[3]}, {vL16}')
        if not (self.opt.get('wlate', 0) and self.opt.get('wr_early', 1)): self.w_regs(VW)
        self.ldB = self.flag_load('B', sP[18], False)
        if self.opt.get('i2_at', 1) == 2: self.dft32(True, vZ)
        I('s_barrier')
        self.stamp('p2 T', wait=vB + 15)
        self.sprinkle(self.sel(self.opt.get('p2_bulk', 'A012')), self.opt.get('p2_per1', 1))
        for tt in range(4):
            for p in range(2):
                d = vr(vGa + 16*p, 16)
                I(f'v_mfma_f32_32x32x16_f16 {d}, {ar(aF2 + 4*(p*4 + tt), 4)}, {vr(vB + 4*tt, 4)}, {"0" if tt == 0 else d}')
        self.bgper = 0
        for p in range(2):
            for gq in range(4): I(f'ds_write_b128 v{vAd+1}, {vr(vGa + 16*p + 4*gq, 4)} offset:{(p*4 + gq)*1024}')
        self.bg(self.opt.get('p2_n1', 4))
        if self.opt.get('wlate', 0) == 1:
            self.wait_tok(self.toks[self.lastW])
            for x in self.wrd: I(x)
        self.barrier()
        self.stamp('p2 bar1', fine=True)
        for c in (0, 2, 1, 3):
            for p in range(2): I(f'ds_read_b128 {vr(vE + 8*c + 4*p, 4)}, v{vAd+2} offset:{c*8192 + p*4096}')
        self.bgper = self.opt.get('p2_per2', 12)
        def bfly(src, dst, tmp, inv, after=None):
            s = lambda c, p, h: src + 8*c + 4*p + 2*h
            d = lambda m, p, h: dst + 8*m + 4*p + 2*h
            t_ = lambda i, p, h: tmp + 8*i + 4*p + 2*h
            for c in range(2):
                for p in range(2):
                    for h in range(2):
                        self.pk('add', t_(2*c, p, h), s(c, p, h), s(c + 2, p, h)); self.pk('add', t_(2*c + 1, p, h), s(c, p, h), s(c + 2, p, h), neg_b=True)
            a, b = (3, 1) if inv else (1, 3)
            for m in (0, 2, a, b):
                for h in range(2):
                    if m in (0, 2):
                        for p in range(2): self.pk('add', d(m, p, h), t_(0, p, h), t_(2, p, h), neg_b=(m == 2))
                    else:
                        self.pk('add', d(m, 0, h), t_(1, 0, h), t_(3, 1, h), neg_b=(m == b)); self.pk('add', d(m, 1, h), t_(1, 1, h), t_(3, 0, h), neg_b=(m == a))
                if after: after(m)
        if self.opt.get('wlate', 0) == 2:
            self.wait_lg0(); self.wait_tok(self.toks[self.lastW])
            q, per = self.bgq, self.bgper; self.bgq = None
            self.sprinkle([[x] for x in self.wrd], 1)
        bfly(vE, vZ, vGa, False)
        if self.opt.get('wlate', 0) == 2: self.bg(); self.bgq, self.bgper = q, per
        if self.opt.get('wlate', 0):
            for i in range(8): self.pk('mul', vWi + 2*i, vWi + 2*i, VW + 2, bsel=0)
        for m in range(4):
            for h in range(2):
                zr, zi = vZ + 8*m + 2*h, vZ + 8*m + 4 + 2*h; wr, wi = vWr + 4*m + 2*h, vWi + 4*m + 2*h
                dr, di = vE + 8*m + 2*h, vE + 8*m + 4 + 2*h
                self.pk('mul', dr, zr, wr); self.pk('mul', di, zi, wr)
                self.pk('fma', dr, zi, wi, dr, neg_b=True); self.pk('fma', di, zr, wi, di)
        def outH(c):
            for e in range(4): I(f'v_cvt_pk_bf16_f32 v{vH + 4*c + e}, v{vZ + 8*c + e}, v{vZ + 8*c + 4 + e}')
            I(f'ds_write_b128 v{vAd+2}, {vr(vH + 4*c, 4)} offset:{L_H - L_G + c*4096}')
        bfly(vE, vZ, vGa, True, outH)
        self.barrier()
        self.stamp('p2 bar2', fine=True)
        for tt in range(4): I(f'ds_read_b128 {vr(vB + 4*tt, 4)}, v{vAd+3} offset:{tt*1024}')
        I(self.ldB)
        self.bgper = 1
        for tt in range(4):
            for p in range(2):
                d = vr(vGa + 16*p, 16)
                I(f'v_mfma_f32_32x32x16_bf16 {d}, {ar(aI2 + 4*(p*4 + tt), 4)}, {vr(vB + 4*tt, 4)}, {"0" if tt == 0 else d}')
        print('p2 bulk left:', len(self.bgq)); self.bgper = 0
        for i in range(16):
            I(f'v_cvt_pk_bf16_f32 v{vH + i}, v{vGa + i}, v{vGa + 16 + i}')
            I(f'buffer_store_dword v{vH + i}, v{vAd+4}, {WS}, {sP[i]} offen sc1')
        self.stamp('p2 end', fine=True)
        self.flag_check(self.ldB)
        self.bg()
        self.run(self.sel(self.opt.get('x2_bulk', '34')))

    def repack_unit(self):
        I = self.I
        I(f's_mul_i32 {sT[2]}, {sW}, 12'); I(f's_add_u32 {sT[2]}, {sT[2]}, {sY}'); I(f's_sub_u32 {sT[2]}, {sT[2]}, 20')
        I(f's_mul_i32 {sT[3]}, {sX8}, 28'); I(f's_cmp_lt_u32 {sT[2]}, 28'); I(f's_cselect_b32 {sT[3]}, {sT[3]}, 224'); I(f's_add_u32 {sT[2]}, {sT[2]}, {sT[3]}')
        I(f's_lshr_b32 {sT[3]}, {sT[2]}, 2'); I(f's_and_b32 {sT[4]}, {sT[2]}, 3')
        I(f's_mul_i32 {sT[6]}, {sW}, 10240'); I(f's_add_u32 {sT[6]}, {sT[6]}, {L_RP}')
    def repack_addr(self, t):
        I = self.I
        self.repack_unit()
        I(f's_mul_i32 {sP[8]}, {sT[3]}, 40960'); I(f's_mul_i32 {sT[0]}, {sT[4]}, 320'); I(f's_add_u32 {sP[8]}, {sP[8]}, {sT[0]}')
        I(f's_add_u32 {sP[9]}, {sP[8]}, {16*1280}'); I(f's_movk_i32 {sT[0]}, 3277'); I(f's_mov_b32 {sP[11]}, {sT[6]}')
        for pt in range(5):
            I(f'v_add_u32 v{t}, {64*pt}, {vLane}'); I(f'v_mul_u32_u24 v{t+1}, {sT[0]}, v{t}'); I(f'v_lshrrev_b32 v{t+1}, 16, v{t+1}')
            I(f'v_mul_u32_u24 v{t+1}, {1280 - 320}, v{t+1}'); I(f'v_lshl_add_u32 v{vWA+pt}, v{t}, 4, v{t+1}')
        L = [[f's_add_u32 m0, {sP[11]}, {h*5120 + pt*1024}', f'buffer_load_dwordx4 v{vWA+pt}, {W2}, {sP[8+h]} offen lds'] for pt in range(5) for h in range(2)]
        self.lastR = L[-1][-1]
        return L
    def repack(self):
        I = self.I; t = VW + 10; vF = VW + 16
        self.repack_unit()
        snap = self.cond_begin(); L = self.newlabel('Lrp')
        I(f's_cmp_ge_u32 {sT[2]}, 224'); I(f's_cbranch_scc1 {L}')
        I(f's_mul_i32 {sT[0]}, {sT[3]}, 9363'); I(f's_lshr_b32 {sT[0]}, {sT[0]}, 16'); I(f's_mul_i32 {sT[0]}, {sT[0]}, 7'); I(f's_sub_u32 {sT[0]}, {sT[3]}, {sT[0]}')
        I(f's_cmp_eq_u32 {sT[0]}, 3'); I(f's_cselect_b32 {sT[0]}, {4*320}, 0'); I(f's_mul_i32 {sT[1]}, {sT[0]}, 3'); I(f's_sub_u32 {sT[1]}, {16*320}, {sT[1]}')
        I(f'v_lshrrev_b32 v{t}, 2, {vLane}'); I(f'v_mul_u32_u24 v{t}, 320, v{t}'); I(f'v_and_b32 v{t+1}, 3, {vLane}'); I(f'v_mul_u32_u24 v{t+1}, 40, v{t+1}')
        I(f'v_add3_u32 v{t}, v{t}, v{t+1}, {sT[6]}'); I(f'v_mad_u32_u24 v{t}, {vG}, {sT[0]}, v{t}'); I(f'v_add_u32 v{t+1}, {sT[1]}, v{t}')
        rk = sum(KORD.index(k) << (4*k) for k in range(14))
        I(f's_mul_i32 {sT[0]}, {sT[3]}, 4682'); I(f's_lshr_b32 {sT[0]}, {sT[0]}, 16'); I(f's_mul_i32 {sT[0]}, {sT[0]}, 14'); I(f's_sub_u32 {sT[1]}, {sT[3]}, {sT[0]}')
        I(f's_lshl_b32 {sT[1]}, {sT[1]}, 2'); I(f's_mov_b32 s58, {rk & 0xffffffff}'); I(f's_mov_b32 s59, {rk >> 32}'); I(f's_lshr_b64 {sPAIR}, {sPAIR}, {sT[1]}')
        I(f's_and_b32 s58, s58, 15'); I(f's_add_u32 {sT[3]}, {sT[0]}, s58')
        self.wait_tok(self.toks[self.lastR])
        I(f's_mul_i32 {sT[5]}, {sT[4]}, {2*286720}'); I(f's_mul_i32 {sT[6]}, {sT[3]}, 5120'); I(f's_add_u32 {sT[5]}, {sT[5]}, {sT[6]}'); I(f's_add_u32 {sT[5]}, {sT[5]}, {WS_W2}')
        for cb in range(2):
            for nt in range(5):
                for hf in range(2): I(f'ds_read_b64_tr_b16 {vr(vF + 4*(cb*5 + nt) + 2*hf, 2)}, v{t+hf} offset:{cb*160 + nt*8}')
        for cb in range(2):
            for nt in range(5):
                if nt in (0, 4): I(f's_add_u32 {sT[6]}, {sT[5]}, {cb*286720 + nt*1024}')
                I(f'buffer_store_dwordx4 {vr(vF + 4*(cb*5 + nt), 4)}, {vL16}, {WS}, {sT[6]} offen offset:{(nt & 3)*1024} sc1')
        self.cond_end(snap); self.label(L)
    def epoch(self):
        I = self.I
        snap = self.cond_begin(); L = self.newlabel('Lep')
        I(f's_lshl2_add_u32 {sT[0]}, s2, {sW}'); I(f's_cmp_lg_u32 {sT[0]}, 3'); I(f's_cbranch_scc1 {L}')
        I(f's_mov_b32 {sT[0]}, {WS_EP}'); I('s_mov_b64 exec, 1')
        I(f'buffer_store_dword {vTag}, off, {WS}, {sT[0]} sc1'); I('s_mov_b64 exec, -1')
        self.cond_end(snap); self.label(L)
    def h1_vaddr(self, a):
        I = self.I
        I(f'v_and_b32 v{a}, 1, {vG}'); I(f'v_mul_u32_u24 v{a}, 57344, v{a}'); I(f'v_lshrrev_b32 v7, 1, {vG}')
        I(f'v_lshl_add_u32 v{a}, v7, 8, v{a}'); I(f'v_lshl_add_u32 v{a}, {vN}, 4, v{a}')
    def h1_addr(self, a):
        I = self.I
        I(f's_mul_i32 {sT[2]}, {sG}, 458752'); I(f's_mul_i32 {sT[3]}, {sW}, 114688'); I(f's_add_u32 {sT[2]}, {sT[2]}, {sT[3]}')
        I(f's_lshr_b32 {sT[3]}, {sM}, 1'); I(f's_mul_i32 {sT[3]}, {sT[3]}, 7168'); I(f's_add_u32 {sT[2]}, {sT[2]}, {sT[3]}'); I(f's_add_u32 {sT[2]}, {sT[2]}, {WS_H1}')
        I(f's_lshl_b32 {sT[3]}, {sHH}, 12'); I(f's_add_u32 {sH1[0]}, {sT[3]}, {sT[2]}'); I(f's_add_u32 {sH1[1]}, {sH1[0]}, 57344')
        I(f's_lshl_b32 {sT[3]}, {sHH}, 9'); I(f's_add_u32 {sH1[2]}, {sT[3]}, {sT[2]}')
        self.h1_vaddr(a)
    def h1_store(self, reg, pr, mt, a):
        if pr == 3: return f'buffer_store_dwordx4 {vr(reg, 4)}, v{a}, {WS}, {sH1[2]} offen offset:3072 sc1'
        return f'buffer_store_dwordx4 {vr(reg, 4)}, {vL16}, {WS}, {sH1[mt]} offen offset:{pr*1024} sc1'
    def h1_poison(self, a):
        return [[self.h1_store(vPo, pr, mt, a)] for pr in range(3) for mt in range(2)] + [[self.h1_store(vPo, 3, 0, a)]]
    def w2_base(self):
        I = self.I
        self.cb5(sT[0]); I(f's_mul_i32 {sW2B}, {sT[0]}, 286720'); I(f's_mul_i32 {sT[0]}, {sW}, 71680'); I(f's_add_u32 {sW2B}, {sW2B}, {sT[0]}'); I(f's_add_u32 {sW2B}, {sW2B}, {WS_W2 + (0x4000000 if self.opt.get("no_w2") else 0)}')
    def cb5(self, d):
        I = self.I
        if self.opt.get('split2', 4) == 1: I(f's_and_b32 {d}, s2, 1'); I(f's_and_b32 {sT[1]}, {sY}, 3'); I(f's_lshl2_add_u32 {d}, {d}, {sT[1]}')
        else: I(f's_and_b32 {d}, {sM}, 7')
    def tile0(self, d):
        I = self.I
        if self.opt.get('split2', 4) == 1: I(f's_and_b32 {d}, {sY}, 4')
        else: I(f's_lshr_b32 {d}, {sM}, 1'); I(f's_and_b32 {d}, {d}, 4')
        I(f's_lshl3_add_u32 {d}, {sG}, {d}')
    def w1_touch(self):
        I = self.I; four = self.opt.get('split2', 4) == 4
        nl, nr, sh = (7, 8, 4) if four else (14, 4, 5)
        I(f'v_and_b32 v7, {64//nr - 1}, {vLane}'); I(f'v_min_u32 v7, {nl - 1}, v7'); I(f'v_lshrrev_b32 v{vWr}, {7 - sh}, {vLane}' if four else f'v_mov_b32 v{vWr}, {vG}')
        I(f'v_mul_u32_u24 v{vWr}, {5*3456}, v{vWr}'); I(f'v_lshl_add_u32 v{vWr}, v7, 7, v{vWr}')
        I(f's_lshl2_add_u32 {sT[0]}, {sY}, {sW}'); I(f's_and_b32 {sT[3]}, s2, {3 if four else 1}'); I(f's_mul_i32 {sT[3]}, {sT[3]}, {nl*128}')
        for r in range(2 if four else 4):
            I(f's_add_u32 {sT[1]}, {sT[0]}, {48*r - 80}'); I(f's_and_b32 {sT[2]}, {sT[1]}, {(1 << sh) - 1}'); I(f's_lshr_b32 {sT[1]}, {sT[1]}, {sh}')
            I(f's_cmp_gt_u32 {sT[1]}, 4'); I(f's_cselect_b32 {sT[1]}, 640, {sT[1]}')
            I(f's_mul_i32 {sT[2]}, {sT[2]}, {5*nr}'); I(f's_add_u32 {sT[1]}, {sT[1]}, {sT[2]}'); I(f's_mul_i32 {sT[1]}, {sT[1]}, 3456'); I(f's_add_u32 {sT[1]}, {sT[1]}, {sT[3]}')
            I(f'buffer_load_dword v{vWr + 1 + r}, v{vWr}, {W1}, {sT[1]} offen')
    def w2_touch(self):
        I = self.I
        I(f's_lshl2_add_u32 {sT[0]}, {sY}, {sW}'); I(f's_sub_u32 {sT[0]}, {sT[0]}, 80'); I(f's_and_b32 {sT[1]}, {sT[0]}, 15'); I(f's_lshr_b32 {sT[0]}, {sT[0]}, 4')
        I(f's_and_b32 {sT[2]}, s2, 1'); I(f's_lshl4_add_u32 {sT[1]}, {sT[2]}, {sT[1]}'); I(f's_mul_i32 {sT[1]}, {sT[1]}, 71680'); I(f's_lshl_b32 {sT[0]}, {sT[0]}, 13')
        I(f's_add_u32 {sT[0]}, {sT[0]}, {sT[1]}'); I(f'v_lshlrev_b32 v{vWA}, 7, {vLane}')
        for r in range(3):
            I(f's_add_u32 {sT[1]}, {sT[0]}, {WS_W2 + r*3*8192 + (0x4000000 if self.opt.get("no_w2") else 0)}')
            I(f'buffer_load_dword v{vWA + 1 + r}, v{vWA}, {WS}, {sT[1]} offen sc1')
    def run(self, items):
        for it in items:
            for x in it: self.I(x)
    def helper(self):
        I = self.I
        self.run(self.sel(self.opt.get('H_x1', 'aR')))
        self.p3_consts()
        if self.opt.get('h_sync'):
            I(f's_mov_b32 {sTILE}, {sY}'); I('s_mov_b32 s89, 0')
            for _ in range(self.opt['h_sync']): self.flag_check(self.flag_load('A', sP[18]))
        self.run(self.sel(self.opt.get('H_x2', '')))
        if self.opt.get('w1t', 2) == 1: self.w1_touch()
        self.stamp('flagA')
        self.repack()
        I(f's_sub_u32 {sT[0]}, s2, 160'); I(f's_mul_i32 {sT[4]}, {sT[0]}, 10923'); I(f's_lshr_b32 {sT[4]}, {sT[4]}, 16'); I(f's_mul_i32 {sT[1]}, {sT[4]}, 6'); I(f's_sub_u32 {sT[0]}, {sT[0]}, {sT[1]}')
        I(f's_lshl2_add_u32 {sT[0]}, {sT[0]}, {sW}'); I(f's_mul_i32 {sT[4]}, {sT[4]}, {16*TS}'); I(f's_add_u32 {sT[4]}, {sT[4]}, {O_LN}')
        for r in range(7):
            I(f's_add_u32 {sT[1]}, {sT[0]}, {24*r}'); I(f's_mul_i32 {sT[2]}, {sT[1]}, 6554'); I(f's_lshr_b32 {sT[2]}, {sT[2]}, 16')
            I(f's_mul_i32 {sT[2]}, {sT[2]}, {TS - 10240}'); I(f's_lshl_b32 {sT[3]}, {sT[1]}, 10'); I(f's_add_u32 {sT[2]}, {sT[2]}, {sT[3]}'); I(f's_add_u32 {sT[2]}, {sT[2]}, {sT[4]}')
            if r == 6: I(f's_cmp_lt_u32 {sT[1]}, 160'); I(f's_cselect_b32 {sT[2]}, {sT[2]}, {WS_SIZE}')
            I(f'buffer_store_dwordx4 {vr(vPo, 4)}, {vL16}, {WS}, {sT[2]} offen sc1')
        tok = self.vm[-1][0]
        if self.opt.get('w1t', 2) == 2: self.w1_touch()
        self.flag_off(WS_FLB, 's2', sP[0])
        self.wait_tok(tok); self.barrier()
        self.flag_store(sP[0], VW)
        self.stamp('p2 bar1', fine=True)
        self.run(self.w1_items([c for c in range(5) if c not in [int(c) for c in self.opt.get('H_x1', 'aR') + self.opt.get('H_x2', '') if c.isdigit()]]))
        if self.opt.get('w2touch', 0):
            self.flag_check(self.flag_load('H', sP[18])); I('s_barrier')
            self.stamp('p2 bar2', fine=True)
            self.w2_touch()
        if 'A' not in self.opt.get('H_p1', '') + self.opt.get('H_x1', ''): self.run(self.sel('A'))
        self.flag_check(self.flag_load('B', sP[18]))

    def p3_pre(self):
        I = self.I; vAd = VW
        I(f'v_mov_b32 v{vAd+8}, 0'); I(f'v_mov_b32 v{vAd+9}, 0'); I(f'v_mov_b32 v{vAd+10}, 0'); I(f'v_mov_b32 v{vAd+11}, 0')
        I(f'v_min_u32 v{vAd+7}, 143, v0'); I(f'v_lshlrev_b32 v{vAd+7}, 4, v{vAd+7}'); I(f'v_add_u32 v{vAd+7}, {L_V + 40*288}, v{vAd+7}')
        I(f'v_mul_u32_u24 v{vAd}, 2560, {vG}'); I(f'v_lshl_add_u32 v{vAd}, {vN}, 2, v{vAd}')
        I(f's_lshr_b32 {sT[2]}, {sW}, 1'); I(f's_lshl1_add_u32 {sT[2]}, {sS1}, {sT[2]}'); I(f's_mul_i32 {sT[2]}, {sT[2]}, {TS}')
        I(f's_and_b32 {sT[3]}, {sW}, 1'); I(f's_lshl_b32 {sT[3]}, {sT[3]}, 6'); I(f's_add_u32 {sP[0]}, {sT[2]}, {sT[3]}'); I(f's_add_u32 {sP[0]}, {sP[0]}, {O_T2}')
        self.w2_base()
        self.barrier()
        I(f'ds_write_b128 v{vAd+7}, {vr(vAd+8, 4)}')
    def p3_pre2(self):
        I = self.I; vAd = VW
        I(f'v_mul_u32_u24 v{vAd+1}, 576, {vG}'); I(f'v_lshl_add_u32 v{vAd+1}, {vN}, 2, v{vAd+1}')
        I(f's_lshl_b32 {sT[4]}, {sW}, 6'); I(f's_add_u32 {sT[4]}, {sT[4]}, {L_V}'); I(f'v_add_u32 v{vAd+1}, {sT[4]}, v{vAd+1}')
        I(f'v_mul_u32_u24 v{vAd+2}, 288, {vN}'); I(f'v_lshl_add_u32 v{vAd+2}, {vG}, 4, v{vAd+2}'); I(f'v_add_u32 v{vAd+2}, {L_V}, v{vAd+2}')
        I(f'v_and_b32 v{vAd+4}, 7, {vN}'); I(f'v_lshlrev_b32 v{vAd+4}, 5, v{vAd+4}'); I(f'v_add_u32 v{vAd+4}, {L_ST}, v{vAd+4}')
        I(f's_lshl_b32 {sT[4]}, {sW}, 3'); I(f'v_add_u32 v{vAd+3}, {sT[4]}, v{vAd+4}')
        I(f'v_and_b32 v{vAd+5}, 7, {vN}'); I(f'v_lshlrev_b32 v{vAd+5}, 4, v{vAd+5}'); I(f'v_lshl_add_u32 v{vAd+5}, {vG}, 7, v{vAd+5}')
        I(f'v_lshrrev_b32 v{vAd+7}, 3, {vN}'); I(f'v_lshl_add_u32 v{vAd+6}, v{vAd+7}, 30, v{vAd+5}')
        I(f's_mov_b32 {sT[4]}, {TS}'); I(f'v_mad_u32_u24 v227, v{vAd+7}, {sT[4]}, v{vAd+5}'); I(f'v_add_u32 v228, {2*TS}, v227')
        I(f'v_lshl_add_u32 v{vAd+5}, v{vAd+7}, 11, v{vAd+5}')
        I(f's_lshl_b32 {sT[5]}, {sW}, 9'); I(f's_add_u32 {sT[4]}, {sBLK}, {sT[5]}')
        for tau in range(3): I(f's_add_u32 {sP[1+tau]}, {sT[4]}, {O_LN + tau*4096}')
        vXf = VW + 12
        for i in range(12):
            I(f'v_lshlrev_b32 v{vXf + 2*i}, 16, v{vXR + i}'); I(f'v_and_b32 v{vXf + 2*i + 1}, 0xffff0000, v{vXR + i}')
        I(f'v_mov_b32 v{vAd+7}, 0x3f803f80')
        I(f'v_cvt_pk_bf16_f32 v{vMu}, -v{vMu}, -v{vMu}'); I(f'v_lshlrev_b32 v{vMu}, 16, v{vMu}')
    def p3_pre3(self):
        I = self.I
        I(f'v_lshrrev_b32 v224, 2, {vLane}'); I(f'v_mul_u32_u24 v224, 224, v224'); I(f'v_and_b32 v225, 3, {vLane}'); I(f'v_lshl_add_u32 v224, v225, 3, v224')
        I(f's_xor_b32 {sT[2]}, {sHH}, 1'); I(f's_mul_i32 {sT[2]}, {sT[2]}, 192'); I(f'v_add_u32 v252, {sT[2]}, v224')
        I(f's_lshl_b32 {sT[2]}, {sHH}, 5'); I(f'v_add_u32 v224, {sT[2]}, v224')
        for i in (1, 2): I(f'v_add_u32 v{224+i}, {i*57344}, v224'); I(f'v_add_u32 v{252+i}, {i*57344}, v252')
        I(f's_lshl2_add_u32 {sT[2]}, {sG}, {sW}'); I(f's_mul_i32 {sT[2]}, {sT[2]}, {4*TS}')
        for i in range(3): I(f's_add_u32 {sP[4+i]}, {sT[2]}, {O_LN + i*4096 + (0x4000000 if self.opt.get("no_ln") and i < 2 else 0)}')
        self.h1_addr(229)
        self.p5_offsets((1, 2, 3))
    def p5_offsets(self, mus):
        I = self.I
        self.tile0(sT[5]); I(f's_mul_i32 {sT[3]}, {sW}, 14336')
        for mu in mus:
            I(f's_add_u32 {sT[2]}, {sW}, {mu}'); I(f's_and_b32 {sT[2]}, {sT[2]}, 3'); I(f's_add_u32 {sT[2]}, {sT[2]}, {sT[5]}'); I(f's_mul_i32 {sT[2]}, {sT[2]}, 57344'); I(f's_add_u32 {sT[2]}, {sT[2]}, {sT[3]}')
            for q in range(4): I(f's_add_u32 {self.sH(mu, q)}, {sT[2]}, {WS_H1 + q*4096 + (0x4000000 if self.opt.get("no_h1") else 0)}')
    def sH(self, mu, q): return sP[4 + 4*mu + q] if mu else sP[q]
    def p3(self):
        I = self.I; vAd = VW; vXf = VW + 12; vB = VW + 36; vZ = VW + 56; vP = VW + 76
        lds = [f'buffer_load_dword v{vB + 4*m5 + i}, v{vAd}, {WS}, {sP[0]} offen offset:{m5*128 + i*640} sc1' for m5 in (2, 3, 1, 4, 0) for i in range(4)]
        self.p3_pre2()
        for x in lds: I(x)
        self.p3_pre3()
        a, b = self.retry(lds, self.max_test([vB + 4*m5 + i for m5 in (2, 3, 1, 4, 0) for i in range(4)], vZ)); a(); b()
        self.stamp('p3 T')
        self.sprinkle(self.w2_items(self.opt.get('w2_p3', 24)), self.opt.get('p3_per', 6))
        for m5 in (2, 3, 1, 4, 0):
            I(f'v_mfma_f32_16x16x32_bf16 {vr(vZ + 4*m5, 4)}, {vr(vA3, 4)}, {vr(vB + 4*m5, 4)}, 0')
        Zr = [vZ + 4*m for m in range(5)]; Zi = [vZ + 4*m + 2 for m in range(5)]
        pool = [vP + 2*i for i in range(48)]
        mu = self.bc(vTW3 + 12); nu = self.bc(vTW3 + 13)
        u0, U0, u1, V1, U1, v1, u2, V2, U2, v2 = [pool.pop(0) for _ in range(10)]
        fm = lambda d, a, c, neg_c=False: self.pk('fma', d, a, mu[0], c, bsel=mu[1], neg_c=neg_c)
        fm(u2, Zr[3], Zr[2]); fm(V2, Zr[2], Zr[3], True); fm(U2, Zi[2], Zi[3]); fm(v2, Zi[3], Zi[2], True)
        fm(u1, Zr[4], Zr[1]); fm(V1, Zr[1], Zr[4], True); fm(U1, Zi[1], Zi[4]); fm(v1, Zi[4], Zi[1], True)
        self.pk('mul', u0, Zr[0], mu[0], bsel=mu[1]); self.pk('mul', U0, Zi[0], nu[0], bsel=nu[1])
        def half(a0, a1, a2, b1, b2):
            p1, p2, q1, q2, z0, z1, z2, z3, z4 = [pool.pop(0) for _ in range(9)]
            self.pk('fma', p1, a1, sC, a0, bsel=0); self.pk('fma', p2, a1, sC, a0, bsel=1)
            self.pk('mul', q1, b1, sS, bsel=0); self.pk('mul', q2, b1, sS, bsel=1); self.pk('add', z0, a0, a1)
            self.pk('fma', p1, a2, sC, p1, bsel=1); self.pk('fma', p2, a2, sC, p2, bsel=0)
            self.pk('fma', q1, b2, sS, q1, bsel=1); self.pk('fma', q2, b2, sS, q2, bsel=0, neg_b=True); self.pk('add', z0, z0, a2)
            self.pk('add', z1, p1, q1); self.pk('add', z2, p2, q2); self.pk('add', z3, p2, q2, neg_b=True); self.pk('add', z4, p1, q1, neg_b=True)
            return [z0, z1, z2, z3, z4]
        zr = half(u0, u1, u2, v1, v2); zi = half(U0, U1, U2, V1, V2)
        Vr = [zr[0]] + [pool.pop(0) for _ in range(4)]; Vi = [zi[0]] + [pool.pop(0) for _ in range(4)]
        for c in range(5):
            if c:
                t1, t2, t3 = self.bc(vTW3 + c - 1), self.bc(vTW3 + 4 + c - 1), self.bc(vTW3 + 8 + c - 1)
                self.pk('mul', Vr[c], zr[c], t1[0], bsel=t1[1]); self.pk('mul', Vi[c], zi[c], t3[0], bsel=t3[1])
                self.pk('fma', Vr[c], zi[c], t2[0], Vr[c], bsel=t2[1], neg_b=True); self.pk('fma', Vi[c], zr[c], t2[0], Vi[c], bsel=t2[1])
            d = vB + 2*c
            for jb in range(2): I(f'v_cvt_pk_bf16_f32 v{d+jb}, v{Vr[c] + jb}, v{Vi[c] + jb}')
            for jb in range(2): I(f'ds_write_b32 v{vAd+1}, v{d+jb} offset:{(c*8 + jb)*288}')
        I('s_mov_b32 s44, 0x3f80'); I('s_mov_b32 s45, 0x3f800000')
        self.barrier()
        self.stamp('p3 bar1', fine=True)
        vF = vP; vY = vP + 48
        for tau in range(3):
            for ks in range(4): I(f'ds_read_b128 {vr(vF + 4*(tau*4 + ks), 4)}, v{vAd+2} offset:{tau*16*288 + ks*64}')
        rest = self.bgq; self.bgq = None
        vHp = vB; vL = vZ
        vS = 246; vs, vq, vone = f'v{vS}', f'v{vS+1}', f'v{vAd+7}'
        def mf(tau):
            L = []
            for ks in range(4):
                for mu_ in range(2):
                    d = vr(vY + 8*tau + 4*mu_, 4)
                    L.append(f'v_mfma_f32_16x16x32_bf16 {d}, {ar(aA3 + 4*(mu_*4 + ks), 4)}, {vr(vF + 4*(tau*4 + ks), 4)}, {vr(vXf + 8*tau + 4*mu_, 4) if ks == 0 else d}')
            return L
        def post(tau):
            R = range(4*tau, 4*tau + 4)
            L = [f'v_cvt_pk_bf16_f32 v{vHp + i}, v{vY + 2*i}, v{vY + 2*i + 1}' for i in R]
            for i in R: L += [f'v_dot2_f32_bf16 v{vY + 2*i + e}, v{vHp+i}, s{44+e}, v{vMu}' for e in range(2)]
            L += [f'v_cvt_pk_bf16_f32 v{vL + i}, v{vY + 2*i}, v{vY + 2*i + 1}' for i in R]
            return L + [f'buffer_store_dwordx4 {vr(vL + 4*tau, 4)}, v{vAd + (6 if tau == 2 else 5)}, {WS}, {sP[1+tau]} offen sc1']
        self.weave(mf(0), []); self.weave(mf(1), post(0), per=3, start=2); self.weave(mf(2), post(1), per=3, start=2)
        for x in post(2): I(x)
        self.stamp('p3 end')
        for it in rest:
            for x in it: I(x)
        self.w2_loads(self.opt.get('w2_s3', 4))
        for i in range(12):
            I(f'v_dot2_f32_bf16 {vs}, v{vHp+i}, {vone}, {vs if i else 0}'); I(f'v_dot2_f32_bf16 {vq}, v{vHp+i}, v{vHp+i}, {vq if i else 0}')
        I(f'v_add_f32_dpp {vs}, {vs}, {vs} row_ror:8 row_mask:0xf bank_mask:0xf'); I(f'v_add_f32_dpp {vq}, {vq}, {vq} row_ror:8 row_mask:0xf bank_mask:0xf')
        for sw in ('v_permlane16_swap_b32', 'v_permlane32_swap_b32'):
            I(f'v_mov_b32 v{vS-2}, {vs}'); I(f'v_mov_b32 v{vS-1}, {vq}')
            I(f'{sw} {vs}, v{vS-2}'); I(f'{sw} {vq}, v{vS-1}')
            I(f'v_add_f32 {vs}, {vs}, v{vS-2}'); I(f'v_add_f32 {vq}, {vq}, v{vS-1}')
        I(f'ds_write_b64 v{vAd+3}, {vr(vS, 2)}')
        self.barrier()
    def p3_stats(self):
        I = self.I; vAd = VW; vS = 246; t = 236; vs, vq = f'v{vS}', f'v{vS+1}'
        snap = self.cond_begin(); L = self.newlabel('Lst')
        I(f's_cmp_lg_u32 {sW}, 0'); I(f's_cbranch_scc1 {L}')
        I(f'ds_read_b128 {vr(t, 4)}, v{vAd+4}'); I(f'ds_read_b128 {vr(t+4, 4)}, v{vAd+4} offset:16')
        self.pk('add', t, t, t + 2); self.pk('add', t + 4, t + 4, t + 6); self.pk('add', vS, t, t + 4)
        for x in self.finish_stats(vs, vq, None): I(x)
        I(f'v_lshrrev_b32 {vs}, 16, v{vMu}'); I(f'v_or_b32 v{vS-2}, {vs}, {vq}'); I(f'v_mov_b32 v{vS-1}, {vTag}')
        I(f'buffer_store_dwordx4 {vr(vS-2, 4)}, v{vAd+6}, {WS}, {sP[3]} offen offset:2048 sc1')
        self.cond_end(snap); self.label(L)

    def w1_items(self, cs):
        L = []
        for c in cs:
            for pt in range(7):
                L.append(([f's_add_u32 m0, s86, {c*4*7168 + pt*1024}'] if pt % 4 == 0 else []) + ([f's_add_u32 s88, s85, {c*3456}'] if pt == 0 else []) +
                         [f'buffer_load_dwordx4 v{vW1A + pt}, {W1}, s88 offen offset:{(pt & 3)*1024} lds'])
        return L
    def w2reg(self, f):
        if f < 32: return ar(128 + 4*f, 4)
        if f < 54: return ar(4*(f - 32), 4)
        return vr([8, 12, 36, 40, 16, 20, 44, 48, 24, 28, 52, 56, 184, 188, 32, 60][f - 54], 4)
    def w2_items(self, n, lim=54):
        L = []
        for i in range(n):
            f = self.w2next
            if f >= lim: break
            self.w2next += 1
            L.append(([f's_add_u32 s87, {sW2B}, {(f & ~3)*1024}'] if f % 4 == 0 else []) +
                     [f'buffer_load_dwordx4 {self.w2reg(f)}, {vL16}, {WS}, s87 offen offset:{(f & 3)*1024} sc1'])
        return L
    def w2_loads(self, n, lim=54):
        for x in sum(self.w2_items(n, lim), []): self.I(x)

    def emit(self, x):
        if callable(x): x()
        else: self.I(x)
    def wait_regs(self, regs):
        regs = {('v', r) for r in regs}; last = None
        for p in self.vm:
            if p[1] & regs: last = p[0]
        if last is not None: self.wait_tok(last)
    def p5_plan(self):
        oe = self.opt.get('own_early', 0)
        order = [(kp, mu) for kp in range(12) for mu in (1, 2, 3)] + [(kp, 0) for kp in range(oe)]
        order += [(kp, mu) for mu in (1, 2, 3) for kp in (12, 13)] + [(kp, 0) for kp in range(oe, 14)]
        self.gen_ok = 0
        self.gen_of = lambda i: order[i][0] >> 2
        self.order5 = order; self.NRF = 20
        self.hreg = lambda i: 64 + 4*(i % self.NRF)
        self.ldh = lambda i: f'buffer_load_dwordx4 {vr(self.hreg(i), 4)}, {vL16}, {WS}, {self.sH(order[i][1], KORD[order[i][0]] >> 2)} offen offset:{(KORD[order[i][0]] & 3)*1024} sc1'
        self.nxt5 = 0
    def f4_signal(self, gen, last):
        def w():
            if self.opt.get('st4'): self.stamp(f'sig{gen}a')
            self.wait_tok(self.toks[last])
            if self.opt.get('st4'): self.stamp(f'sig{gen}b')
        return [w, f'buffer_store_dword {vTag}, v235, {WS}, s45 offen offset:{gen*128} sc1']
    def f4_load(self, gen): return f'buffer_load_dword v234, v0, {WS}, s46 offen offset:{gen*128} sc1'
    def f4_ld(self, gen):
        def touch():
            self.I(f'buffer_load_dword v234, v7, {WS}, s47 offen offset:{gen*1024} sc1'); self.vm[-1] = (self.vm[-1][0], set())
        return ([touch] if self.opt.get('h1touch', 0) else []) + [self.f4_load(gen)]
    def f4_check(self, gen):
        a, b = self.retry([self.f4_load(gen)], ['v_cmp_ne_u32 vcc, s62, v234', 's_cbranch_vccnz'], inline=False)
        def fin():
            b(); self.gen_ok = gen + 1
            if self.opt.get('st4'): self.stamp(f'chk{gen}b')
        def w():
            if self.opt.get('st4'): self.stamp(f'chk{gen}a')
            self.wait_regs([234])
        return [w, a.items[0], fin]
    def p4(self):
        I = self.I; opt = self.opt
        vAcc = 8; vLn = 64; vK = 230; vT = 236; vO = 244; vC = 234
        lnreg = lambda mt, k: vLn + 8*k + 4*mt
        blocks = [(0, 1, 2, 3), (4, 5), (6,)]
        frags = [(k, nt) for b in blocks for k in range(20) for nt in b]
        D = 7
        bf = lambda i: aBf + 4*(i % 10)
        def rd(i, hf):
            k, nt = frags[i]
            base = (252 if nt == 6 else 224) + k // 8; off = (k % 8)*7168 + hf*16*224 + (0 if nt == 6 else nt*32)
            return f'ds_read_b64_tr_b16 {ar(bf(i) + 2*hf, 2)}, v{base} offset:{off}'
        lda = lambda k, mt: f'buffer_load_dwordx4 {vr(lnreg(mt, k), 4)}, v{227 + mt}, {WS}, {sP[4 + (k >> 3)]} offen offset:{(k & 7)*512} sc1'
        PRE = opt.get('p4_pre', 8); CH = opt.get('p4_chk', 4)
        first = [lda(k, mt) for k in range(PRE) for mt in range(2)]
        for x in first: I(x)
        self.p3_stats()
        self.epoch()
        self.p5_offsets((0,))
        for i in range(D): I(rd(i, 0)); I(rd(i, 1))
        I(f's_mov_b32 s44, {f32(-1.4426950408889634)}')
        I(f's_lshl_b32 s46, {sG}, 15'); I(f's_add_u32 s46, s46, {WS_FL4}'); I(f's_lshr_b32 {sT[0]}, {sW}, 1'); I(f's_lshl4_add_u32 {sT[0]}, {sT[0]}, {sM}')
        I(f's_and_b32 {sT[1]}, {sW}, 1'); I(f's_lshl1_add_u32 {sT[0]}, {sT[0]}, {sT[1]}'); I(f's_lshl_b32 {sT[0]}, {sT[0]}, 9'); I(f's_add_u32 s45, s46, {sT[0]}')
        I(f's_and_b32 {sT[0]}, {sT[5]}, 4'); I(f's_add_u32 {sT[0]}, {sT[0]}, {sW}'); I(f's_lshl_b32 {sT[0]}, {sT[0]}, 12'); I(f's_add_u32 s46, s46, {sT[0]}')
        I(f'v_lshrrev_b32 v235, 5, {vLane}'); I(f'v_lshlrev_b32 v235, 26, v235'); I(f'v_lshl_add_u32 v235, {vLane}, 2, v235'); I(f'v_and_b32 v0, 7, {vLane}'); I('v_lshlrev_b32 v0, 9, v0')
        I(f's_and_b32 {sT[0]}, {sY}, 3'); I(f's_add_u32 {sT[0]}, {sT[0]}, {sT[5]}'); I(f's_mul_i32 s47, {sT[0]}, 57344'); I(f's_add_u32 s47, s47, {sT[3]}'); I(f's_add_u32 s47, s47, {WS_H1}')
        I(f'v_bfe_u32 v7, {vLane}, 3, 2'); I('v_mad_u32_u24 v7, v7, 7, 1'); I('v_lshrrev_b32 v7, 1, v7'); I('v_lshlrev_b32 v7, 12, v7'); I('v_add_u32 v7, v7, v0'); I('v_lshrrev_b32 v7, 2, v7')
        self.stamp('p4 pre', fine=True)
        a, b = self.retry(first, self.max_test([lnreg(mt, k) + 3 for k in range(CH) for mt in range(2)], vC)); a(); b()
        self.stamp('p4 LN')
        self.p5_plan()
        def silu(nt, mt, dst2, t, pk):
            r = vAcc + 4*(mt*7 + nt); kn, sg = vK + 2*mt, vK + 2*mt + 1
            if pk:
                L = [f'v_pk_mul_f32 {vr(t+2*h, 2)}, {vr(r+2*h, 2)}, {vr(kn, 2)} op_sel:[0,0] op_sel_hi:[1,0]' for h in range(2)]
                L += [f'v_exp_f32 v{t+i}, v{t+i}' for i in range(4)]
                L += [f'v_pk_fma_f32 {vr(t+2*h, 2)}, {vr(t+2*h, 2)}, {vr(kn, 2)}, {vr(kn, 2)} op_sel:[0,1,1] op_sel_hi:[1,1,1]' for h in range(2)]
                L += [f'v_rcp_f32 v{t+i}, v{t+i}' for i in range(4)]
                L += [f'v_pk_mul_f32 {vr(t+2*h, 2)}, {vr(t+2*h, 2)}, {vr(r+2*h, 2)}' for h in range(2)]
            else:
                L = [f'v_mul_f32 v{t+i}, v{r+i}, v{kn}' for i in range(4)] + [f'v_exp_f32 v{t+i}, v{t+i}' for i in range(4)]
                L += [f'v_fma_f32 v{t+i}, v{t+i}, v{sg}, v{sg}' for i in range(4)] + [f'v_rcp_f32 v{t+i}, v{t+i}' for i in range(4)]
                L += [f'v_mul_f32 v{t+i}, v{t+i}, v{r+i}' for i in range(4)]
            return L + [f'v_cvt_pk_bf16_f32 v{dst2+h}, v{t+2*h}, v{t+2*h+1}' for h in range(2)]
        units = [(pr, mt) for pr in range(3) for mt in range(2)] + [(3, 0)]
        def unit(u, half, pk):
            pr, mt = units[u]; o = vO + 4*(u & 1)
            if pr < 3: L = silu(2*pr + half, mt, o + 2*half, vT + 4*half, pk)
            else: L = silu(6, half, o + 2*half, vT + 4*half, pk)
            if half:
                if pr == 3: L += [f'v_permlane16_swap_b32 v{o}, v{o+2}', f'v_permlane16_swap_b32 v{o+1}, v{o+3}']
                L.append(self.h1_store(o, pr, mt, 229))
            return L
        todo = [(u, h) for u in range(7) for h in range(2)]
        cur = []
        def next_fill(limit):
            nonlocal cur
            if not cur and todo and todo[0][0] < limit: cur = unit(*todo.pop(0), False)
            return cur.pop(0) if cur else None
        ldst = [f'buffer_load_dwordx2 {vr(vK + 2*mt, 2)}, v{227 + mt}, {WS}, {sP[6]} offen offset:2048 sc1' for mt in range(2)]
        sa, sb = self.retry(ldst, [f'v_cmp_ne_u32 vcc, s62, v{vK+1}', f'v_cmp_ne_u32 {sPAIR}, s62, v{vK+3}', f's_or_b64 vcc, vcc, {sPAIR}', 's_cbranch_scc1'], inline=False)
        stc = []
        for mt in range(2): stc += [f'v_and_b32 v{vK+2*mt+1}, 0xffff0000, v{vK+2*mt}', f'v_rcp_f32 v{vK+2*mt}, v{vK+2*mt+1}']
        stc += [f'v_mul_f32 v{vK+2*mt}, s44, v{vK+2*mt}' for mt in range(2)]
        nxt = PRE; q = []; done = CH
        w2B = []
        def w2one(lim):
            if not w2B: w2B.extend(sum(self.w2_items(1, lim), []))
            if w2B: I(w2B.pop(0)); return True
        def burst(n, lim):
            for j in range(n):
                L = unit(*todo.pop(0), True)
                for p, x in enumerate(L):
                    I(x)
                    if p == 5 or (p == 11 and j % 2 < opt.get('w2_burst', 1)):
                        w2one(lim)
                        if w2B: w2one(lim)
        H0 = opt.get('h1_at', 1); HN = opt.get('h1_pre', 10)
        fix = {}
        for i, (k, nt) in enumerate(frags):
            blk = 0 if i < 80 else 1 if i < 120 else 2
            if blk == 0 and nt == 0:
                fix = {}
                assert k < done
                if nxt < 20: fix[0] = [lda(nxt, 0)]; fix[1] = [lda(nxt, 1)]; nxt += 1
                elif k == opt.get('st_at', 14): fix[0] = [ldst[0]]; fix[1] = [ldst[1]]
                if k + 1 == done and done < 20:
                    assert nxt >= done + 2
                    regs = [lnreg(m, kk) + 3 for kk in (done, done + 1) for m in range(2)]
                    a, b = self.retry([lda(kk, m) for kk in range(done, nxt) for m in range(2)], self.max_test(regs, vC), inline=False)
                    fix[2] = [lambda regs=regs: self.wait_regs(regs)]
                    fix[4], fix[5], fix[6], fix[7] = [a.items[0]], [a.items[1]], [a.items[2]], [b]
                    done += 2
                if k == 18:
                    fix[0] = [lambda: self.wait_regs([vK + 3])]; fix[1] = [sa.items[0]]; fix[2] = [sa.items[1]]; fix[4] = [sa.items[2], sb]
                if k == 19:
                    for p, x in zip((0, 1, 2, 4, 5, 6), stc): fix[p] = [x]
            if i == 80:
                self.stamp('p4 A', fine=True)
                burst(8, 54)
                self.stamp('p4 burst', fine=True)
            if i == 80 + opt.get('sig0', 4): q += self.f4_signal(0, self.h1_store(vO + 4, 0, 1, 229))
            if i == 80 + opt.get('sig1', 18): q += self.f4_signal(1, self.h1_store(vO + 4, 1, 1, 229))
            if i == 80 + opt.get('ld0', 36): q += self.f4_ld(0)
            if i == 120 + opt.get('chk0', 3): q += self.f4_check(0)
            if i == 120:
                self.stamp('p4 B1', fine=True)
                assert not q and not cur
                burst(4, 62)
                self.stamp('p4 burst2', fine=True)
            if blk == 2 and self.gen_ok:
                if self.nxt5 < HN and self.hreg(self.nxt5) + 4 <= lnreg(0, k) and not q and k % opt.get('h1_per', 2) == 0: q.append(self.ldh(self.nxt5)); self.nxt5 += 1
            if i % 2 == 0:
                for p in list(self.lg):
                    if ('a', bf(min(i + 1, len(frags) - 1)) + 3) in p[1]: self.wait_tok(p[0])
            for mt in range(2):
                d = vr(vAcc + 4*(mt*7 + nt), 4)
                I(f'v_mfma_f32_16x16x32_bf16 {d}, {ar(bf(i), 4)}, {vr(lnreg(mt, k), 4)}, {"0" if k == 0 else d}')
                if i + D < len(frags): I(rd(i + D, mt))
                if blk == 0:
                    for x in fix.get(2*nt + mt, []): self.emit(x)
                elif not (i % 2 == 1 and mt == 1):
                    if q: self.emit(q.pop(0))
                    elif w2B or (i % 2 == 0 and mt == 0 and (blk == 1 or not self.gen_ok)): w2one(62 if blk == 1 else 66)
        assert not q
        self.stamp('p4 loop')
        for x in self.f4_signal(2, self.h1_store(vO + 4, 2, 1, 229)): self.emit(x)
        for x in self.f4_ld(1): self.emit(x)
        for x in w2B: I(x)
        self.sprinkle([[self.ldh(i)] for i in range(self.nxt5, HN)] + self.w2_items(opt.get('w2_tail', 2), 68), opt.get('tail_per', 8)); self.nxt5 = max(self.nxt5, HN)
        for x in cur: I(x)
        for u, h in todo:
            for x in unit(u, h, True): I(x)
        self.bg()

    def p5(self):
        I = self.I; opt = self.opt
        order = self.order5; NRF = self.NRF; vC = 234
        acc = lambda mu, nt: vr(164 + 4*nt, 4) if mu == 0 else vr(144 + 4*nt, 4) if mu == 3 else ar(68 + 20*mu + 4*nt, 4)
        par = lambda s, nt: [144 + 4*nt, 64 + 4*nt, (84, 88, 92, 128, 132)[nt]][s]
        vHr = 192; vHf = 202; vAd = 224; vM = 222
        PD = opt.get('p5_pd', 10)
        print('late w2:', 70 - self.w2next)
        late = sum(self.w2_items(70, 70), [])
        rec = Rec()
        J = rec.I
        J(f'v_lshrrev_b32 v{vAd}, 1, {vG}'); J(f'v_sub_u32 v{vAd}, v{vAd}, {vG}'); J(f'v_lshl_add_u32 v{vAd}, v{vAd}, 7, v227')
        J(f'v_and_b32 v{vAd+1}, 1, {vG}'); J(f'v_lshl_add_u32 v{vAd}, v{vAd+1}, 3, v{vAd}')
        rec.opt = opt; K.tile0(rec, sT[5]); J(f's_add_u32 {sT[6]}, {sT[5]}, {sW}'); K.cb5(rec, sT[3])
        J(f's_mul_i32 {sP[4]}, {sT[6]}, {2*TS}'); J(f's_add_u32 {sP[4]}, {sP[4]}, {O_LN}'); J(f's_add_u32 {sP[7]}, {sP[4]}, 8192')
        J(f's_lshl_b32 {sT[4]}, {sT[3]}, 8'); J(f's_add_u32 {sP[4]}, {sP[4]}, {sT[4]}'); J(f's_add_u32 {sP[5]}, {sP[4]}, 4096'); J(f's_add_u32 {sP[6]}, {sP[4]}, 8192')
        J(f's_mul_i32 s44, {sT[6]}, 1280'); J(f's_mul_i32 {sT[3]}, {sT[3]}, 160'); J(f's_add_u32 s44, s44, {sT[3]}')
        resl = [f'buffer_load_dwordx2 {vr(vHr + 2*c, 2)}, v{vAd}, {WS}, {sP[4 + (c >> 1)]} offen offset:{(c & 1)*2048} sc1' for c in range(5)]
        resl += [f'buffer_load_dword v{vM}, v227, {WS}, {sP[7]} offen offset:2048 sc1']
        resc = [f'v_lshlrev_b32 v{vM}, 16, v{vM}']
        for c in range(5):
            for qq in range(4):
                src = vHr + 2*c + (qq >> 1); d = vHf + 5*qq + c
                resc += [f'v_and_b32 v{d}, 0xffff0000, v{src}' if qq & 1 else f'v_lshlrev_b32 v{d}, 16, v{src}']
        resc += [f'v_sub_f32 v{vHf + i}, v{vHf + i}, v{vM}' for i in range(20)]
        resc += [f'v_cvt_pk_bf16_f32 v{vHr + i}, v{vHf + 2*i}, v{vHf + 2*i + 1}' for i in range(10)]
        for i in range(10): resc += [f'v_lshlrev_b32 v{vHf + 2*i}, 16, v{vHr + i}', f'v_and_b32 v{vHf + 2*i + 1}, 0xffff0000, v{vHr + i}']
        adr = []
        for mu in range(1, 4):
            adr += [f's_add_u32 {sT[2]}, {sW}, {mu}', f's_and_b32 {sT[2]}, {sT[2]}, 3', f's_mul_i32 {sT[2]}, {sT[2]}, 15360', f's_add_u32 {sT[2]}, {sT[2]}, {(mu - 1)*5120}',
                    f'v_add_u32 v{vAd + 5 + mu}, {sT[2]}, {vL16}']
        adr += [f's_mul_i32 {sT[2]}, {sW}, 15360', f'v_add_u32 v{vAd+5}, {sT[2]}, {vL16}']
        adr += [f'v_mul_u32_u24 v{vAd+1}, 163840, {vN}', f'v_mul_u32_u24 v{vAd+2}, 40, {vG}', f'v_add_u32 v{vAd+1}, v{vAd+1}, v{vAd+2}']
        lastof = {mu: max(i for i, o in enumerate(order) if o[1] == mu) for mu in range(4)}
        seen = set(); wr = []; slow = rec.L + adr; mem = []
        B1 = opt.get('p5_bar1', 8); B2 = lastof[3] + opt.get('p5_bar2', 7)
        ev = {opt.get('chk1', 2): self.f4_check(1), opt.get('ld2', 6): self.f4_ld(2), opt.get('sig3', 7): self.f4_signal(3, self.h1_store(244, 3, 0, 229)),
              opt.get('chk2', 14): self.f4_check(2), opt.get('ld3', 18): self.f4_ld(3), opt.get('chk3', 26): self.f4_check(3)}
        for i, (kp, mu) in enumerate(order):
            if i == B1:
                assert not slow
                I('s_barrier'); mem += resl
            if i == opt.get('res_at', 32): assert not mem; slow += resc
            for m in (1, 2, 3):
                if i == lastof[m] + 1: wr += [f'ds_write_b128 v{vAd + 5 + m}, {acc(m, nt)} offset:{nt*1024}' for nt in range(5)]
            if i == B2:
                assert not wr and i >= 48 and self.nxt5 == 56
                self.barrier()
                slow += [f'ds_read_b128 {vr(par(s, nt), 4)}, v{vAd+5} offset:{s*5120 + nt*1024}' for nt in range(5) for s in range(3)]
                for nt in range(5):
                    slow += [f'v_add_f32 v{par(1, nt) + e}, v{par(1, nt) + e}, v{par(2, nt) + e}' for e in range(4)]
                    slow += [f'v_add_f32 v{par(0, nt) + e}, v{par(0, nt) + e}, v{par(1, nt) + e}' for e in range(4)]
            c = list(ev.get(i, []))
            if i in (14, 28, 42) and opt.get('st5'): self.stamp(f'p5 {i}')
            for nt in range(5):
                d = acc(mu, nt)
                assert not any(f' {self.w2reg(kp*5 + nt)},' in x for x in late)
                I(f'v_mfma_f32_16x16x32_bf16 {d}, {self.w2reg(kp*5 + nt)}, {vr(self.hreg(i), 4)}, {d if mu in seen else "0"}')
                n0 = self.nins
                assert i < self.nxt5
                if nt == 0 and self.nxt5 < len(order) and self.nxt5 <= i + PD and self.nxt5 < i + NRF and self.gen_of(self.nxt5) < self.gen_ok:
                    I(self.ldh(self.nxt5)); self.nxt5 += 1
                if nt == 1 and i % opt.get('late_per', 2) == 0:
                    if late:
                        if late[0].startswith('s_add'): I(late.pop(0))
                        I(late.pop(0))
                    elif mem: I(mem.pop(0))
                if c and nt >= 2: self.emit(c.pop(0)); continue
                if wr and (5*i + nt) % opt.get('wr_per', 3) == 0: I(wr.pop(0)); continue
                if nt == 4 and i + 1 < len(order): self.wait_regs([self.hreg(i + 1)])
                while self.nins - n0 < opt.get('fill5', 2) and slow: I(slow.pop(0))
            seen.add(mu)
        assert not late and not mem
        for x in slow: I(x)
        self.stamp('p5 loop')
        vO = 64; S = 144
        for i in range(10): self.pk('add', S + 2*i, S + 2*i, 164 + 2*i)
        for i in range(10): I(f'v_cvt_pk_bf16_f32 v{vO + i}, v{S + 2*i}, v{S + 2*i + 1}')
        for i in range(10):
            I(f'v_lshlrev_b32 v{S + 2*i}, 16, v{vO + i}'); I(f'v_and_b32 v{S + 2*i + 1}, 0xffff0000, v{vO + i}')
        vO = 76
        for i in range(10):
            self.pk('add', S + 2*i, S + 2*i, vHf + 2*i)
            I(f'v_cvt_pk_bf16_f32 v{vO + i}, v{S + 2*i}, v{S + 2*i + 1}')
            if i == 3: I(f'buffer_store_dwordx4 {vr(vO, 4)}, v{vAd+1}, {OUT}, s44 offen')
            if i == 7: I(f'buffer_store_dwordx4 {vr(vO + 4, 4)}, v{vAd+1}, {OUT}, s44 offen offset:16')
        I(f'buffer_store_dwordx2 {vr(vO + 8, 2)}, v{vAd+1}, {OUT}, s44 offen offset:32')

    def build(self):
        I = self.I
        self.w2next = 0; self.vW2X = 168
        opt = self.opt
        self.p1()
        nm = dict(B=self.b1, t=[self.tw], a=[self.ad], A=self.p3_table_items(vFl + 3, 's63', 's87'))
        sel = self.sel = lambda s: sum([nm[c] if c in nm else self.w1_items([int(c)]) for c in s], [])
        nm['p'] = self.poC
        if opt.get('tall', 1): nm.update(self.touch_all())
        nm['_'] = [[]]
        self.p1a(sel(opt.get('pre', '_Btxyr')), opt.get('pre_per', 12))
        snap = self.cond_begin()
        I(f's_cmp_ge_u32 {sY}, 20'); I('s_cbranch_scc1 L_nop2')
        self.tile()
        self.sprinkle(self.pre_rest, opt.get('pre_per2', 20))
        if opt.get('f2_at', 0) == 0: self.dft32(False, VW + 76)
        self.bg()
        if opt.get('wa_at', 1) == 0: nm['W'] = self.w_addr(VW + 152)
        self.p1b(sel(opt.get('P_p1', '___________p')), opt.get('p1_per', 14))
        self.stamp('p1 sig')
        if opt.get('wa_at', 1) == 1: nm['W'] = self.w_addr(VW + 152)
        self.ldA = self.flag_load('A', sP[18], False)
        self.p2()
        self.cond_end(snap, True); I('s_branch L_join2'); self.label('L_nop2')
        self.vm = list(snap[0]); self.lg = list(snap[1])
        snap = self.cond_begin()
        if set('wvde') & set(opt.get('H_pre', '') + opt.get('H_p1', '') + opt.get('H_x1', '') + opt.get('H_x2', '')): nm.update(self.touch_addr())
        self.run(sel(opt.get('H_pre', '')))
        if opt.get('stT'): self.stamp('tch iss'); self.wait_vm0(); self.stamp('tch ret')
        nm['R'] = self.repack_addr(VW + 152)
        self.run(self.pre_rest)
        self.p1b(sel(opt.get('H_p1', '___________p')), opt.get('p1_perH', 14))
        self.stamp('p1 sig')
        self.helper()
        self.cond_end(snap, True); self.label('L_join2')
        self.vm = [(-1, set())]
        self.stamp('join2')
        self.p3_pre()
        self.stamp('flagB')
        self.w2_loads(self.opt.get('w2_s2', 0))
        self.p3()
        self.p4()
        self.stamp('p4 end')
        self.p5()
        self.stamp('end')
        self.label('L_end'); I('s_endpgm')
        self.out += self.tail

HEADER = open('sequential_preLN__spectral_gfnet__dense_activation_silu__prompt.s.ref').read().split('; Override launch')[0]
def make(stamps=False, **kw):
    k = K(stamps=stamps, **kw); k.build()
    s = HEADER + '; @launch grid=(256,1,1) block=(256,1,1) lds=163840\n'
    s += '; stamps: ' + '|'.join(k.stnames) + '\n'
    s += f'.amdgcn_target "amdgcn-amd-amdhsa--gfx950"\n.text\n.globl {KNAME}\n.p2align 8\n.type {KNAME},@function\n{KNAME}:\n'
    s += k.text()
    s += '.p2align 8\n.type L_tab,@object\nL_tab:\n' + tables.blob_asm(TBLOB) + f'\n.size L_tab, {len(TBLOB)}\n'
    s += f'''.section .rodata,"a"
.p2align 6
.amdhsa_kernel {KNAME}
  .amdhsa_next_free_vgpr 512
  .amdhsa_next_free_sgpr 102
  .amdhsa_accum_offset 256
  .amdhsa_group_segment_fixed_size 0
  .amdhsa_kernarg_size 72
  .amdhsa_user_sgpr_count 2
  .amdhsa_user_sgpr_kernarg_segment_ptr 1
  .amdhsa_system_sgpr_workgroup_id_x 1
.end_amdhsa_kernel
'''
    return s, k
if __name__ == '__main__':
    out = sys.argv[1]; st = 'stamps' in sys.argv[2:]
    kw = {}; opt = {}
    for a in sys.argv[2:]:
        if '=' in a:
            n, v = a.split('=', 1); v = eval(v)
            opt[n] = v
    s, k = make(st, opt=opt, **kw); open(out, 'w').write(s); print('instructions', k.nins, 'bytes', len(s), 'stamps', k.nst)
```

```python
import sys, struct, math
from asmgen import *
import tables

KNAME = 'sequential_preLN__spectral_gfnet__dense_activation_silu__prompt_kernel'
TS = 31488
O_T2, O_LN = 10240, 20480
WS_H1, WS_W2 = 0x800000, 0x1000000
WS_FLA, WS_FLB, WS_EP, WS_FL4 = 0x1300000, 0x1310000, 0x1418000, 0x1420000
FREP = 0x18000
WS_STAMP = 0x1500000
WS_SIZE = 0x2000000
TOFF, TBLOB = tables.all_tables()
def f32(x): return hex(struct.unpack('<I', struct.pack('<f', x))[0])
KORD = [0, 4, 7, 11, 1, 5, 8, 12, 2, 6, 9, 13, 3, 10]

X, WR, WI, W1, W2, OUT, WS, TAB = [sr(4 + 4*i, 4) for i in range(8)]
sW, sG, sM, sS1, sHH, sX8, sY, sTILE = 's36', 's37', 's38', 's39', 's40', 's41', 's42', 's43'
sC = 's[44:45]'; sS = 's[46:47]'
sMASK = 's48'; sCNT = 's49'
sT = ['s50', 's51', 's52', 's53', 's54', 's55', 's56', 's57']
sPAIR = 's[58:59]'; sPC = 's[60:61]'; sTAG2 = 's[62:63]'
sP = [f's{i}' for i in range(64, 84)]
sW2B = 's84'
sH1 = ['s60', 's61', 's100']
sBLK = 's101'
vLane, vN, vG, vL16, vTag = 'v1', 'v2', 'v3', 'v4', 'v5'
vXR = 8
vW1A = 20
vMu = 27
vTW3 = 28
vA3 = 44
VW = 48
vWr, vWi = 212, 228
vPo = 244
vFl = 248
vJunk = 252
vWA = 206
aB1, aF2, aI2, aA3 = 0, 32, 64, 96
aBf = 88
L_XF, L_EX, L_R = 114688, 114688 + 24576, 114688 + 24576 + 10240
L_G, L_H = 114688, 114688 + 32768
L_V, L_ST = 143360, 143360 + 48*288
L_W = 86016
L_RP = 57344

class Rec:
    def __init__(self): self.L = []
    def I(self, x): self.L.append(x)

class K(Gen):
    def __init__(self, stamps=False, opt=None):
        super().__init__(); self.stamps = stamps; self.nst = 0; self.stnames = []; self.opt = opt or {}; self.tail = []; self.toks = {}
    bgq = None; bgper = 0; bgcnt = 0; inbg = False
    def I(self, text):
        t2 = text
        if text.startswith('buffer_load'):
            for c, srds in (('x', (X,)), ('W', (WR, WI)), ('1', (W1,)), ('2', (W2,))):
                if c in self.opt.get('nt', 'W21') and any(f' {d},' in text for d in srds) and 'x4' not in text: t2 = text.replace(' lds', ' nt lds') if text.endswith(' lds') else text + ' nt'
        r = super().I(t2)
        if r is not None: self.toks[text] = r
        if self.bgq and self.bgper and not self.inbg and not text.startswith(('s_cmp', 's_cbranch', 's_branch', 's_add_u32 m0')):
            self.bgcnt += 1
            if self.bgcnt >= self.bgper: self.bgcnt = 0; self.bg(1)
        return r
    def bg(self, n=10**9):
        self.inbg = True
        while n > 0 and self.bgq:
            for x in self.bgq.pop(0): self.I(x)
            n -= 1
        self.inbg = False
    def sprinkle(self, items, period):
        assert not self.bgq
        self.bgq = list(items); self.bgper = period; self.bgcnt = 0
    def cond_begin(self):
        assert not self.bgq or self.inbg or self.allow_bg_cond, 'background items pending at a conditional region'
        return super().cond_begin()
    allow_bg_cond = False
    def pk(self, op, d, a, b, c=None, bsel=None, neg_b=False, neg_c=False, neg_a=False):
        n = 3 if c is not None else 2
        ops = [vr(d, 2), vr(a, 2), b if isinstance(b, str) else vr(b, 2)] + ([vr(c, 2)] if c is not None else [])
        mods = ''
        if bsel is not None:
            lo = [0, bsel, 0][:n]; hi = [1, bsel, 1][:n]
            mods += f' op_sel:[{",".join(map(str, lo))}] op_sel_hi:[{",".join(map(str, hi))}]'
        if neg_a or neg_b or neg_c:
            ng = [int(neg_a), int(neg_b), int(neg_c)][:n]; s = ",".join(map(str, ng))
            mods += f' neg_lo:[{s}] neg_hi:[{s}]'
        self.I(f'v_pk_{op}_f32 ' + ', '.join(ops) + mods)
    def bc(self, r): return (r & ~1, r & 1)
    def weave(self, main, fill, per=2, start=0):
        fill = list(fill)
        for i, m in enumerate(main):
            self.I(m)
            if i >= start:
                for _ in range(per):
                    if fill: self.I(fill.pop(0))
        for f in fill: self.I(f)
    def stamp(self, name='', wait=None, fine=False):
        if self.opt.get('probe2') is not None:
            if name == self.opt.get('pst', 'end') and name != 'end':
                self.inbg = True
                if wait is not None: self.I(f'v_mov_b32 v7, v{wait}')
                self.I('s_memrealtime s[90:91]'); self.wait_lg0(); self.inbg = False
            if name == 'end':
                if not self.opt.get('nodrain'): self.wait_vm0(True)
                self.settle(); I = lambda t: self.raw('    ' + t); W = lambda: I('s_waitcnt vmcnt(0) lgkmcnt(0)'); pm = self.opt['probe2']
                if self.opt.get('pst', 'end') == 'end': I('s_memrealtime s[90:91]')
                I('s_load_dwordx2 s[92:93], s[0:1], 64'); I('s_waitcnt lgkmcnt(0)')
                I(f's_add_u32 s92, s92, {WS_STAMP}'); I('s_addc_u32 s93, s93, 0')
                I('s_lshl_b32 s94, s2, 2'); I(f's_add_u32 s94, s94, {sW}'); I('s_lshl_b32 s94, s94, 6')
                I('s_mov_b64 exec, 1'); I('s_nop 4'); I('v_mov_b32 v10, s94'); I('v_mov_b32 v12, s96'); I('v_mov_b32 v13, s90'); I('s_nop 4')
                I('global_store_dwordx2 v10, v[12:13], s[92:93] sc0 sc1'); W()
                I('s_cmp_lg_u32 s2, 0'); I('s_cbranch_scc1 L_end')
                S0 = self.opt.get("spin0", 4000)
                self.label('L_spin0'); I('s_memrealtime s[94:95]'); W(); I('s_sub_u32 s94, s94, s96'); I(f's_cmp_lt_u32 s94, {S0}'); I('s_cbranch_scc1 L_spin0')
                I('s_mov_b64 exec, -1'); I('s_nop 4'); I('v_mbcnt_lo_u32_b32 v10, -1, 0'); I('v_mbcnt_hi_u32_b32 v10, -1, v10'); I('v_lshlrev_b32 v10, 6, v10'); I('s_nop 4')
                lo, hi = self.opt.get('prange', (0, 16))
                for i in range(16):
                    I(f'global_load_dwordx2 v[{16+2*i}:{17+2*i}], v10, s[92:93] sc0 sc1'); I('v_add_u32 v10, 0x1000, v10'); I('s_nop 4')
                W(); I('s_sub_u32 s94, s96, 100'); I('s_nop 4')
                o = 0 if pm in (2, 3) else 1
                for i in range(16): I(f'v_subrev_u32 v{16+2*i+o}, s94, v{16+2*i+o}')
                if pm == 4:
                    I('v_mbcnt_lo_u32_b32 v10, -1, 0'); I('v_mbcnt_hi_u32_b32 v10, -1, v10')
                    for i in range(16): I(f'v_lshlrev_b32 v{16+2*i+o}, 10, v{16+2*i+o}'); I(f'v_or_b32 v{16+2*i+o}, v{16+2*i+o}, v10'); I(f'v_add_u32 v10, 64, v10')
                op = {1: 'max', 2: 'max', 3: 'min', 4: 'max', 5: 'min', 6: 'add'}[pm]
                I(f'v_mov_b32 v11, v{16+2*lo+o}')
                for i in range(lo + 1, hi): I(f'v_{op}_u32 v11, v11, v{16+2*i+o}')
                I('s_nop 4'); I('v_readlane_b32 s90, v11, 0')
                for i in range(1, 64): I(f'v_readlane_b32 s91, v11, {i}'); I('s_nop 4'); I(f's_{op}_u32 s90, s90, s91')
                if pm == 6: I(f's_mul_i32 s90, s90, {round(40 * 16 * 16 / (hi - lo))}'); I('s_lshr_b32 s90, s90, 14')
                elif pm == 4: I('s_and_b32 s90, s90, 1023'); I('s_mul_i32 s90, s90, 100')
                else: I('s_mul_i32 s90, s90, 40')
                I('s_min_u32 s90, s90, 200000'); I(f's_add_u32 s90, s90, {S0 + 1000}')
                self.label('L_spin'); I('s_memrealtime s[92:93]'); W(); I('s_sub_u32 s92, s92, s96'); I('s_cmp_lt_u32 s92, s90'); I('s_cbranch_scc1 L_spin')
            return
        if self.opt.get('probe'):
            if name == self.opt['probe']:
                self.inbg = True
                if wait is not None: self.I(f'v_mov_b32 v7, v{wait}')
                self.I('s_memtime s[90:91]' if self.opt.get('pcyc') else 's_memrealtime s[90:91]'); self.wait_lg0(); self.inbg = False
            if name == 'end':
                I = self.I
                I(f's_cmp_lg_u32 s2, {self.opt.get("pwg", 0)}'); I('s_cbranch_scc1 L_end')
                if self.opt.get('pcyc'): I('s_sub_u32 s90, s90, s98'); I('s_min_u32 s90, s90, 200000')
                else: I('s_sub_u32 s90, s90, s96'); I('s_min_u32 s90, s90, 5000'); I('s_mul_i32 s90, s90, 40')
                self.label('L_spin'); I('s_memrealtime s[92:93]'); self.wait_lg0(); I('s_sub_u32 s92, s92, s96'); I('s_cmp_lt_u32 s92, s90'); I('s_cbranch_scc1 L_spin')
            return
        if not self.stamps or (fine and not self.opt.get('fine')): return
        if self.opt.get('st4') and name.startswith(('p1', 'p2', 'pre', 'p3', 'fla', 'x a', 'joi')): return
        if name not in self.stnames: self.stnames.append(name); self.nst += 1
        self.inbg = True
        if wait is not None: self.I(f'v_mov_b32 v7, v{wait}')
        i = self.stnames.index(name); assert i < 32
        if name == 'entry':
            self.I('v_mov_b32 v6, 0'); a, b = 96, 98
        elif name == 'kernarg': a, b = 92, 94
        else:
            self.I('s_memrealtime s[96:97]'); self.I('s_memtime s[98:99]'); a, b = 96, 98
        self.wait_lg0()
        self.I(f'v_writelane_b32 v6, s{b}, {i}'); self.I(f'v_writelane_b32 v6, s{a}, {32 + i}'); self.I(f'v_writelane_b32 v255, {sCNT}, {i}')
        if name == 'end':
            self.I(f's_lshl_b32 s90, s2, 10'); self.I(f's_add_u32 s90, s90, {WS_STAMP}')
            self.I(f's_lshl_b32 s91, {sW}, 8'); self.I(f's_add_u32 s90, s90, s91')
            self.I(f'v_lshlrev_b32 v7, 2, {vLane}')
            self.I(f'buffer_store_dword v6, v7, {WS}, s90 offen')
            self.I(f's_add_u32 s90, s90, 0x40000'); self.I(f'buffer_store_dword v255, v7, {WS}, s90 offen')
        self.inbg = False

    def dft5_half(self, z, t):
        a, b, c, d, u0, u1, u2, v1, v2 = t
        self.pk('add', a, z[1], z[4]); self.pk('add', b, z[2], z[3])
        self.pk('add', c, z[1], z[4], neg_b=True); self.pk('add', d, z[2], z[3], neg_b=True)
        self.pk('add', u0, z[0], a); self.pk('fma', u1, a, sC, z[0], bsel=0); self.pk('fma', u2, a, sC, z[0], bsel=1)
        self.pk('mul', v1, c, sS, bsel=0); self.pk('mul', v2, c, sS, bsel=1)
        self.pk('add', u0, u0, b); self.pk('fma', u1, b, sC, u1, bsel=1); self.pk('fma', u2, b, sC, u2, bsel=0)
        self.pk('fma', v1, d, sS, v1, bsel=1); self.pk('fma', v2, d, sS, v2, bsel=0, neg_b=True)
        return u0, u1, u2, v1, v2
    def finish_stats(self, vs, vq, scale):
        rnd = [f'v_cvt_pk_bf16_f32 {vq}, {vq}, {vq}', f'v_lshlrev_b32 {vq}, 16, {vq}']
        L = [f'v_mul_f32 {vs}, {f32(1/640.)}, {vs}', f'v_mul_f32 {vq}, {f32(1/640.)}, {vq}',
             f'v_fma_f32 {vq}, -{vs}, {vs}, {vq}', f'v_max_f32 {vq}, 0, {vq}'] + rnd + [f'v_add_f32 {vq}, {f32(1e-5)}, {vq}'] + rnd
        L += [f'v_sqrt_f32 {vq}, {vq}'] + rnd
        if scale is None: return L
        L += [f'v_rcp_f32 {vq}, {vq}']
        if scale != 1.0: L.append(f'v_mul_f32 {vq}, {f32(scale)}, {vq}')
        return L

    def p1(self):
        I = self.I
        sRH = sP[1]
        vX = VW; vF = VW + 20; vTW = VW + 40; vA2 = VW + 56; vAd = VW + 64
        vAf = VW + 76; vAcc = VW + 124; vT = VW + 148
        if self.stamps or self.opt.get('probe') or self.opt.get('probe2') is not None: I('s_memrealtime s[96:97]'); I('s_memtime s[98:99]')
        for d, o in ((4, 0), (28, 64), (8, 8), (12, 16), (16, 32), (20, 40), (24, 48)): I(f's_load_dwordx2 s[{d}:{d+1}], s[0:1], {o}')
        I('s_cmp_ge_u32 s2, 256'); I('s_cbranch_scc1 L_end')
        I(f's_getpc_b64 {sPC}'); self.label('L_pc')
        I(f's_lshr_b32 {sY}, s2, 3'); I(f'v_min_u32 v6, 26, v0'); I(f's_mul_i32 {sT[0]}, {sY}, {27*128}')
        I(f'v_lshl_add_u32 v6, v6, 7, {sT[0]}'); I(f'v_min_u32 v6, (L_tab - L_pc + {len(TBLOB) - 4}), v6')
        I(f'global_load_dword v7, v6, {sPC}')
        I(f's_and_b32 {sX8}, s2, 7'); I(f'v_and_b32 {vN}, 15, v0'); I(f'v_lshrrev_b32 v{vAd+1}, 4, v0')
        if self.opt.get('split2', 4) == 4:
            I(f's_lshr_b32 {sG}, {sX8}, 2'); I(f's_lshr_b32 {sT[0]}, {sY}, 2'); I(f's_lshl3_add_u32 {sG}, {sG}, {sT[0]}')
            I(f's_and_b32 {sM}, s2, 3'); I(f's_and_b32 {sT[0]}, {sY}, 3'); I(f's_lshl2_add_u32 {sM}, {sM}, {sT[0]}')
        elif self.opt.get('split2', 4):
            I(f's_lshr_b32 {sG}, {sX8}, 1'); I(f's_lshl_b32 {sG}, {sG}, 2'); I(f's_lshr_b32 {sT[0]}, {sY}, 3'); I(f's_add_u32 {sG}, {sG}, {sT[0]}')
            I(f's_and_b32 {sM}, s2, 1'); I(f's_lshl_b32 {sM}, {sM}, 3'); I(f's_and_b32 {sT[0]}, {sY}, 7'); I(f's_add_u32 {sM}, {sM}, {sT[0]}')
        else:
            I(f's_lshl_b32 {sG}, {sX8}, 1'); I(f's_lshr_b32 {sT[0]}, {sY}, 4'); I(f's_add_u32 {sG}, {sG}, {sT[0]}'); I(f's_and_b32 {sM}, {sY}, 15')
        I(f's_lshl4_add_u32 {sBLK}, {sG}, {sM}'); I(f's_lshr_b32 {sS1}, {sBLK}, 1')
        I(f'v_mul_u32_u24 v{vF}, 163840, v{vAd+1}'); I(f'v_mul_u32_u24 v{vF+1}, 80, {vN}')
        if self.opt.get('xt'): I(f'v_min_u32 v{vF+2}, 9, {vN}'); I(f'v_lshl_add_u32 v{vF+2}, v{vF+2}, 7, v{vF}')
        I(f'v_add_u32 v{vF}, v{vF}, v{vF+1}')
        I(f's_mul_i32 {sP[12]}, {sS1}, 1280'); I('s_mov_b32 s6, 2621440'); I('s_mov_b32 s7, 0x20000')
        I(f's_mov_b32 s30, {WS_SIZE}'); I(f's_mov_b32 s31, 0x20000'); I(f's_mov_b32 {sP[13]}, {WS_EP}')
        self.wait_lg0()
        if self.stamps and self.opt.get('fine'): I('s_memrealtime s[92:93]'); I('s_memtime s[94:95]')
        if self.opt.get('xt'): I(f'buffer_load_dword v{vF+3}, v{vF+2}, {X}, {sP[12]} offen nt')
        for e in range(5): I(f'buffer_load_dwordx4 {vr(vX + 4*e, 4)}, v{vF}, {X}, {sP[12]} offen offset:{16*e}')
        I(f'buffer_load_dword {vTag}, off, {WS}, {sP[13]} sc1')
        I('v_lshrrev_b32 v6, 6, v0'); I(f'v_and_b32 {vLane}, 63, v0')
        I(f'v_readfirstlane_b32 {sW}, v6')
        I('s_add_u32 s32, s60, (L_tab - L_pc)'); I('s_addc_u32 s33, s61, 0')
        I(f's_mov_b32 s34, {len(TBLOB)}'); I('s_mov_b32 s35, 0x20000')
        I(f'v_lshlrev_b32 {vL16}, 4, {vLane}'); I(f's_and_b32 {sHH}, {sY}, 1'); I(f's_mov_b32 {sCNT}, 0x20000')
        self.stamp('entry'); self.stamp('kernarg', fine=True)
        for srd, n in ((8, 1314816), (12, 1314816), (16, 2211840), (20, 2211840), (24, 2621440)):
            I(f's_mov_b32 s{srd+2}, {n}'); I(f's_mov_b32 s{srd+3}, 0x20000')
        if self.opt.get('no_w1'): I('s_mov_b32 s18, 0')
        if self.opt.get('no_W'): I('s_mov_b32 s10, 0'); I('s_mov_b32 s14, 0'); I('s_mov_b32 s22, 0')
        I(f's_mul_i32 s86, {sW}, 7168'); I(f's_lshl_b32 s63, {sW}, 13')
        I(f's_and_b32 {sT[0]}, {sW}, 1'); I(f's_lshl1_add_u32 {sT[7]}, {sHH}, {sT[0]}')
        I(f's_lshl_b32 {sP[14]}, {sT[7]}, 13'); I(f's_add_u32 {sP[15]}, {sP[14]}, 4096')
        I(f's_lshl_b32 {sP[7]}, {sT[7]}, 10'); I(f's_add_u32 {sP[7]}, {sP[7]}, {TOFF["TW"]}'); I(f'v_lshlrev_b32 v{vAd}, 6, {vN}')
        self.b1 = [[f'buffer_load_dwordx4 {ar(aB1 + 4*f, 4)}, {vL16}, {TAB}, {sP[14 + (f >> 2)]} offen offset:{(f & 3)*1024}'] for f in (0, 4, 1, 5, 2, 6, 3, 7)]
        self.tw = [f'buffer_load_dwordx4 {vr(vTW + 4*f, 4)}, v{vAd}, {TAB}, {sP[7]} offen offset:{16*f}' for f in range(4)]
        self.ad = [f's_mov_b32 s88, {TOFF["AD"]}', f'buffer_load_dwordx4 {vr(vW1A, 4)}, {vL16}, {TAB}, s88 offen', f'buffer_load_dwordx3 {vr(vW1A + 4, 3)}, {vL16}, {TAB}, s88 offen offset:1024']
        self.poC = [[f'buffer_store_dwordx4 {vr(vPo, 4)}, v{vWi}, {WS}, {sP[(10, 10, 12)[i]]} offen offset:{i*128} sc1'] for i in range(3)]
    def touch_addr(self):
        I = self.I; a = vWr
        I(f's_lshl2_add_u32 {sT[0]}, {sY}, {sW}'); I(f's_sub_u32 {sT[0]}, {sT[0]}, 80')
        I(f's_sub_u32 {sT[3]}, 16, {sX8}'); I(f's_cmp_eq_u32 {sX8}, 0'); I(f's_cselect_b32 {sT[3]}, 8, {sT[3]}')
        I(f's_sub_u32 {sT[3]}, {sT[3]}, {sX8}'); I(f's_mul_i32 {sT[3]}, {sT[3]}, 642')
        I(f'v_and_b32 v{a}, 7, v0'); I(f'v_min_u32 v{a}, 5, v{a}'); I(f'v_lshlrev_b32 v{a}, 7, v{a}'); I(f'v_bfe_u32 v{a+1}, v0, 3, 1'); I(f'v_mad_u32_u24 v{a}, v{a+1}, {sT[3]}, v{a}')
        I(f'v_min_u32 v{a+1}, 2, {vG}'); I(f'v_mul_u32_u24 v{a+1}, {16*642}, v{a+1}'); I(f'v_add_u32 v{a}, v{a}, v{a+1}')
        I(f's_mul_i32 {sP[16]}, {sT[0]}, 48'); I(f's_add_u32 {sP[16]}, {sP[16]}, {sX8}'); I(f's_mul_i32 {sP[16]}, {sP[16]}, 642')
        I(f's_lshl3_add_u32 {sP[17]}, {sT[0]}, {sX8}'); I(f's_mul_i32 {sP[17]}, {sP[17]}, {45*128}')
        I(f'v_min_u32 v{a+2}, 22, {vLane}'); I(f'v_lshlrev_b32 v{a+2}, 7, v{a+2}')
        return dict(w=[[f'buffer_load_ushort v{vJunk}, v{a}, {WR}, {sP[16]} offen']], v=[[f'buffer_load_ushort v{vJunk+1}, v{a}, {WI}, {sP[16]} offen']],
                    d=[[f'buffer_load_dword v{vFl+1}, v{a+2}, {W1}, {sP[17]} offen']], e=[[f'buffer_load_dword v{vFl+2}, v{a+2}, {W1}, {sP[17]} offen offset:{23*128}']])
    def touch_all(self):
        I = self.I; a = vWr + 4; u = sP[19]
        I(f's_lshl2_add_u32 {u}, {sY}, {sW}')
        I(f's_sub_u32 {sT[3]}, 16, {sX8}'); I(f's_cmp_eq_u32 {sX8}, 0'); I(f's_cselect_b32 {sT[3]}, 8, {sT[3]}')
        I(f's_sub_u32 {sT[3]}, {sT[3]}, {sX8}'); I(f's_mul_i32 {sT[3]}, {sT[3]}, 642')
        I(f'v_and_b32 v{a}, 7, v0'); I(f'v_min_u32 v{a}, 5, v{a}'); I(f'v_lshlrev_b32 v{a}, 7, v{a}'); I(f'v_bfe_u32 v{a+1}, v0, 3, 1'); I(f'v_mad_u32_u24 v{a}, v{a+1}, {sT[3]}, v{a}')
        I(f'v_bfe_u32 v{a+1}, v0, 4, 2'); I(f'v_lshl_add_u32 v{a}, v{a+1}, 28, v{a}')
        I(f's_lshl4_add_u32 {sP[4]}, {u}, {sX8}'); I(f's_mul_i32 {sP[4]}, {sP[4]}, 642')
        if not self.opt.get('rd', 1): return dict(x=[[f'buffer_load_ushort v{vJunk}, v{a}, {WR}, {sP[4]} offen']], y=[[f'buffer_load_ushort v{vJunk+1}, v{a}, {WI}, {sP[4]} offen']])
        I(f'v_min_u32 v{a+2}, 17, {vLane}'); I(f'v_lshlrev_b32 v{a+2}, 7, v{a+2}')
        I(f's_mul_i32 {sP[5]}, {sX8}, {7*40960}'); I(f's_mul_i32 {sT[3]}, {u}, {18*128}'); I(f's_add_u32 {sP[5]}, {sP[5]}, {sT[3]}')
        I(f'v_and_b32 v{a+3}, 7, v0'); I(f'v_min_u32 v{a+3}, 6, v{a+3}'); I(f'v_lshrrev_b32 v{a+1}, 3, {vLane}'); I(f'v_min_u32 v{a+1}, 4, v{a+1}')
        if self.opt.get('shalf'):
            I(f's_lshr_b32 {sT[3]}, {sX8}, 2'); I(f's_xor_b32 {sT[3]}, {sT[3]}, {u}'); I(f's_and_b32 {sT[3]}, {sT[3]}, 1')
            I(f'v_lshl_add_u32 v{a+1}, v{a+1}, 1, {sT[3]}'); I(f's_sub_u32 {sT[3]}, 4, {sT[3]}'); I(f'v_min_u32 v{a+1}, {sT[3]}, v{a+1}')
        I(f'v_mul_u32_u24 v{a+1}, 3456, v{a+1}'); I(f'v_lshl_add_u32 v{a+3}, v{a+3}, 7, v{a+1}')
        I(f's_and_b32 {sT[3]}, s2, 3'); I(f's_mul_i32 {sT[3]}, {sT[3]}, 896'); I(f's_mul_i32 {sP[6]}, {u}, {5*3456}'); I(f's_add_u32 {sP[6]}, {sP[6]}, {sT[3]}')
        return dict(x=[[f'buffer_load_ushort v{vJunk}, v{a}, {WR}, {sP[4]} offen']], y=[[f'buffer_load_ushort v{vJunk+1}, v{a}, {WI}, {sP[4]} offen']],
                    r=[[f'buffer_load_dword v{vFl+1}, v{a+2}, {W2}, {sP[5]} offen']], s=[[f'buffer_load_dword v{vFl+2}, v{a+3}, {W1}, {sP[6]} offen']])
    def tile(self):
        I = self.I
        I(f's_sub_u32 {sT[3]}, 16, {sX8}'); I(f's_cmp_eq_u32 {sX8}, 0'); I(f's_cselect_b32 {sT[3]}, 8, {sT[3]}')
        I(f's_cmp_lt_u32 {sY}, 10'); I(f's_cselect_b32 {sTILE}, {sX8}, {sT[3]}'); I(f's_cselect_b32 {sT[4]}, 0, 10')
        I(f's_mul_i32 {sTILE}, {sTILE}, 10'); I(f's_add_u32 {sTILE}, {sTILE}, {sY}'); I(f's_sub_u32 {sTILE}, {sTILE}, {sT[4]}')
    def p1a(self, pre, per):
        I = self.I
        sRH = sP[1]
        vX = VW; vF = VW + 20; vTW = VW + 40; vA2 = VW + 56; vAd = VW + 64
        vAf = VW + 76; vAcc = VW + 124; vT = VW + 148
        self.sprinkle(pre, per)
        I(f's_mul_i32 {sBLK}, {sBLK}, {TS}')
        for i in range(4): I(f'v_mov_b32 v{vPo+i}, -1')
        I(f'v_lshrrev_b32 {vG}, 4, {vLane}')
        I(f's_mov_b32 s44, {f32(math.cos(2*math.pi/5))}'); I(f's_mov_b32 s45, {f32(math.cos(4*math.pi/5))}')
        I(f's_mov_b32 s46, {f32(math.sin(2*math.pi/5))}'); I(f's_mov_b32 s47, {f32(math.sin(4*math.pi/5))}')
        I(f's_mov_b32 {sMASK}, 0xffff')
        aWr, aWrO, aRd, aRdO, aRw, aRr, aXc, aExW, aExR, aSt = [vAd + 2 + i for i in range(10)]
        I(f'v_and_b32 v{aWr}, 7, v0'); I(f'v_xor_b32 v{aWr}, v{vAd+1}, v{aWr}'); I(f'v_lshlrev_b32 v{aWr}, 4, v{aWr}')
        I(f'v_lshl_add_u32 v{aWr}, {vN}, 8, v{aWr}'); I(f'v_add_u32 v{aWr}, {L_XF}, v{aWr}'); I(f'v_xor_b32 v{aWrO}, 128, v{aWr}')
        I(f's_lshr_b32 {sRH}, {sW}, 1'); I(f's_lshl_b32 {sT[4]}, {sRH}, 3')
        I(f'v_lshrrev_b32 v{vT}, 2, {vN}'); I(f'v_lshlrev_b32 v{vT}, 1, v{vT}'); I(f'v_and_b32 v{vT+1}, 1, {vN}'); I(f'v_add3_u32 v{vT}, v{vT}, v{vT+1}, {sT[4]}')
        I(f'v_bfe_u32 v{vT+1}, {vN}, 1, 1'); I(f'v_lshlrev_b32 v{vT+2}, 3, v{vT+1}'); I(f'v_xor_b32 v{vT}, v{vT}, v{vT+2}'); I(f'v_xor_b32 v{vT}, v{vT}, {vG}')
        I(f'v_lshlrev_b32 v{vT}, 4, v{vT}'); I(f'v_lshl_add_u32 v{vT}, {vG}, 8, v{vT}'); I(f'v_lshl_add_u32 v{vT}, v{vT+1}, 12, v{vT}')
        I(f'v_add_u32 v{aRd}, {L_XF}, v{vT}'); I(f'v_xor_b32 v{aRdO}, 64, v{aRd}')
        I(f'v_cvt_f32_u32 v{vT}, {vN}'); I(f'v_mul_f32 v{vT}, {f32(1/2048.)}, v{vT}')
        I(f'v_lshlrev_b32 v{vT+1}, 8, {vG}'); I(f'v_add_u32 v{vT+1}, {sS1}, v{vT+1}'); I(f'v_cvt_f32_u32 v{vT+1}, v{vT+1}')
        for e in range(4):
            I(f'v_add_f32 v{vT+2}, {f32(128.0*((e & 1) + 8*(e >> 1)))}, v{vT+1}'); I(f'v_mul_f32 v{vT+2}, v{vT}, v{vT+2}')
            I(f'v_cos_f32 v{vT+3}, v{vT+2}'); I(f'v_sin_f32 v{vT+4}, v{vT+2}')
            I(f'v_cvt_pk_f16_f32 v{vA2+e}, v{vT+3}, v{vT+4}'); I(f'v_cvt_pk_f16_f32 v{vA2+4+e}, -v{vT+4}, v{vT+3}')
        I(f'v_lshlrev_b32 v{aRw}, 2, v{vAd+1}'); I(f'v_add_u32 v{aRw}, {L_R}, v{aRw}')
        I(f's_lshl_b32 {sT[4]}, {sRH}, 5'); I(f's_add_u32 {sT[4]}, {sT[4]}, {L_R}'); I(f'v_lshl_add_u32 v{aRr}, {vG}, 3, {sT[4]}')
        I(f's_lshl_b32 {sT[4]}, {sHH}, 5'); I(f's_add_u32 {sT[4]}, {sT[4]}, {L_R + 64}'); I(f'v_and_b32 v{vMu}, 7, v0'); I(f'v_lshl_add_u32 v{vMu}, v{vMu}, 2, {sT[4]}')
        I(f's_lshl_b32 {sT[4]}, {sHH}, 3'); I(f's_and_b32 {sT[5]}, {sW}, 1'); I(f's_lshl_b32 {sT[6]}, {sT[5]}, 2'); I(f's_xor_b32 {sT[4]}, {sT[4]}, {sT[6]}')
        I(f'v_xor_b32 v{aXc}, {vN}, {vG}'); I(f'v_xor_b32 v{aXc}, {sT[4]}, v{aXc}')
        I(f'v_lshlrev_b32 v{aXc}, 4, v{aXc}'); I(f'v_lshl_add_u32 v{aXc}, {vG}, 8, v{aXc}')
        I(f'v_lshrrev_b32 v{vT+1}, 3, {vN}'); I(f'v_lshl_add_u32 v{aXc}, v{vT+1}, 12, v{aXc}')
        I(f's_lshl_b32 {sT[4]}, {sW}, 10'); I(f's_add_u32 {sT[4]}, {sT[4]}, {L_XF}'); I(f'v_add_u32 v{aXc}, {sT[4]}, v{aXc}')
        I(f's_mul_i32 {sT[4]}, {sT[5]}, 5120'); I(f's_add_u32 {sT[4]}, {sT[4]}, {L_EX}'); I(f's_lshl_b32 {sP[2]}, {sT[5]}, 6')
        I(f's_lshl_b32 {sT[5]}, {sRH}, 3'); I(f's_add_u32 {sT[5]}, {sT[5]}, {sT[4]}'); I(f'v_add_u32 v{aExW}, {sT[5]}, {vL16}')
        I(f's_mul_i32 {sT[5]}, {sRH}, 3072'); I(f's_add_u32 {sT[5]}, {sT[5]}, {sT[4]}'); I(f'v_add_u32 v{aExR}, {sT[5]}, {vL16}')
        I(f'v_mul_u32_u24 v{aSt}, 2560, {vG}'); I(f'v_lshl_add_u32 v{aSt}, {vN}, 2, v{aSt}')
        I(f's_add_u32 {sP[2]}, {sP[2]}, {sBLK}'); I(f's_mul_i32 {sT[5]}, {sRH}, 384'); I(f's_add_u32 {sP[2]}, {sP[2]}, {sT[5]}')
        I(f's_and_b32 {sT[4]}, {sW}, 1'); I(f's_mul_i32 {sT[4]}, {sT[4]}, {5120 - 64}'); I(f's_add_u32 {sP[10]}, {sP[2]}, {sT[4]}'); I(f's_add_u32 {sP[10]}, {sP[10]}, {O_T2}')
        I(f's_lshl_b32 {sT[4]}, {sRH}, 26'); I(f's_add_u32 {sP[12]}, {sP[10]}, {sT[4]}')
        I(f'v_lshrrev_b32 v{vWi}, 3, {vLane}'); I(f'v_mul_u32_u24 v{vWi}, {640 - 128}, v{vWi}'); I(f'v_add_u32 v{vWi}, v{vWi}, {vL16}')
        I(f's_lshl1_add_u32 {sP[3]}, {sS1}, {sHH}'); I(f's_lshl2_add_u32 {sP[3]}, {sP[3]}, {sW}'); I(f's_lshl_b32 {sP[3]}, {sP[3]}, 6'); I(f's_add_u32 {sP[3]}, {sP[3]}, {WS_FLA}')
        I(f's_mul_i32 s85, {sW}, {160*3456}'); I(f's_mul_i32 {sT[5]}, {sM}, 224'); I(f's_add_u32 s85, s85, {sT[5]}');
        I(f'v_mov_b32 v{vT+2}, 0x3f803f80'); I(f'v_lshrrev_b32 v211, 3, {vLane}'); I(f'v_mul_u32_u24 v211, {FREP - 64}, v211'); I(f'v_lshl_add_u32 v211, {vLane}, 3, v211')
        self.pre_rest = self.bgq; self.bgq = None
    def p1b(self, bulk, per):
        I = self.I
        sRH = sP[1]
        vX = VW; vF = VW + 20; vTW = VW + 40; vA2 = VW + 56; vAd = VW + 64
        vAf = VW + 76; vAcc = VW + 124; vT = VW + 148
        aWr, aWrO, aRd, aRdO, aRw, aRr, aXc, aExW, aExR, aSt = [vAd + 2 + i for i in range(10)]
        vs, vq, vone = f'v{vT}', f'v{vT+1}', f'v{vT+2}'
        I(f'v_cmp_gt_u32 vcc, 8, {vN}')
        self.stamp('prework', fine=True)
        self.stamp('x arrived', wait=vX + 19)
        self.wait_regs([vX + 19])
        self.allow_bg_cond = True
        self.sprinkle(bulk, per)
        for c in range(5):
            for e in range(4):
                a = vX + (10*e + c)//2; b = vX + (10*e + 5 + c)//2
                if c % 2 == 0: I(f'v_bfi_b32 v{vF + 4*c + e}, {sMASK}, v{a}, v{b}')
                else: I(f'v_alignbit_b32 v{vF + 4*c + e}, v{b}, v{a}, 16')
            I(f'ds_write_b128 v{aWrO if c & 1 else aWr}, {vr(vF + 4*c, 4)} offset:{c*4096}')
            for e in range(4*c, 4*c + 4):
                I(f'v_dot2_f32_bf16 {vs}, v{vX+e}, {vone}, {vs if e else 0}'); I(f'v_dot2_f32_bf16 {vq}, v{vX+e}, v{vX+e}, {vq if e else 0}')
        I(f'v_readfirstlane_b32 s62, {vTag}')
        self.barrier()
        self.stamp('p1 barA', fine=True)
        for ks in range(4):
            for tau in range(3):
                I(f'ds_read_b128 {vr(vAf + 4*(ks*3 + tau), 4)}, v{aRdO if ks & 1 else aRd} offset:{tau*8192 + ks*1024}')
        I('s_mul_i32 s62, s62, 0x9E3779B1'); I('s_add_u32 s62, s62, 0x7F4A7C15'); I(f'v_mov_b32 {vTag}, s62'); I(f'v_mov_b32 v{vWr+8}, s62'); I(f'v_mov_b32 v{vWr+9}, s62')
        fill = []
        for sh in (8, 4, 2, 1):
            fill += [f'v_add_f32_dpp {vs}, {vs}, {vs} row_ror:{sh} row_mask:0xf bank_mask:0xf', f'v_add_f32_dpp {vq}, {vq}, {vq} row_ror:{sh} row_mask:0xf bank_mask:0xf']
        fill += self.finish_stats(vs, vq, 1.0/(math.sqrt(640.0)*4)) + [f'ds_write_b32 v{aRw}, {vq}', f'ds_write_b32 v{aRw}, {vs} offset:64']
        fill += [f'ds_read_b128 {vr(vXR + 4*tau, 4)}, v{aXc} offset:{tau*8192}' for tau in range(3)]
        mf = []
        for ks in range(4):
            for tau in range(3):
                for p in range(2):
                    d = vr(vAcc + 4*(tau*2 + p), 4)
                    mf.append(f'v_mfma_f32_16x16x32_bf16 {d}, {vr(vAf + 4*(ks*3 + tau), 4)}, {ar(aB1 + 4*(p*4 + ks), 4)}, {"0" if ks == 0 else d}')
        self.weave(mf, fill, per=2)
        self.barrier()
        self.stamp('p1 barB', fine=True)
        vR = vAd
        I(f'ds_read_b64 {vr(vR, 2)}, v{aRr}'); I(f'ds_read_b32 v{vMu}, v{vMu}')
        for i in range(4): I(f'v_cndmask_b32 v{vXR+8+i}, 0, v{vXR+8+i}, vcc')
        Vr = [vAcc + 4*((c >> 1)*2 + 0) + 2*(c & 1) for c in range(5)]
        Vi = [vAcc + 4*((c >> 1)*2 + 1) + 2*(c & 1) for c in range(5)]
        pool = [vX + 2*i for i in range(20)] + [vAf + 2*i for i in range(24)]
        zr = [Vr[0]] + [pool.pop(0) for _ in range(4)]; zi = [Vi[0]] + [pool.pop(0) for _ in range(4)]
        for c in range(1, 5):
            t1, t2, t3 = self.bc(vTW + c - 1), self.bc(vTW + 4 + c - 1), self.bc(vTW + 8 + c - 1)
            self.pk('mul', zr[c], Vr[c], t1[0], bsel=t1[1]); self.pk('mul', zi[c], Vi[c], t3[0], bsel=t3[1])
            self.pk('fma', zr[c], Vi[c], t2[0], zr[c], bsel=t2[1]); self.pk('fma', zi[c], Vr[c], t2[0], zi[c], bsel=t2[1], neg_b=True)
        u0, u1, u2, v1, v2 = self.dft5_half(zr, [pool.pop(0) for _ in range(9)])
        U0, U1, U2, V1, V2 = self.dft5_half(zi, [pool.pop(0) for _ in range(9)])
        mu = self.bc(vTW + 12)
        Xr = [pool.pop(0) for _ in range(5)]; Xi = [U0] + [pool.pop(0) for _ in range(4)]
        fm = lambda d, a, c, neg_c=False: self.pk('fma', d, a, mu[0], c, bsel=mu[1], neg_c=neg_c)
        comb = [lambda: self.pk('mul', Xr[0], u0, mu[0], bsel=mu[1]),
                lambda: (fm(Xr[1], V1, u1), fm(Xi[1], U1, v1, True)), lambda: (fm(Xr[2], V2, u2), fm(Xi[2], U2, v2, True)),
                lambda: (fm(Xr[3], u2, V2, True), fm(Xi[3], v2, U2)), lambda: (fm(Xr[4], u1, V1, True), fm(Xi[4], v1, U1))]
        for m5 in range(5):
            comb[m5]()
            self.pk('mul', Xr[m5], Xr[m5], vR); self.pk('mul', Xi[m5], Xi[m5], vR)
            d = vT + 2*m5
            I(f'v_cvt_pk_f16_f32 v{d}, v{Xr[m5]}, v{Xi[m5]}'); I(f'v_cvt_pk_f16_f32 v{d+1}, v{Xr[m5]+1}, v{Xi[m5]+1}')
            I(f'ds_write_b64 v{aExW}, {vr(d, 2)} offset:{m5*1024}')
        self.stamp('p1 valu', fine=True)
        self.barrier()
        vB = vX; vO = vX + 12; vP = vAf
        for sl in range(3): I(f'ds_read_b128 {vr(vB + 4*sl, 4)}, v{aExR} offset:{sl*1024}')
        rest = self.bgq; self.bgq = None
        for sl in range(3):
            for p in range(2):
                I(f'v_mfma_f32_16x16x32_f16 {vr(vO + 8*sl + 4*p, 4)}, {vr(vA2 + 4*p, 4)}, {vr(vB + 4*sl, 4)}, 0')
        for sl in range(3):
            if sl == 2:
                snap = self.cond_begin(); L = self.newlabel('Lp1')
                I(f's_cmp_eq_u32 {sRH}, 1'); I(f's_cbranch_scc1 {L}')
            for i in range(4):
                I(f'v_cvt_pk_f16_f32 v{vP + 4*sl + i}, v{vO + 8*sl + i}, v{vO + 8*sl + 4 + i}')
                I(f'buffer_store_dword v{vP + 4*sl + i}, v{aSt}, {WS}, {sP[2]} offen offset:{sl*128 + i*640} sc1')
            if sl == 2: self.cond_end(snap); self.label(L)
        self.stamp('p1 end')
        self.toks.pop(self.poC[-1][0])
        self.wait_vm0(True)
        I(f'buffer_store_dwordx2 {vr(vWr+8, 2)}, v211, {WS}, {sP[3]} offen sc1')
        for it in rest:
            for x in it: I(x)

    def frag_items(self, name, areg, sbase, stmp):
        return [([f's_add_u32 {stmp}, {sbase}, {TOFF[name] + f*1024}'] if f % 4 == 0 else []) +
                [f'buffer_load_dwordx4 {ar(areg + 4*f, 4)}, {vL16}, {TAB}, {stmp} offen offset:{(f & 3)*1024}'] for f in range(8)]
    def p3_table_items(self, t, s0, s1):
        L = self.frag_items('A3', aA3, s0, s1)
        L.append([f's_lshl_b32 {s1}, {sW}, 10', f's_add_u32 {s1}, {s1}, {TOFF["TW"]}', f'v_lshlrev_b32 v{t}, 6, {vN}'] +
                 [f'buffer_load_dwordx4 {vr(vTW3 + 4*f, 4)}, v{t}, {TAB}, {s1} offen offset:{16*f}' for f in range(4)])
        return L
    def dft32(self, inv, t):
        I = self.I
        I(f'v_and_b32 v{t}, 31, {vLane}'); I(f'v_lshrrev_b32 v{t+1}, 5, {vLane}')
        if inv: I(f'v_lshl_add_u32 v{t}, v{t}, 2, {sW}'); I(f'v_lshlrev_b32 v{t+1}, 2, v{t+1}')
        else: I(f'v_lshl_add_u32 v{t+1}, v{t+1}, 4, {sW}')
        I(f'v_cvt_f32_u32 v{t}, v{t}'); I(f'v_cvt_f32_u32 v{t+1}, v{t+1}'); I(f'v_mul_f32 v{t}, {f32(1/128.)}, v{t}'); I(f'v_mul_f32 v{t+1}, v{t}, v{t+1}')
        cv = 'v_cvt_pk_bf16_f32' if inv else 'v_cvt_pk_f16_f32'; base = aI2 if inv else aF2
        for i0 in range(0, 16, 2):
            for j in range(2):
                i = i0 + j; k = (8*(i >> 2) + (i & 3))*(1 if inv else 4); r = t + 2 + 3*j
                I(f'v_fmamk_f32 v{r}, v{t}, {f32(float(k))}, v{t+1}'); I(f'v_cos_f32 v{r+1}, v{r}'); I(f'v_sin_f32 v{r+2}, v{r}')
            for j in range(2):
                r = t + 2 + 3*j; s0, s1 = ('-', '') if inv else ('', '-')
                I(f'{cv} v{r}, v{r+1}, {s0}v{r+2}'); I(f'{cv} v{r+1}, {s1}v{r+2}, v{r+1}')
            for j in range(2):
                r = t + 2 + 3*j
                I(f'v_accvgpr_write_b32 a{base + i0 + j}, v{r}'); I(f'v_accvgpr_write_b32 a{base + 16 + i0 + j}, v{r+1}')
    def p3_consts(self):
        I = self.I; t = 196
        sc = 2/math.sqrt(640.0)/4/128
        I(f'v_lshrrev_b32 v{t+1}, 2, {vN}'); I(f'v_and_b32 v{t+2}, 1, {vN}'); I(f'v_lshl_add_u32 v{t+1}, v{t+1}, 1, v{t+2}')
        I(f's_lshl_b32 {sT[0]}, {sHH}, 10'); I(f's_add_u32 {sT[0]}, {sT[0]}, {sS1}')
        I(f'v_lshlrev_b32 v{t+1}, 7, v{t+1}'); I(f'v_add_u32 v{t+1}, {sT[0]}, v{t+1}'); I(f'v_cvt_f32_u32 v{t+1}, v{t+1}'); I(f'v_mul_f32 v{t+1}, {f32(-1/2048.)}, v{t+1}')
        I(f'v_bfe_u32 v{t+2}, {vN}, 1, 1'); I(f'v_cvt_f32_u32 v{t+2}, v{t+2}'); I(f'v_mul_f32 v{t+2}, {f32(0.25)}, v{t+2}')
        I(f'v_lshlrev_b32 v{t+3}, 2, {vG}'); I(f'v_cvt_f32_u32 v{t+3}, v{t+3}')
        for e in range(4):
            I(f'v_add_f32 v{t+4}, {f32(float(e))}, v{t+3}'); I(f'v_fma_f32 v{t+4}, v{t+4}, v{t+1}, v{t+2}')
            I(f'v_cos_f32 v{t+5}, v{t+4}'); I(f'v_sin_f32 v{t+6}, v{t+4}')
            I(f'v_mul_f32 v{t+5}, {f32(sc)}, v{t+5}'); I(f'v_mul_f32 v{t+6}, {f32(sc)}, v{t+6}')
            I(f'v_cvt_pk_bf16_f32 v{vA3+e}, v{t+5}, v{t+6}')

    def flag_off(self, base, idx, dst):
        self.I(f's_lshl_b32 {dst}, {idx}, 7'); self.I(f's_add_u32 {dst}, {dst}, {base}')
    def flag_store(self, soff, voff):
        I = self.I; self.inbg = True
        snap = self.cond_begin(); L = self.newlabel('Lsig')
        I(f's_cmp_lg_u32 {sW}, 0'); I(f's_cbranch_scc1 {L}')
        I(f'buffer_store_dwordx2 {vr(vWr+8, 2)}, v211, {WS}, {soff} offen sc1')
        self.cond_end(snap); self.label(L); self.inbg = False
    def flag_load(self, kind, soff, issue=True):
        I = self.I
        if kind == 'A':
            I(f's_and_b32 {soff}, {sTILE}, 1'); I(f's_lshl1_add_u32 {soff}, {sW}, {soff}'); I(f's_lshl_b32 {soff}, {soff}, 8'); I(f's_add_u32 {soff}, {soff}, {WS_FLA}')
            I(f's_and_b32 {sT[0]}, s89, 0x100'); I(f's_lshr_b32 {sT[0]}, {sT[0]}, 1'); I(f's_add_u32 {soff}, {soff}, {sT[0]}')
            I(f'v_lshrrev_b32 v7, 1, {vLane}'); I('v_lshlrev_b32 v254, 11, v7'); I(f'v_and_b32 v7, 1, {vLane}'); I('v_lshl_add_u32 v254, v7, 6, v254')
        if kind == 'B':
            self.cb5(soff); I(f's_lshr_b32 {soff}, {soff}, 1'); I(f'v_lshrrev_b32 v254, 1, {vLane}'); I(f'v_lshl_add_u32 v254, v254, 2, {soff}')
            for _ in range(2): I(f'v_subrev_u32 v7, 12, v254'); I(f'v_min_u32 v254, v254, v7')
            I(f'v_and_b32 v7, 1, {vLane}'); I(f'v_lshl_add_u32 v254, v254, 3, v7'); I(f'v_lshl_add_u32 v254, {sW}, 1, v254')
            I(f's_mul_i32 {soff}, {sG}, 6'); I(f's_sub_u32 {soff}, {soff}, 14'); I(f'v_add_u32 v7, {soff}, {vLane}')
            I(f'v_cmp_gt_u32 vcc, 14, {vLane}'); I(f'v_cndmask_b32 v254, v7, v254, vcc'); I(f'v_add_u32 v254, {512 + 160}, v254')
            I(f's_lshl1_add_u32 {soff}, {sS1}, {sHH}'); I(f's_xor_b32 {soff}, {soff}, 1'); I(f'v_and_b32 v7, 3, {vLane}'); I(f'v_lshl_add_u32 v7, {soff}, 2, v7')
            I(f'v_lshlrev_b32 v254, 1, v254'); I(f'v_cmp_gt_u32 vcc, 20, {vLane}'); I(f'v_cndmask_b32 v254, v7, v254, vcc'); I(f'v_lshlrev_b32 v254, 6, v254'); I(f's_mov_b32 {soff}, {WS_FLA}')
        if kind == 'H':
            I(f's_mul_i32 {soff}, {sW}, {24*128}'); I(f's_add_u32 {soff}, {soff}, {WS_FLB + 160*128}'); I(f'v_min_u32 v7, 23, {vLane}'); I('v_lshlrev_b32 v254, 7, v7')
        I(f's_mul_i32 {sT[0]}, {sX8}, {FREP}'); I(f's_add_u32 {soff}, {soff}, {sT[0]}')
        ld = f'buffer_load_dword v{vFl}, v254, {WS}, {soff} offen sc1'
        if issue: I(ld)
        return ld
    def retry(self, loads, test, inline=True):
        I = self.I; br = test[-1]; test = test[:-1]
        Lf = self.newlabel('Lfix'); Lb = self.newlabel('Lok')
        inv = {'s_cbranch_vccnz': 's_cbranch_vccz', 's_cbranch_scc1': 's_cbranch_scc0'}[br]
        body = [f'{Lf}:', f'    s_add_i32 {sCNT}, {sCNT}, -1', f'    s_cmp_lt_i32 {sCNT}, 0', f'    s_cbranch_scc1 {Lb}'] + ['    ' + x for x in loads]
        g = Gen(); g.I('s_waitcnt vmcnt(0)')
        for x in test: g.I(x)
        g.I(f'{br} {Lf}')
        body += g.out
        def first():
            for x in test: I(x)
        first.items = list(test)
        def second():
            if inline:
                I(f'{inv} {Lb}'); self.out += body
            else:
                I(f'{br} {Lf}'); self.tail += body + [f'    s_branch {Lb}']
            self.label(Lb)
        return first, second
    def flag_check(self, ld):
        a, b = self.retry([ld], [f'v_cmp_ne_u32 vcc, s62, v{vFl}', 's_cbranch_vccnz'])
        a(); b()
    def max_test(self, regs, t):
        regs = list(regs); L = []
        if len(regs) == 2: L.append(f'v_max_u32 v{t}, v{regs[0]}, v{regs[1]}')
        else:
            L.append(f'v_max3_u32 v{t}, v{regs[0]}, v{regs[1]}, v{regs[2]}'); regs = regs[3:]
            while regs:
                L.append(f'v_max3_u32 v{t}, v{t}, v{regs[0]}, v{regs[1]}' if len(regs) > 1 else f'v_max_u32 v{t}, v{t}, v{regs[0]}'); regs = regs[2:]
        return L + [f'v_cmp_eq_u32 vcc, -1, v{t}', 's_cbranch_vccnz']

    def w_addr(self, t):
        I = self.I
        I(f's_mul_i32 {sT[0]}, {sTILE}, 6554'); I(f's_lshr_b32 {sT[0]}, {sT[0]}, 16')
        I(f's_mul_i32 {sT[1]}, {sT[0]}, 10'); I(f's_sub_u32 {sT[1]}, {sTILE}, {sT[1]}')
        I(f's_lshr_b32 {sT[2]}, {sT[1]}, 1'); I(f's_and_b32 {sT[3]}, {sT[1]}, 1')
        I(f's_lshl_b32 {sT[4]}, {sT[2]}, 7'); I(f's_lshl_b32 {sT[5]}, {sT[3]}, 5'); I(f's_add_u32 {sT[4]}, {sT[4]}, {sT[5]}')
        I(f's_sub_u32 {sT[5]}, {640 - 31}, {sT[4]}')
        I(f's_cmp_lt_u32 {sT[2]}, 3'); I(f's_cselect_b32 {sT[4]}, {sT[4]}, {sT[5]}'); I(f's_cselect_b32 {sT[5]}, 1, -1')
        I(f's_lshl_b32 {sT[4]}, {sT[4]}, 1')
        I(f's_lshl_b32 {sT[6]}, {sT[2]}, 2'); I(f's_lshr_b32 {sT[6]}, 0x31425, {sT[6]}'); I(f's_and_b32 {sT[6]}, {sT[6]}, 15'); I(f's_lshl_b32 {sT[6]}, {sT[6]}, 7')
        I(f's_mul_i32 {sT[7]}, {sT[0]}, {sT[5]}'); I(f's_lshl_b32 {sT[7]}, {sT[7]}, 1'); I(f's_add_u32 {sT[7]}, {sT[7]}, {sT[4]}'); I(f's_and_b32 s89, {sT[7]}, 15')
        I(f's_sub_u32 {sT[4]}, {sT[4]}, s89')
        I(f's_and_b32 {sT[7]}, {sT[5]}, 0x100'); I(f's_or_b32 s89, s89, {sT[7]}')
        I(f's_lshl_b32 {sT[7]}, {sT[0]}, 1'); I(f's_and_b32 {sT[7]}, {sT[7]}, 15'); I(f's_sub_u32 {sT[6]}, {sT[6]}, {sT[7]}')
        I(f's_lshl_b32 {sT[7]}, {sT[7]}, 16'); I(f's_or_b32 s89, s89, {sT[7]}')
        I(f's_xor_b32 {sT[7]}, {sT[3]}, 1'); I(f's_lshl_b32 {sT[7]}, {sT[7]}, 24'); I(f's_or_b32 s89, s89, {sT[7]}')
        I(f's_lshl_b32 {sT[3]}, {sT[3]}, 30'); I(f's_add_u32 {sT[6]}, {sT[6]}, {sT[3]}')
        I(f's_lshl_b32 {sT[7]}, {sW}, 7'); I(f's_add_u32 {sT[0]}, {sT[0]}, {sT[7]}')
        I(f's_movk_i32 {sT[1]}, 10923'); I(f's_movk_i32 {sT[2]}, 642');
        I(f'v_mov_b32 v{t+4}, {sT[5]}'); I(f'v_mov_b32 v{t+5}, {sT[6]}')
        for pt in range(3):
            I(f'v_add_u32 v{t}, {64*pt}, {vLane}'); I(f'v_mul_u32_u24 v{t+1}, {sT[1]}, v{t}'); I(f'v_lshrrev_b32 v{t+1}, 16, v{t+1}')
            I(f'v_mul_u32_u24 v{t+2}, 6, v{t+1}'); I(f'v_sub_u32 v{t}, v{t}, v{t+2}')
            I(f'v_lshrrev_b32 v{t+2}, 3, v{t+1}'); I(f'v_mul_u32_u24 v{t+2}, 24, v{t+2}'); I(f'v_add_u32 v{t+1}, v{t+1}, v{t+2}')
            I(f'v_lshl_add_u32 v{t+1}, v{t+1}, 4, {sT[0]}')
            I(f'v_cmp_eq_u32 vcc, 5, v{t}'); I(f'v_lshl_add_u32 v{t}, v{t}, 4, {sT[4]}')
            I(f'v_cndmask_b32 v{t+2}, v{t+4}, 1, vcc'); I(f'v_cndmask_b32 v{t}, v{t}, v{t+5}, vcc')
            I(f'v_mul_i32_i24 v{t+1}, v{t+1}, v{t+2}'); I(f'v_and_b32 v{t+1}, 0x7ff, v{t+1}'); I(f'v_mad_u32_u24 v{vWA+pt}, v{t+1}, {sT[2]}, v{t}')
        self.lastW = f'buffer_load_dwordx4 v{vWA+2}, {WI}, 0 offen lds'
        return [[f's_add_u32 m0, s86, {L_W + a*3072 + pt*1024}', f'buffer_load_dwordx4 v{vWA+pt}, {(WR, WI)[a]}, 0 offen lds'] for pt in range(3) for a in range(2)]
    def w_regs(self, t):
        I = self.I
        I(f's_and_b32 {sT[0]}, s89, 15'); I(f's_bfe_u32 {sT[1]}, s89, 0x10008'); I(f's_bfe_u32 {sT[2]}, s89, 0x40010'); I(f's_lshr_b32 {sT[3]}, s89, 24')
        I(f'v_and_b32 v{t}, 31, {vLane}'); I(f's_mul_i32 {sT[4]}, {sT[1]}, 31'); I(f'v_xor_b32 v{t+1}, {sT[4]}, v{t}')
        I(f'v_lshl_add_u32 v{t+1}, v{t+1}, 1, {sT[0]}')
        I(f's_add_u32 {sT[2]}, {sT[2]}, 80'); I(f'v_mov_b32 v{t+2}, {sT[2]}'); I(f's_lshl_b32 {sT[1]}, {sT[1]}, 31'); I(f'v_mov_b32 v{t+3}, {sT[1]}')
        I(f'v_cmp_gt_u32 vcc, {sT[3]}, v{t}')
        I(f'v_cndmask_b32 v{t+1}, v{t+1}, v{t+2}, vcc'); I(f'v_cndmask_b32 v{t+3}, v{t+3}, 0, vcc')
        I(f's_mul_i32 {sT[4]}, {sW}, 7168'); I(f's_add_u32 {sT[4]}, {sT[4]}, {L_W}')
        I(f'v_lshrrev_b32 v{t}, 5, {vLane}'); I(f'v_mul_u32_u24 v{t}, 384, v{t}'); I(f'v_add3_u32 v{t+1}, v{t+1}, v{t}, {sT[4]}')
        if self.opt.get('wlate', 0):
            for i in range(32): I(f'v_mov_b32 v{vWr + i}, 0')
            I(f'v_or_b32 v{t+2}, 1.0, v{t+3}')
            self.wrd = [f'ds_read_u16_d16_hi v{base + i}, v{t+1} offset:{arr*3072 + ((i >> 2)*8 + (i & 3))*96}' for arr, base in ((1, vWi), (0, vWr)) for i in range(16)]
            return
        self.wait_tok(self.toks[self.lastW])
        for arr, base in ((0, vWr), (1, vWi)):
            for half in range(2):
                for i in range(8*half, 8*half + 8): I(f'ds_read_u16 v{base + i}, v{t+1} offset:{arr*3072 + ((i >> 2)*8 + (i & 3))*96}')
            for i in range(16):
                I(f'v_lshl_add_u32 v{base + i}, v{base + i}, 16, v{t+3}' if arr else f'v_lshlrev_b32 v{base + i}, 16, v{base + i}')

    def p2(self):
        I = self.I
        vB = VW + 32; vGa = VW + 48; vE = VW + 80; vZ = VW + 112; vH = VW + 144; vAd = VW + 8
        I(f'v_lshrrev_b32 v{vAd}, 5, {vLane}'); I(f'v_mul_u32_u24 v{vAd}, {32*TS}, v{vAd}'); I(f'v_and_b32 v{vAd+1}, 31, {vLane}'); I(f'v_lshl_add_u32 v{vAd}, v{vAd+1}, 2, v{vAd}')
        I(f'v_add_u32 v{vAd+4}, {O_T2}, v{vAd}')
        I(f's_lshr_b32 {sT[2]}, {sTILE}, 1'); I(f's_lshl_b32 {sT[2]}, {sT[2]}, 7'); I(f's_and_b32 {sT[3]}, {sTILE}, 1'); I(f's_lshl1_add_u32 {sT[3]}, {sW}, {sT[3]}')
        I(f's_mul_i32 {sT[3]}, {sT[3]}, {TS}'); I(f's_add_u32 {sP[0]}, {sT[2]}, {sT[3]}')
        for i in range(1, 16): I(f's_add_u32 {sP[i]}, {sP[0]}, {(32*(i >> 2) + 4*(i & 3))*2*TS}')
        self.run(self.sel(self.opt.get('x1_bulk', 'aW')))
        self.p3_consts()
        if self.opt.get('wlate', 0) and self.opt.get('wr_early', 1): self.w_regs(VW)
        self.stamp('p2 pre', fine=True)
        I(self.ldA)
        if self.opt.get('f2_at', 0) == 1: self.dft32(False, vZ)
        if self.opt.get('i2_at', 1) == 1: self.dft32(True, vZ)
        self.flag_check(self.ldA)
        self.stamp('flagA')
        lds = [f'buffer_load_dword v{vB + i}, v{vAd}, {WS}, {sP[i]} offen sc1' for i in range(16)]
        for x in lds: I(x)
        I(f's_lshl_b32 {sT[3]}, {sW}, 13'); I(f's_add_u32 {sT[3]}, {sT[3]}, {L_G}'); I(f'v_add_u32 v{vAd+1}, {sT[3]}, {vL16}')
        I(f's_lshl_b32 {sT[3]}, {sW}, 10'); I(f's_add_u32 {sT[3]}, {sT[3]}, {L_G}'); I(f'v_add_u32 v{vAd+2}, {sT[3]}, {vL16}')
        I(f's_lshl_b32 {sT[3]}, {sW}, 12'); I(f's_add_u32 {sT[3]}, {sT[3]}, {L_H}'); I(f'v_add_u32 v{vAd+3}, {sT[3]}, {vL16}')
        if not (self.opt.get('wlate', 0) and self.opt.get('wr_early', 1)): self.w_regs(VW)
        self.ldB = self.flag_load('B', sP[18], False)
        if self.opt.get('i2_at', 1) == 2: self.dft32(True, vZ)
        I('s_barrier')
        self.stamp('p2 T', wait=vB + 15)
        self.sprinkle(self.sel(self.opt.get('p2_bulk', 'A012')), self.opt.get('p2_per1', 1))
        for tt in range(4):
            for p in range(2):
                d = vr(vGa + 16*p, 16)
                I(f'v_mfma_f32_32x32x16_f16 {d}, {ar(aF2 + 4*(p*4 + tt), 4)}, {vr(vB + 4*tt, 4)}, {"0" if tt == 0 else d}')
        self.bgper = 0
        for p in range(2):
            for gq in range(4): I(f'ds_write_b128 v{vAd+1}, {vr(vGa + 16*p + 4*gq, 4)} offset:{(p*4 + gq)*1024}')
        self.bg(self.opt.get('p2_n1', 4))
        if self.opt.get('wlate', 0) == 1:
            self.wait_tok(self.toks[self.lastW])
            for x in self.wrd: I(x)
        self.barrier()
        self.stamp('p2 bar1', fine=True)
        for c in (0, 2, 1, 3):
            for p in range(2): I(f'ds_read_b128 {vr(vE + 8*c + 4*p, 4)}, v{vAd+2} offset:{c*8192 + p*4096}')
        self.bgper = self.opt.get('p2_per2', 12)
        def bfly(src, dst, tmp, inv, after=None):
            s = lambda c, p, h: src + 8*c + 4*p + 2*h
            d = lambda m, p, h: dst + 8*m + 4*p + 2*h
            t_ = lambda i, p, h: tmp + 8*i + 4*p + 2*h
            for c in range(2):
                for p in range(2):
                    for h in range(2):
                        self.pk('add', t_(2*c, p, h), s(c, p, h), s(c + 2, p, h)); self.pk('add', t_(2*c + 1, p, h), s(c, p, h), s(c + 2, p, h), neg_b=True)
            a, b = (3, 1) if inv else (1, 3)
            for m in (0, 2, a, b):
                for h in range(2):
                    if m in (0, 2):
                        for p in range(2): self.pk('add', d(m, p, h), t_(0, p, h), t_(2, p, h), neg_b=(m == 2))
                    else:
                        self.pk('add', d(m, 0, h), t_(1, 0, h), t_(3, 1, h), neg_b=(m == b)); self.pk('add', d(m, 1, h), t_(1, 1, h), t_(3, 0, h), neg_b=(m == a))
                if after: after(m)
        if self.opt.get('wlate', 0) == 2:
            self.wait_lg0(); self.wait_tok(self.toks[self.lastW])
            q, per = self.bgq, self.bgper; self.bgq = None
            self.sprinkle([[x] for x in self.wrd], 1)
        bfly(vE, vZ, vGa, False)
        if self.opt.get('wlate', 0) == 2: self.bg(); self.bgq, self.bgper = q, per
        if self.opt.get('wlate', 0):
            for i in range(8): self.pk('mul', vWi + 2*i, vWi + 2*i, VW + 2, bsel=0)
        for m in range(4):
            for h in range(2):
                zr, zi = vZ + 8*m + 2*h, vZ + 8*m + 4 + 2*h; wr, wi = vWr + 4*m + 2*h, vWi + 4*m + 2*h
                dr, di = vE + 8*m + 2*h, vE + 8*m + 4 + 2*h
                self.pk('mul', dr, zr, wr); self.pk('mul', di, zi, wr)
                self.pk('fma', dr, zi, wi, dr, neg_b=True); self.pk('fma', di, zr, wi, di)
        def outH(c):
            for e in range(4): I(f'v_cvt_pk_bf16_f32 v{vH + 4*c + e}, v{vZ + 8*c + e}, v{vZ + 8*c + 4 + e}')
            I(f'ds_write_b128 v{vAd+2}, {vr(vH + 4*c, 4)} offset:{L_H - L_G + c*4096}')
        bfly(vE, vZ, vGa, True, outH)
        self.barrier()
        self.stamp('p2 bar2', fine=True)
        for tt in range(4): I(f'ds_read_b128 {vr(vB + 4*tt, 4)}, v{vAd+3} offset:{tt*1024}')
        I(self.ldB)
        self.bgper = 1
        for tt in range(4):
            for p in range(2):
                d = vr(vGa + 16*p, 16)
                I(f'v_mfma_f32_32x32x16_bf16 {d}, {ar(aI2 + 4*(p*4 + tt), 4)}, {vr(vB + 4*tt, 4)}, {"0" if tt == 0 else d}')
        print('p2 bulk left:', len(self.bgq)); self.bgper = 0
        for i in range(16):
            I(f'v_cvt_pk_bf16_f32 v{vH + i}, v{vGa + i}, v{vGa + 16 + i}')
            I(f'buffer_store_dword v{vH + i}, v{vAd+4}, {WS}, {sP[i]} offen sc1')
        self.stamp('p2 end', fine=True)
        self.flag_check(self.ldB)
        self.bg()
        self.run(self.sel(self.opt.get('x2_bulk', '34')))

    def repack_unit(self):
        I = self.I
        I(f's_mul_i32 {sT[2]}, {sW}, 12'); I(f's_add_u32 {sT[2]}, {sT[2]}, {sY}'); I(f's_sub_u32 {sT[2]}, {sT[2]}, 20')
        I(f's_mul_i32 {sT[3]}, {sX8}, 28'); I(f's_cmp_lt_u32 {sT[2]}, 28'); I(f's_cselect_b32 {sT[3]}, {sT[3]}, 224'); I(f's_add_u32 {sT[2]}, {sT[2]}, {sT[3]}')
        I(f's_lshr_b32 {sT[3]}, {sT[2]}, 2'); I(f's_and_b32 {sT[4]}, {sT[2]}, 3')
        I(f's_mul_i32 {sT[6]}, {sW}, 10240'); I(f's_add_u32 {sT[6]}, {sT[6]}, {L_RP}')
    def repack_addr(self, t):
        I = self.I
        self.repack_unit()
        I(f's_mul_i32 {sP[8]}, {sT[3]}, 40960'); I(f's_mul_i32 {sT[0]}, {sT[4]}, 320'); I(f's_add_u32 {sP[8]}, {sP[8]}, {sT[0]}')
        I(f's_add_u32 {sP[9]}, {sP[8]}, {16*1280}'); I(f's_movk_i32 {sT[0]}, 3277'); I(f's_mov_b32 {sP[11]}, {sT[6]}')
        for pt in range(5):
            I(f'v_add_u32 v{t}, {64*pt}, {vLane}'); I(f'v_mul_u32_u24 v{t+1}, {sT[0]}, v{t}'); I(f'v_lshrrev_b32 v{t+1}, 16, v{t+1}')
            I(f'v_mul_u32_u24 v{t+1}, {1280 - 320}, v{t+1}'); I(f'v_lshl_add_u32 v{vWA+pt}, v{t}, 4, v{t+1}')
        L = [[f's_add_u32 m0, {sP[11]}, {h*5120 + pt*1024}', f'buffer_load_dwordx4 v{vWA+pt}, {W2}, {sP[8+h]} offen lds'] for pt in range(5) for h in range(2)]
        self.lastR = L[-1][-1]
        return L
    def repack(self):
        I = self.I; t = VW + 10; vF = VW + 16
        self.repack_unit()
        snap = self.cond_begin(); L = self.newlabel('Lrp')
        I(f's_cmp_ge_u32 {sT[2]}, 224'); I(f's_cbranch_scc1 {L}')
        I(f's_mul_i32 {sT[0]}, {sT[3]}, 9363'); I(f's_lshr_b32 {sT[0]}, {sT[0]}, 16'); I(f's_mul_i32 {sT[0]}, {sT[0]}, 7'); I(f's_sub_u32 {sT[0]}, {sT[3]}, {sT[0]}')
        I(f's_cmp_eq_u32 {sT[0]}, 3'); I(f's_cselect_b32 {sT[0]}, {4*320}, 0'); I(f's_mul_i32 {sT[1]}, {sT[0]}, 3'); I(f's_sub_u32 {sT[1]}, {16*320}, {sT[1]}')
        I(f'v_lshrrev_b32 v{t}, 2, {vLane}'); I(f'v_mul_u32_u24 v{t}, 320, v{t}'); I(f'v_and_b32 v{t+1}, 3, {vLane}'); I(f'v_mul_u32_u24 v{t+1}, 40, v{t+1}')
        I(f'v_add3_u32 v{t}, v{t}, v{t+1}, {sT[6]}'); I(f'v_mad_u32_u24 v{t}, {vG}, {sT[0]}, v{t}'); I(f'v_add_u32 v{t+1}, {sT[1]}, v{t}')
        rk = sum(KORD.index(k) << (4*k) for k in range(14))
        I(f's_mul_i32 {sT[0]}, {sT[3]}, 4682'); I(f's_lshr_b32 {sT[0]}, {sT[0]}, 16'); I(f's_mul_i32 {sT[0]}, {sT[0]}, 14'); I(f's_sub_u32 {sT[1]}, {sT[3]}, {sT[0]}')
        I(f's_lshl_b32 {sT[1]}, {sT[1]}, 2'); I(f's_mov_b32 s58, {rk & 0xffffffff}'); I(f's_mov_b32 s59, {rk >> 32}'); I(f's_lshr_b64 {sPAIR}, {sPAIR}, {sT[1]}')
        I(f's_and_b32 s58, s58, 15'); I(f's_add_u32 {sT[3]}, {sT[0]}, s58')
        self.wait_tok(self.toks[self.lastR])
        I(f's_mul_i32 {sT[5]}, {sT[4]}, {2*286720}'); I(f's_mul_i32 {sT[6]}, {sT[3]}, 5120'); I(f's_add_u32 {sT[5]}, {sT[5]}, {sT[6]}'); I(f's_add_u32 {sT[5]}, {sT[5]}, {WS_W2}')
        for cb in range(2):
            for nt in range(5):
                for hf in range(2): I(f'ds_read_b64_tr_b16 {vr(vF + 4*(cb*5 + nt) + 2*hf, 2)}, v{t+hf} offset:{cb*160 + nt*8}')
        for cb in range(2):
            for nt in range(5):
                if nt in (0, 4): I(f's_add_u32 {sT[6]}, {sT[5]}, {cb*286720 + nt*1024}')
                I(f'buffer_store_dwordx4 {vr(vF + 4*(cb*5 + nt), 4)}, {vL16}, {WS}, {sT[6]} offen offset:{(nt & 3)*1024} sc1')
        self.cond_end(snap); self.label(L)
    def epoch(self):
        I = self.I
        snap = self.cond_begin(); L = self.newlabel('Lep')
        I(f's_lshl2_add_u32 {sT[0]}, s2, {sW}'); I(f's_cmp_lg_u32 {sT[0]}, 3'); I(f's_cbranch_scc1 {L}')
        I(f's_mov_b32 {sT[0]}, {WS_EP}'); I('s_mov_b64 exec, 1')
        I(f'buffer_store_dword {vTag}, off, {WS}, {sT[0]} sc1'); I('s_mov_b64 exec, -1')
        self.cond_end(snap); self.label(L)
    def h1_vaddr(self, a):
        I = self.I
        I(f'v_and_b32 v{a}, 1, {vG}'); I(f'v_mul_u32_u24 v{a}, 57344, v{a}'); I(f'v_lshrrev_b32 v7, 1, {vG}')
        I(f'v_lshl_add_u32 v{a}, v7, 8, v{a}'); I(f'v_lshl_add_u32 v{a}, {vN}, 4, v{a}')
    def h1_addr(self, a):
        I = self.I
        I(f's_mul_i32 {sT[2]}, {sG}, 458752'); I(f's_mul_i32 {sT[3]}, {sW}, 114688'); I(f's_add_u32 {sT[2]}, {sT[2]}, {sT[3]}')
        I(f's_lshr_b32 {sT[3]}, {sM}, 1'); I(f's_mul_i32 {sT[3]}, {sT[3]}, 7168'); I(f's_add_u32 {sT[2]}, {sT[2]}, {sT[3]}'); I(f's_add_u32 {sT[2]}, {sT[2]}, {WS_H1}')
        I(f's_lshl_b32 {sT[3]}, {sHH}, 12'); I(f's_add_u32 {sH1[0]}, {sT[3]}, {sT[2]}'); I(f's_add_u32 {sH1[1]}, {sH1[0]}, 57344')
        I(f's_lshl_b32 {sT[3]}, {sHH}, 9'); I(f's_add_u32 {sH1[2]}, {sT[3]}, {sT[2]}')
        self.h1_vaddr(a)
    def h1_store(self, reg, pr, mt, a):
        if pr == 3: return f'buffer_store_dwordx4 {vr(reg, 4)}, v{a}, {WS}, {sH1[2]} offen offset:3072 sc1'
        return f'buffer_store_dwordx4 {vr(reg, 4)}, {vL16}, {WS}, {sH1[mt]} offen offset:{pr*1024} sc1'
    def h1_poison(self, a):
        return [[self.h1_store(vPo, pr, mt, a)] for pr in range(3) for mt in range(2)] + [[self.h1_store(vPo, 3, 0, a)]]
    def w2_base(self):
        I = self.I
        self.cb5(sT[0]); I(f's_mul_i32 {sW2B}, {sT[0]}, 286720'); I(f's_mul_i32 {sT[0]}, {sW}, 71680'); I(f's_add_u32 {sW2B}, {sW2B}, {sT[0]}'); I(f's_add_u32 {sW2B}, {sW2B}, {WS_W2 + (0x4000000 if self.opt.get("no_w2") else 0)}')
    def cb5(self, d):
        I = self.I
        if self.opt.get('split2', 4) == 1: I(f's_and_b32 {d}, s2, 1'); I(f's_and_b32 {sT[1]}, {sY}, 3'); I(f's_lshl2_add_u32 {d}, {d}, {sT[1]}')
        else: I(f's_and_b32 {d}, {sM}, 7')
    def tile0(self, d):
        I = self.I
        if self.opt.get('split2', 4) == 1: I(f's_and_b32 {d}, {sY}, 4')
        else: I(f's_lshr_b32 {d}, {sM}, 1'); I(f's_and_b32 {d}, {d}, 4')
        I(f's_lshl3_add_u32 {d}, {sG}, {d}')
    def w1_touch(self):
        I = self.I; four = self.opt.get('split2', 4) == 4
        nl, nr, sh = (7, 8, 4) if four else (14, 4, 5)
        I(f'v_and_b32 v7, {64//nr - 1}, {vLane}'); I(f'v_min_u32 v7, {nl - 1}, v7'); I(f'v_lshrrev_b32 v{vWr}, {7 - sh}, {vLane}' if four else f'v_mov_b32 v{vWr}, {vG}')
        I(f'v_mul_u32_u24 v{vWr}, {5*3456}, v{vWr}'); I(f'v_lshl_add_u32 v{vWr}, v7, 7, v{vWr}')
        I(f's_lshl2_add_u32 {sT[0]}, {sY}, {sW}'); I(f's_and_b32 {sT[3]}, s2, {3 if four else 1}'); I(f's_mul_i32 {sT[3]}, {sT[3]}, {nl*128}')
        for r in range(2 if four else 4):
            I(f's_add_u32 {sT[1]}, {sT[0]}, {48*r - 80}'); I(f's_and_b32 {sT[2]}, {sT[1]}, {(1 << sh) - 1}'); I(f's_lshr_b32 {sT[1]}, {sT[1]}, {sh}')
            I(f's_cmp_gt_u32 {sT[1]}, 4'); I(f's_cselect_b32 {sT[1]}, 640, {sT[1]}')
            I(f's_mul_i32 {sT[2]}, {sT[2]}, {5*nr}'); I(f's_add_u32 {sT[1]}, {sT[1]}, {sT[2]}'); I(f's_mul_i32 {sT[1]}, {sT[1]}, 3456'); I(f's_add_u32 {sT[1]}, {sT[1]}, {sT[3]}')
            I(f'buffer_load_dword v{vWr + 1 + r}, v{vWr}, {W1}, {sT[1]} offen')
    def w2_touch(self):
        I = self.I
        I(f's_lshl2_add_u32 {sT[0]}, {sY}, {sW}'); I(f's_sub_u32 {sT[0]}, {sT[0]}, 80'); I(f's_and_b32 {sT[1]}, {sT[0]}, 15'); I(f's_lshr_b32 {sT[0]}, {sT[0]}, 4')
        I(f's_and_b32 {sT[2]}, s2, 1'); I(f's_lshl4_add_u32 {sT[1]}, {sT[2]}, {sT[1]}'); I(f's_mul_i32 {sT[1]}, {sT[1]}, 71680'); I(f's_lshl_b32 {sT[0]}, {sT[0]}, 13')
        I(f's_add_u32 {sT[0]}, {sT[0]}, {sT[1]}'); I(f'v_lshlrev_b32 v{vWA}, 7, {vLane}')
        for r in range(3):
            I(f's_add_u32 {sT[1]}, {sT[0]}, {WS_W2 + r*3*8192 + (0x4000000 if self.opt.get("no_w2") else 0)}')
            I(f'buffer_load_dword v{vWA + 1 + r}, v{vWA}, {WS}, {sT[1]} offen sc1')
    def run(self, items):
        for it in items:
            for x in it: self.I(x)
    def helper(self):
        I = self.I
        self.run(self.sel(self.opt.get('H_x1', 'aR')))
        self.p3_consts()
        if self.opt.get('h_sync'):
            I(f's_mov_b32 {sTILE}, {sY}'); I('s_mov_b32 s89, 0')
            for _ in range(self.opt['h_sync']): self.flag_check(self.flag_load('A', sP[18]))
        self.run(self.sel(self.opt.get('H_x2', '')))
        if self.opt.get('w1t', 2) == 1: self.w1_touch()
        self.stamp('flagA')
        self.repack()
        I(f's_sub_u32 {sT[0]}, s2, 160'); I(f's_mul_i32 {sT[4]}, {sT[0]}, 10923'); I(f's_lshr_b32 {sT[4]}, {sT[4]}, 16'); I(f's_mul_i32 {sT[1]}, {sT[4]}, 6'); I(f's_sub_u32 {sT[0]}, {sT[0]}, {sT[1]}')
        I(f's_lshl2_add_u32 {sT[0]}, {sT[0]}, {sW}'); I(f's_mul_i32 {sT[4]}, {sT[4]}, {16*TS}'); I(f's_add_u32 {sT[4]}, {sT[4]}, {O_LN}')
        for r in range(7):
            I(f's_add_u32 {sT[1]}, {sT[0]}, {24*r}'); I(f's_mul_i32 {sT[2]}, {sT[1]}, 6554'); I(f's_lshr_b32 {sT[2]}, {sT[2]}, 16')
            I(f's_mul_i32 {sT[2]}, {sT[2]}, {TS - 10240}'); I(f's_lshl_b32 {sT[3]}, {sT[1]}, 10'); I(f's_add_u32 {sT[2]}, {sT[2]}, {sT[3]}'); I(f's_add_u32 {sT[2]}, {sT[2]}, {sT[4]}')
            if r == 6: I(f's_cmp_lt_u32 {sT[1]}, 160'); I(f's_cselect_b32 {sT[2]}, {sT[2]}, {WS_SIZE}')
            I(f'buffer_store_dwordx4 {vr(vPo, 4)}, {vL16}, {WS}, {sT[2]} offen sc1')
        tok = self.vm[-1][0]
        if self.opt.get('w1t', 2) == 2: self.w1_touch()
        self.flag_off(WS_FLB, 's2', sP[0])
        self.wait_tok(tok); self.barrier()
        self.flag_store(sP[0], VW)
        self.stamp('p2 bar1', fine=True)
        self.run(self.w1_items([c for c in range(5) if c not in [int(c) for c in self.opt.get('H_x1', 'aR') + self.opt.get('H_x2', '') if c.isdigit()]]))
        if self.opt.get('w2touch', 0):
            self.flag_check(self.flag_load('H', sP[18])); I('s_barrier')
            self.stamp('p2 bar2', fine=True)
            self.w2_touch()
        if 'A' not in self.opt.get('H_p1', '') + self.opt.get('H_x1', ''): self.run(self.sel('A'))
        self.flag_check(self.flag_load('B', sP[18]))

    def p3_pre(self):
        I = self.I; vAd = VW
        I(f'v_mov_b32 v{vAd+8}, 0'); I(f'v_mov_b32 v{vAd+9}, 0'); I(f'v_mov_b32 v{vAd+10}, 0'); I(f'v_mov_b32 v{vAd+11}, 0')
        I(f'v_min_u32 v{vAd+7}, 143, v0'); I(f'v_lshlrev_b32 v{vAd+7}, 4, v{vAd+7}'); I(f'v_add_u32 v{vAd+7}, {L_V + 40*288}, v{vAd+7}')
        I(f'v_mul_u32_u24 v{vAd}, 2560, {vG}'); I(f'v_lshl_add_u32 v{vAd}, {vN}, 2, v{vAd}')
        I(f's_lshr_b32 {sT[2]}, {sW}, 1'); I(f's_lshl1_add_u32 {sT[2]}, {sS1}, {sT[2]}'); I(f's_mul_i32 {sT[2]}, {sT[2]}, {TS}')
        I(f's_and_b32 {sT[3]}, {sW}, 1'); I(f's_lshl_b32 {sT[3]}, {sT[3]}, 6'); I(f's_add_u32 {sP[0]}, {sT[2]}, {sT[3]}'); I(f's_add_u32 {sP[0]}, {sP[0]}, {O_T2}')
        self.w2_base()
        self.barrier()
        I(f'ds_write_b128 v{vAd+7}, {vr(vAd+8, 4)}')
    def p3_pre2(self):
        I = self.I; vAd = VW
        I(f'v_mul_u32_u24 v{vAd+1}, 576, {vG}'); I(f'v_lshl_add_u32 v{vAd+1}, {vN}, 2, v{vAd+1}')
        I(f's_lshl_b32 {sT[4]}, {sW}, 6'); I(f's_add_u32 {sT[4]}, {sT[4]}, {L_V}'); I(f'v_add_u32 v{vAd+1}, {sT[4]}, v{vAd+1}')
        I(f'v_mul_u32_u24 v{vAd+2}, 288, {vN}'); I(f'v_lshl_add_u32 v{vAd+2}, {vG}, 4, v{vAd+2}'); I(f'v_add_u32 v{vAd+2}, {L_V}, v{vAd+2}')
        I(f'v_and_b32 v{vAd+4}, 7, {vN}'); I(f'v_lshlrev_b32 v{vAd+4}, 5, v{vAd+4}'); I(f'v_add_u32 v{vAd+4}, {L_ST}, v{vAd+4}')
        I(f's_lshl_b32 {sT[4]}, {sW}, 3'); I(f'v_add_u32 v{vAd+3}, {sT[4]}, v{vAd+4}')
        I(f'v_and_b32 v{vAd+5}, 7, {vN}'); I(f'v_lshlrev_b32 v{vAd+5}, 4, v{vAd+5}'); I(f'v_lshl_add_u32 v{vAd+5}, {vG}, 7, v{vAd+5}')
        I(f'v_lshrrev_b32 v{vAd+7}, 3, {vN}'); I(f'v_lshl_add_u32 v{vAd+6}, v{vAd+7}, 30, v{vAd+5}')
        I(f's_mov_b32 {sT[4]}, {TS}'); I(f'v_mad_u32_u24 v227, v{vAd+7}, {sT[4]}, v{vAd+5}'); I(f'v_add_u32 v228, {2*TS}, v227')
        I(f'v_lshl_add_u32 v{vAd+5}, v{vAd+7}, 11, v{vAd+5}')
        I(f's_lshl_b32 {sT[5]}, {sW}, 9'); I(f's_add_u32 {sT[4]}, {sBLK}, {sT[5]}')
        for tau in range(3): I(f's_add_u32 {sP[1+tau]}, {sT[4]}, {O_LN + tau*4096}')
        vXf = VW + 12
        for i in range(12):
            I(f'v_lshlrev_b32 v{vXf + 2*i}, 16, v{vXR + i}'); I(f'v_and_b32 v{vXf + 2*i + 1}, 0xffff0000, v{vXR + i}')
        I(f'v_mov_b32 v{vAd+7}, 0x3f803f80')
        I(f'v_cvt_pk_bf16_f32 v{vMu}, -v{vMu}, -v{vMu}'); I(f'v_lshlrev_b32 v{vMu}, 16, v{vMu}')
    def p3_pre3(self):
        I = self.I
        I(f'v_lshrrev_b32 v224, 2, {vLane}'); I(f'v_mul_u32_u24 v224, 224, v224'); I(f'v_and_b32 v225, 3, {vLane}'); I(f'v_lshl_add_u32 v224, v225, 3, v224')
        I(f's_xor_b32 {sT[2]}, {sHH}, 1'); I(f's_mul_i32 {sT[2]}, {sT[2]}, 192'); I(f'v_add_u32 v252, {sT[2]}, v224')
        I(f's_lshl_b32 {sT[2]}, {sHH}, 5'); I(f'v_add_u32 v224, {sT[2]}, v224')
        for i in (1, 2): I(f'v_add_u32 v{224+i}, {i*57344}, v224'); I(f'v_add_u32 v{252+i}, {i*57344}, v252')
        I(f's_lshl2_add_u32 {sT[2]}, {sG}, {sW}'); I(f's_mul_i32 {sT[2]}, {sT[2]}, {4*TS}')
        for i in range(3): I(f's_add_u32 {sP[4+i]}, {sT[2]}, {O_LN + i*4096 + (0x4000000 if self.opt.get("no_ln") and i < 2 else 0)}')
        self.h1_addr(229)
        self.p5_offsets((1, 2, 3))
    def p5_offsets(self, mus):
        I = self.I
        self.tile0(sT[5]); I(f's_mul_i32 {sT[3]}, {sW}, 14336')
        for mu in mus:
            I(f's_add_u32 {sT[2]}, {sW}, {mu}'); I(f's_and_b32 {sT[2]}, {sT[2]}, 3'); I(f's_add_u32 {sT[2]}, {sT[2]}, {sT[5]}'); I(f's_mul_i32 {sT[2]}, {sT[2]}, 57344'); I(f's_add_u32 {sT[2]}, {sT[2]}, {sT[3]}')
            for q in range(4): I(f's_add_u32 {self.sH(mu, q)}, {sT[2]}, {WS_H1 + q*4096 + (0x4000000 if self.opt.get("no_h1") else 0)}')
    def sH(self, mu, q): return sP[4 + 4*mu + q] if mu else sP[q]
    def p3(self):
        I = self.I; vAd = VW; vXf = VW + 12; vB = VW + 36; vZ = VW + 56; vP = VW + 76
        lds = [f'buffer_load_dword v{vB + 4*m5 + i}, v{vAd}, {WS}, {sP[0]} offen offset:{m5*128 + i*640} sc1' for m5 in (2, 3, 1, 4, 0) for i in range(4)]
        self.p3_pre2()
        for x in lds: I(x)
        self.p3_pre3()
        a, b = self.retry(lds, self.max_test([vB + 4*m5 + i for m5 in (2, 3, 1, 4, 0) for i in range(4)], vZ)); a(); b()
        self.stamp('p3 T')
        self.sprinkle(self.w2_items(self.opt.get('w2_p3', 24)), self.opt.get('p3_per', 6))
        for m5 in (2, 3, 1, 4, 0):
            I(f'v_mfma_f32_16x16x32_bf16 {vr(vZ + 4*m5, 4)}, {vr(vA3, 4)}, {vr(vB + 4*m5, 4)}, 0')
        Zr = [vZ + 4*m for m in range(5)]; Zi = [vZ + 4*m + 2 for m in range(5)]
        pool = [vP + 2*i for i in range(48)]
        mu = self.bc(vTW3 + 12); nu = self.bc(vTW3 + 13)
        u0, U0, u1, V1, U1, v1, u2, V2, U2, v2 = [pool.pop(0) for _ in range(10)]
        fm = lambda d, a, c, neg_c=False: self.pk('fma', d, a, mu[0], c, bsel=mu[1], neg_c=neg_c)
        fm(u2, Zr[3], Zr[2]); fm(V2, Zr[2], Zr[3], True); fm(U2, Zi[2], Zi[3]); fm(v2, Zi[3], Zi[2], True)
        fm(u1, Zr[4], Zr[1]); fm(V1, Zr[1], Zr[4], True); fm(U1, Zi[1], Zi[4]); fm(v1, Zi[4], Zi[1], True)
        self.pk('mul', u0, Zr[0], mu[0], bsel=mu[1]); self.pk('mul', U0, Zi[0], nu[0], bsel=nu[1])
        def half(a0, a1, a2, b1, b2):
            p1, p2, q1, q2, z0, z1, z2, z3, z4 = [pool.pop(0) for _ in range(9)]
            self.pk('fma', p1, a1, sC, a0, bsel=0); self.pk('fma', p2, a1, sC, a0, bsel=1)
            self.pk('mul', q1, b1, sS, bsel=0); self.pk('mul', q2, b1, sS, bsel=1); self.pk('add', z0, a0, a1)
            self.pk('fma', p1, a2, sC, p1, bsel=1); self.pk('fma', p2, a2, sC, p2, bsel=0)
            self.pk('fma', q1, b2, sS, q1, bsel=1); self.pk('fma', q2, b2, sS, q2, bsel=0, neg_b=True); self.pk('add', z0, z0, a2)
            self.pk('add', z1, p1, q1); self.pk('add', z2, p2, q2); self.pk('add', z3, p2, q2, neg_b=True); self.pk('add', z4, p1, q1, neg_b=True)
            return [z0, z1, z2, z3, z4]
        zr = half(u0, u1, u2, v1, v2); zi = half(U0, U1, U2, V1, V2)
        Vr = [zr[0]] + [pool.pop(0) for _ in range(4)]; Vi = [zi[0]] + [pool.pop(0) for _ in range(4)]
        for c in range(5):
            if c:
                t1, t2, t3 = self.bc(vTW3 + c - 1), self.bc(vTW3 + 4 + c - 1), self.bc(vTW3 + 8 + c - 1)
                self.pk('mul', Vr[c], zr[c], t1[0], bsel=t1[1]); self.pk('mul', Vi[c], zi[c], t3[0], bsel=t3[1])
                self.pk('fma', Vr[c], zi[c], t2[0], Vr[c], bsel=t2[1], neg_b=True); self.pk('fma', Vi[c], zr[c], t2[0], Vi[c], bsel=t2[1])
            d = vB + 2*c
            for jb in range(2): I(f'v_cvt_pk_bf16_f32 v{d+jb}, v{Vr[c] + jb}, v{Vi[c] + jb}')
            for jb in range(2): I(f'ds_write_b32 v{vAd+1}, v{d+jb} offset:{(c*8 + jb)*288}')
        I('s_mov_b32 s44, 0x3f80'); I('s_mov_b32 s45, 0x3f800000')
        self.barrier()
        self.stamp('p3 bar1', fine=True)
        vF = vP; vY = vP + 48
        for tau in range(3):
            for ks in range(4): I(f'ds_read_b128 {vr(vF + 4*(tau*4 + ks), 4)}, v{vAd+2} offset:{tau*16*288 + ks*64}')
        rest = self.bgq; self.bgq = None
        vHp = vB; vL = vZ
        vS = 246; vs, vq, vone = f'v{vS}', f'v{vS+1}', f'v{vAd+7}'
        def mf(tau):
            L = []
            for ks in range(4):
                for mu_ in range(2):
                    d = vr(vY + 8*tau + 4*mu_, 4)
                    L.append(f'v_mfma_f32_16x16x32_bf16 {d}, {ar(aA3 + 4*(mu_*4 + ks), 4)}, {vr(vF + 4*(tau*4 + ks), 4)}, {vr(vXf + 8*tau + 4*mu_, 4) if ks == 0 else d}')
            return L
        def post(tau):
            R = range(4*tau, 4*tau + 4)
            L = [f'v_cvt_pk_bf16_f32 v{vHp + i}, v{vY + 2*i}, v{vY + 2*i + 1}' for i in R]
            for i in R: L += [f'v_dot2_f32_bf16 v{vY + 2*i + e}, v{vHp+i}, s{44+e}, v{vMu}' for e in range(2)]
            L += [f'v_cvt_pk_bf16_f32 v{vL + i}, v{vY + 2*i}, v{vY + 2*i + 1}' for i in R]
            return L + [f'buffer_store_dwordx4 {vr(vL + 4*tau, 4)}, v{vAd + (6 if tau == 2 else 5)}, {WS}, {sP[1+tau]} offen sc1']
        self.weave(mf(0), []); self.weave(mf(1), post(0), per=3, start=2); self.weave(mf(2), post(1), per=3, start=2)
        for x in post(2): I(x)
        self.stamp('p3 end')
        for it in rest:
            for x in it: I(x)
        self.w2_loads(self.opt.get('w2_s3', 4))
        for i in range(12):
            I(f'v_dot2_f32_bf16 {vs}, v{vHp+i}, {vone}, {vs if i else 0}'); I(f'v_dot2_f32_bf16 {vq}, v{vHp+i}, v{vHp+i}, {vq if i else 0}')
        I(f'v_add_f32_dpp {vs}, {vs}, {vs} row_ror:8 row_mask:0xf bank_mask:0xf'); I(f'v_add_f32_dpp {vq}, {vq}, {vq} row_ror:8 row_mask:0xf bank_mask:0xf')
        for sw in ('v_permlane16_swap_b32', 'v_permlane32_swap_b32'):
            I(f'v_mov_b32 v{vS-2}, {vs}'); I(f'v_mov_b32 v{vS-1}, {vq}')
            I(f'{sw} {vs}, v{vS-2}'); I(f'{sw} {vq}, v{vS-1}')
            I(f'v_add_f32 {vs}, {vs}, v{vS-2}'); I(f'v_add_f32 {vq}, {vq}, v{vS-1}')
        I(f'ds_write_b64 v{vAd+3}, {vr(vS, 2)}')
        self.barrier()
    def p3_stats(self):
        I = self.I; vAd = VW; vS = 246; t = 236; vs, vq = f'v{vS}', f'v{vS+1}'
        snap = self.cond_begin(); L = self.newlabel('Lst')
        I(f's_cmp_lg_u32 {sW}, 0'); I(f's_cbranch_scc1 {L}')
        I(f'ds_read_b128 {vr(t, 4)}, v{vAd+4}'); I(f'ds_read_b128 {vr(t+4, 4)}, v{vAd+4} offset:16')
        self.pk('add', t, t, t + 2); self.pk('add', t + 4, t + 4, t + 6); self.pk('add', vS, t, t + 4)
        for x in self.finish_stats(vs, vq, None): I(x)
        I(f'v_lshrrev_b32 {vs}, 16, v{vMu}'); I(f'v_or_b32 v{vS-2}, {vs}, {vq}'); I(f'v_mov_b32 v{vS-1}, {vTag}')
        I(f'buffer_store_dwordx4 {vr(vS-2, 4)}, v{vAd+6}, {WS}, {sP[3]} offen offset:2048 sc1')
        self.cond_end(snap); self.label(L)

    def w1_items(self, cs):
        L = []
        for c in cs:
            for pt in range(7):
                L.append(([f's_add_u32 m0, s86, {c*4*7168 + pt*1024}'] if pt % 4 == 0 else []) + ([f's_add_u32 s88, s85, {c*3456}'] if pt == 0 else []) +
                         [f'buffer_load_dwordx4 v{vW1A + pt}, {W1}, s88 offen offset:{(pt & 3)*1024} lds'])
        return L
    def w2reg(self, f):
        if f < 32: return ar(128 + 4*f, 4)
        if f < 54: return ar(4*(f - 32), 4)
        return vr([8, 12, 36, 40, 16, 20, 44, 48, 24, 28, 52, 56, 184, 188, 32, 60][f - 54], 4)
    def w2_items(self, n, lim=54):
        L = []
        for i in range(n):
            f = self.w2next
            if f >= lim: break
            self.w2next += 1
            L.append(([f's_add_u32 s87, {sW2B}, {(f & ~3)*1024}'] if f % 4 == 0 else []) +
                     [f'buffer_load_dwordx4 {self.w2reg(f)}, {vL16}, {WS}, s87 offen offset:{(f & 3)*1024} sc1'])
        return L
    def w2_loads(self, n, lim=54):
        for x in sum(self.w2_items(n, lim), []): self.I(x)

    def emit(self, x):
        if callable(x): x()
        else: self.I(x)
    def wait_regs(self, regs):
        regs = {('v', r) for r in regs}; last = None
        for p in self.vm:
            if p[1] & regs: last = p[0]
        if last is not None: self.wait_tok(last)
    def p5_plan(self):
        oe = self.opt.get('own_early', 0)
        order = [(kp, mu) for kp in range(12) for mu in (1, 2, 3)] + [(kp, 0) for kp in range(oe)]
        order += [(kp, mu) for mu in (1, 2, 3) for kp in (12, 13)] + [(kp, 0) for kp in range(oe, 14)]
        self.gen_ok = 0
        self.gen_of = lambda i: order[i][0] >> 2
        self.order5 = order; self.NRF = 20
        self.hreg = lambda i: 64 + 4*(i % self.NRF)
        self.ldh = lambda i: f'buffer_load_dwordx4 {vr(self.hreg(i), 4)}, {vL16}, {WS}, {self.sH(order[i][1], KORD[order[i][0]] >> 2)} offen offset:{(KORD[order[i][0]] & 3)*1024} sc1'
        self.nxt5 = 0
    def f4_signal(self, gen, last):
        def w():
            if self.opt.get('st4'): self.stamp(f'sig{gen}a')
            self.wait_tok(self.toks[last])
            if self.opt.get('st4'): self.stamp(f'sig{gen}b')
        return [w, f'buffer_store_dword {vTag}, v235, {WS}, s45 offen offset:{gen*128} sc1']
    def f4_load(self, gen): return f'buffer_load_dword v234, v0, {WS}, s46 offen offset:{gen*128} sc1'
    def f4_ld(self, gen):
        def touch():
            self.I(f'buffer_load_dword v234, v7, {WS}, s47 offen offset:{gen*1024} sc1'); self.vm[-1] = (self.vm[-1][0], set())
        return ([touch] if self.opt.get('h1touch', 0) else []) + [self.f4_load(gen)]
    def f4_check(self, gen):
        a, b = self.retry([self.f4_load(gen)], ['v_cmp_ne_u32 vcc, s62, v234', 's_cbranch_vccnz'], inline=False)
        def fin():
            b(); self.gen_ok = gen + 1
            if self.opt.get('st4'): self.stamp(f'chk{gen}b')
        def w():
            if self.opt.get('st4'): self.stamp(f'chk{gen}a')
            self.wait_regs([234])
        return [w, a.items[0], fin]
    def p4(self):
        I = self.I; opt = self.opt
        vAcc = 8; vLn = 64; vK = 230; vT = 236; vO = 244; vC = 234
        lnreg = lambda mt, k: vLn + 8*k + 4*mt
        blocks = [(0, 1, 2, 3), (4, 5), (6,)]
        frags = [(k, nt) for b in blocks for k in range(20) for nt in b]
        D = 7
        bf = lambda i: aBf + 4*(i % 10)
        def rd(i, hf):
            k, nt = frags[i]
            base = (252 if nt == 6 else 224) + k // 8; off = (k % 8)*7168 + hf*16*224 + (0 if nt == 6 else nt*32)
            return f'ds_read_b64_tr_b16 {ar(bf(i) + 2*hf, 2)}, v{base} offset:{off}'
        lda = lambda k, mt: f'buffer_load_dwordx4 {vr(lnreg(mt, k), 4)}, v{227 + mt}, {WS}, {sP[4 + (k >> 3)]} offen offset:{(k & 7)*512} sc1'
        PRE = opt.get('p4_pre', 8); CH = opt.get('p4_chk', 4)
        first = [lda(k, mt) for k in range(PRE) for mt in range(2)]
        for x in first: I(x)
        self.p3_stats()
        self.epoch()
        self.p5_offsets((0,))
        for i in range(D): I(rd(i, 0)); I(rd(i, 1))
        I(f's_mov_b32 s44, {f32(-1.4426950408889634)}')
        I(f's_lshl_b32 s46, {sG}, 15'); I(f's_add_u32 s46, s46, {WS_FL4}'); I(f's_lshr_b32 {sT[0]}, {sW}, 1'); I(f's_lshl4_add_u32 {sT[0]}, {sT[0]}, {sM}')
        I(f's_and_b32 {sT[1]}, {sW}, 1'); I(f's_lshl1_add_u32 {sT[0]}, {sT[0]}, {sT[1]}'); I(f's_lshl_b32 {sT[0]}, {sT[0]}, 9'); I(f's_add_u32 s45, s46, {sT[0]}')
        I(f's_and_b32 {sT[0]}, {sT[5]}, 4'); I(f's_add_u32 {sT[0]}, {sT[0]}, {sW}'); I(f's_lshl_b32 {sT[0]}, {sT[0]}, 12'); I(f's_add_u32 s46, s46, {sT[0]}')
        I(f'v_lshrrev_b32 v235, 5, {vLane}'); I(f'v_lshlrev_b32 v235, 26, v235'); I(f'v_lshl_add_u32 v235, {vLane}, 2, v235'); I(f'v_and_b32 v0, 7, {vLane}'); I('v_lshlrev_b32 v0, 9, v0')
        I(f's_and_b32 {sT[0]}, {sY}, 3'); I(f's_add_u32 {sT[0]}, {sT[0]}, {sT[5]}'); I(f's_mul_i32 s47, {sT[0]}, 57344'); I(f's_add_u32 s47, s47, {sT[3]}'); I(f's_add_u32 s47, s47, {WS_H1}')
        I(f'v_bfe_u32 v7, {vLane}, 3, 2'); I('v_mad_u32_u24 v7, v7, 7, 1'); I('v_lshrrev_b32 v7, 1, v7'); I('v_lshlrev_b32 v7, 12, v7'); I('v_add_u32 v7, v7, v0'); I('v_lshrrev_b32 v7, 2, v7')
        self.stamp('p4 pre', fine=True)
        a, b = self.retry(first, self.max_test([lnreg(mt, k) + 3 for k in range(CH) for mt in range(2)], vC)); a(); b()
        self.stamp('p4 LN')
        self.p5_plan()
        def silu(nt, mt, dst2, t, pk):
            r = vAcc + 4*(mt*7 + nt); kn, sg = vK + 2*mt, vK + 2*mt + 1
            if pk:
                L = [f'v_pk_mul_f32 {vr(t+2*h, 2)}, {vr(r+2*h, 2)}, {vr(kn, 2)} op_sel:[0,0] op_sel_hi:[1,0]' for h in range(2)]
                L += [f'v_exp_f32 v{t+i}, v{t+i}' for i in range(4)]
                L += [f'v_pk_fma_f32 {vr(t+2*h, 2)}, {vr(t+2*h, 2)}, {vr(kn, 2)}, {vr(kn, 2)} op_sel:[0,1,1] op_sel_hi:[1,1,1]' for h in range(2)]
                L += [f'v_rcp_f32 v{t+i}, v{t+i}' for i in range(4)]
                L += [f'v_pk_mul_f32 {vr(t+2*h, 2)}, {vr(t+2*h, 2)}, {vr(r+2*h, 2)}' for h in range(2)]
            else:
                L = [f'v_mul_f32 v{t+i}, v{r+i}, v{kn}' for i in range(4)] + [f'v_exp_f32 v{t+i}, v{t+i}' for i in range(4)]
                L += [f'v_fma_f32 v{t+i}, v{t+i}, v{sg}, v{sg}' for i in range(4)] + [f'v_rcp_f32 v{t+i}, v{t+i}' for i in range(4)]
                L += [f'v_mul_f32 v{t+i}, v{t+i}, v{r+i}' for i in range(4)]
            return L + [f'v_cvt_pk_bf16_f32 v{dst2+h}, v{t+2*h}, v{t+2*h+1}' for h in range(2)]
        units = [(pr, mt) for pr in range(3) for mt in range(2)] + [(3, 0)]
        def unit(u, half, pk):
            pr, mt = units[u]; o = vO + 4*(u & 1)
            if pr < 3: L = silu(2*pr + half, mt, o + 2*half, vT + 4*half, pk)
            else: L = silu(6, half, o + 2*half, vT + 4*half, pk)
            if half:
                if pr == 3: L += [f'v_permlane16_swap_b32 v{o}, v{o+2}', f'v_permlane16_swap_b32 v{o+1}, v{o+3}']
                L.append(self.h1_store(o, pr, mt, 229))
            return L
        todo = [(u, h) for u in range(7) for h in range(2)]
        cur = []
        def next_fill(limit):
            nonlocal cur
            if not cur and todo and todo[0][0] < limit: cur = unit(*todo.pop(0), False)
            return cur.pop(0) if cur else None
        ldst = [f'buffer_load_dwordx2 {vr(vK + 2*mt, 2)}, v{227 + mt}, {WS}, {sP[6]} offen offset:2048 sc1' for mt in range(2)]
        sa, sb = self.retry(ldst, [f'v_cmp_ne_u32 vcc, s62, v{vK+1}', f'v_cmp_ne_u32 {sPAIR}, s62, v{vK+3}', f's_or_b64 vcc, vcc, {sPAIR}', 's_cbranch_scc1'], inline=False)
        stc = []
        for mt in range(2): stc += [f'v_and_b32 v{vK+2*mt+1}, 0xffff0000, v{vK+2*mt}', f'v_rcp_f32 v{vK+2*mt}, v{vK+2*mt+1}']
        stc += [f'v_mul_f32 v{vK+2*mt}, s44, v{vK+2*mt}' for mt in range(2)]
        nxt = PRE; q = []; done = CH
        w2B = []
        def w2one(lim):
            if not w2B: w2B.extend(sum(self.w2_items(1, lim), []))
            if w2B: I(w2B.pop(0)); return True
        def burst(n, lim):
            for j in range(n):
                L = unit(*todo.pop(0), True)
                for p, x in enumerate(L):
                    I(x)
                    if p == 5 or (p == 11 and j % 2 < opt.get('w2_burst', 1)):
                        w2one(lim)
                        if w2B: w2one(lim)
        H0 = opt.get('h1_at', 1); HN = opt.get('h1_pre', 10)
        fix = {}
        for i, (k, nt) in enumerate(frags):
            blk = 0 if i < 80 else 1 if i < 120 else 2
            if blk == 0 and nt == 0:
                fix = {}
                assert k < done
                if nxt < 20: fix[0] = [lda(nxt, 0)]; fix[1] = [lda(nxt, 1)]; nxt += 1
                elif k == opt.get('st_at', 14): fix[0] = [ldst[0]]; fix[1] = [ldst[1]]
                if k + 1 == done and done < 20:
                    assert nxt >= done + 2
                    regs = [lnreg(m, kk) + 3 for kk in (done, done + 1) for m in range(2)]
                    a, b = self.retry([lda(kk, m) for kk in range(done, nxt) for m in range(2)], self.max_test(regs, vC), inline=False)
                    fix[2] = [lambda regs=regs: self.wait_regs(regs)]
                    fix[4], fix[5], fix[6], fix[7] = [a.items[0]], [a.items[1]], [a.items[2]], [b]
                    done += 2
                if k == 18:
                    fix[0] = [lambda: self.wait_regs([vK + 3])]; fix[1] = [sa.items[0]]; fix[2] = [sa.items[1]]; fix[4] = [sa.items[2], sb]
                if k == 19:
                    for p, x in zip((0, 1, 2, 4, 5, 6), stc): fix[p] = [x]
            if i == 80:
                self.stamp('p4 A', fine=True)
                burst(8, 54)
                self.stamp('p4 burst', fine=True)
            if i == 80 + opt.get('sig0', 4): q += self.f4_signal(0, self.h1_store(vO + 4, 0, 1, 229))
            if i == 80 + opt.get('sig1', 18): q += self.f4_signal(1, self.h1_store(vO + 4, 1, 1, 229))
            if i == 80 + opt.get('ld0', 36): q += self.f4_ld(0)
            if i == 120 + opt.get('chk0', 3): q += self.f4_check(0)
            if i == 120:
                self.stamp('p4 B1', fine=True)
                assert not q and not cur
                burst(4, 62)
                self.stamp('p4 burst2', fine=True)
            if blk == 2 and self.gen_ok:
                if self.nxt5 < HN and self.hreg(self.nxt5) + 4 <= lnreg(0, k) and not q and k % opt.get('h1_per', 2) == 0: q.append(self.ldh(self.nxt5)); self.nxt5 += 1
            if i % 2 == 0:
                for p in list(self.lg):
                    if ('a', bf(min(i + 1, len(frags) - 1)) + 3) in p[1]: self.wait_tok(p[0])
            for mt in range(2):
                d = vr(vAcc + 4*(mt*7 + nt), 4)
                I(f'v_mfma_f32_16x16x32_bf16 {d}, {ar(bf(i), 4)}, {vr(lnreg(mt, k), 4)}, {"0" if k == 0 else d}')
                if i + D < len(frags): I(rd(i + D, mt))
                if blk == 0:
                    for x in fix.get(2*nt + mt, []): self.emit(x)
                elif not (i % 2 == 1 and mt == 1):
                    if q: self.emit(q.pop(0))
                    elif w2B or (i % 2 == 0 and mt == 0 and (blk == 1 or not self.gen_ok)): w2one(62 if blk == 1 else 66)
        assert not q
        self.stamp('p4 loop')
        for x in self.f4_signal(2, self.h1_store(vO + 4, 2, 1, 229)): self.emit(x)
        for x in self.f4_ld(1): self.emit(x)
        for x in w2B: I(x)
        self.sprinkle([[self.ldh(i)] for i in range(self.nxt5, HN)] + self.w2_items(opt.get('w2_tail', 2), 68), opt.get('tail_per', 8)); self.nxt5 = max(self.nxt5, HN)
        for x in cur: I(x)
        for u, h in todo:
            for x in unit(u, h, True): I(x)
        self.bg()

    def p5(self):
        I = self.I; opt = self.opt
        order = self.order5; NRF = self.NRF; vC = 234
        acc = lambda mu, nt: vr(164 + 4*nt, 4) if mu == 0 else vr(144 + 4*nt, 4) if mu == 3 else ar(68 + 20*mu + 4*nt, 4)
        par = lambda s, nt: [144 + 4*nt, 64 + 4*nt, (84, 88, 92, 128, 132)[nt]][s]
        vHr = 192; vHf = 202; vAd = 224; vM = 222
        PD = opt.get('p5_pd', 10)
        print('late w2:', 70 - self.w2next)
        late = sum(self.w2_items(70, 70), [])
        rec = Rec()
        J = rec.I
        J(f'v_lshrrev_b32 v{vAd}, 1, {vG}'); J(f'v_sub_u32 v{vAd}, v{vAd}, {vG}'); J(f'v_lshl_add_u32 v{vAd}, v{vAd}, 7, v227')
        J(f'v_and_b32 v{vAd+1}, 1, {vG}'); J(f'v_lshl_add_u32 v{vAd}, v{vAd+1}, 3, v{vAd}')
        rec.opt = opt; K.tile0(rec, sT[5]); J(f's_add_u32 {sT[6]}, {sT[5]}, {sW}'); K.cb5(rec, sT[3])
        J(f's_mul_i32 {sP[4]}, {sT[6]}, {2*TS}'); J(f's_add_u32 {sP[4]}, {sP[4]}, {O_LN}'); J(f's_add_u32 {sP[7]}, {sP[4]}, 8192')
        J(f's_lshl_b32 {sT[4]}, {sT[3]}, 8'); J(f's_add_u32 {sP[4]}, {sP[4]}, {sT[4]}'); J(f's_add_u32 {sP[5]}, {sP[4]}, 4096'); J(f's_add_u32 {sP[6]}, {sP[4]}, 8192')
        J(f's_mul_i32 s44, {sT[6]}, 1280'); J(f's_mul_i32 {sT[3]}, {sT[3]}, 160'); J(f's_add_u32 s44, s44, {sT[3]}')
        resl = [f'buffer_load_dwordx2 {vr(vHr + 2*c, 2)}, v{vAd}, {WS}, {sP[4 + (c >> 1)]} offen offset:{(c & 1)*2048} sc1' for c in range(5)]
        resl += [f'buffer_load_dword v{vM}, v227, {WS}, {sP[7]} offen offset:2048 sc1']
        resc = [f'v_lshlrev_b32 v{vM}, 16, v{vM}']
        for c in range(5):
            for qq in range(4):
                src = vHr + 2*c + (qq >> 1); d = vHf + 5*qq + c
                resc += [f'v_and_b32 v{d}, 0xffff0000, v{src}' if qq & 1 else f'v_lshlrev_b32 v{d}, 16, v{src}']
        resc += [f'v_sub_f32 v{vHf + i}, v{vHf + i}, v{vM}' for i in range(20)]
        resc += [f'v_cvt_pk_bf16_f32 v{vHr + i}, v{vHf + 2*i}, v{vHf + 2*i + 1}' for i in range(10)]
        for i in range(10): resc += [f'v_lshlrev_b32 v{vHf + 2*i}, 16, v{vHr + i}', f'v_and_b32 v{vHf + 2*i + 1}, 0xffff0000, v{vHr + i}']
        adr = []
        for mu in range(1, 4):
            adr += [f's_add_u32 {sT[2]}, {sW}, {mu}', f's_and_b32 {sT[2]}, {sT[2]}, 3', f's_mul_i32 {sT[2]}, {sT[2]}, 15360', f's_add_u32 {sT[2]}, {sT[2]}, {(mu - 1)*5120}',
                    f'v_add_u32 v{vAd + 5 + mu}, {sT[2]}, {vL16}']
        adr += [f's_mul_i32 {sT[2]}, {sW}, 15360', f'v_add_u32 v{vAd+5}, {sT[2]}, {vL16}']
        adr += [f'v_mul_u32_u24 v{vAd+1}, 163840, {vN}', f'v_mul_u32_u24 v{vAd+2}, 40, {vG}', f'v_add_u32 v{vAd+1}, v{vAd+1}, v{vAd+2}']
        lastof = {mu: max(i for i, o in enumerate(order) if o[1] == mu) for mu in range(4)}
        seen = set(); wr = []; slow = rec.L + adr; mem = []
        B1 = opt.get('p5_bar1', 8); B2 = lastof[3] + opt.get('p5_bar2', 7)
        ev = {opt.get('chk1', 2): self.f4_check(1), opt.get('ld2', 6): self.f4_ld(2), opt.get('sig3', 7): self.f4_signal(3, self.h1_store(244, 3, 0, 229)),
              opt.get('chk2', 14): self.f4_check(2), opt.get('ld3', 18): self.f4_ld(3), opt.get('chk3', 26): self.f4_check(3)}
        for i, (kp, mu) in enumerate(order):
            if i == B1:
                assert not slow
                I('s_barrier'); mem += resl
            if i == opt.get('res_at', 32): assert not mem; slow += resc
            for m in (1, 2, 3):
                if i == lastof[m] + 1: wr += [f'ds_write_b128 v{vAd + 5 + m}, {acc(m, nt)} offset:{nt*1024}' for nt in range(5)]
            if i == B2:
                assert not wr and i >= 48 and self.nxt5 == 56
                self.barrier()
                slow += [f'ds_read_b128 {vr(par(s, nt), 4)}, v{vAd+5} offset:{s*5120 + nt*1024}' for nt in range(5) for s in range(3)]
                for nt in range(5):
                    slow += [f'v_add_f32 v{par(1, nt) + e}, v{par(1, nt) + e}, v{par(2, nt) + e}' for e in range(4)]
                    slow += [f'v_add_f32 v{par(0, nt) + e}, v{par(0, nt) + e}, v{par(1, nt) + e}' for e in range(4)]
            c = list(ev.get(i, []))
            if i in (14, 28, 42) and opt.get('st5'): self.stamp(f'p5 {i}')
            for nt in range(5):
                d = acc(mu, nt)
                assert not any(f' {self.w2reg(kp*5 + nt)},' in x for x in late)
                I(f'v_mfma_f32_16x16x32_bf16 {d}, {self.w2reg(kp*5 + nt)}, {vr(self.hreg(i), 4)}, {d if mu in seen else "0"}')
                n0 = self.nins
                assert i < self.nxt5
                if nt == 0 and self.nxt5 < len(order) and self.nxt5 <= i + PD and self.nxt5 < i + NRF and self.gen_of(self.nxt5) < self.gen_ok:
                    I(self.ldh(self.nxt5)); self.nxt5 += 1
                if nt == 1 and i % opt.get('late_per', 2) == 0:
                    if late:
                        if late[0].startswith('s_add'): I(late.pop(0))
                        I(late.pop(0))
                    elif mem: I(mem.pop(0))
                if c and nt >= 2: self.emit(c.pop(0)); continue
                if wr and (5*i + nt) % opt.get('wr_per', 3) == 0: I(wr.pop(0)); continue
                if nt == 4 and i + 1 < len(order): self.wait_regs([self.hreg(i + 1)])
                while self.nins - n0 < opt.get('fill5', 2) and slow: I(slow.pop(0))
            seen.add(mu)
        assert not late and not mem
        for x in slow: I(x)
        self.stamp('p5 loop')
        vO = 64; S = 144
        for i in range(10): self.pk('add', S + 2*i, S + 2*i, 164 + 2*i)
        for i in range(10): I(f'v_cvt_pk_bf16_f32 v{vO + i}, v{S + 2*i}, v{S + 2*i + 1}')
        for i in range(10):
            I(f'v_lshlrev_b32 v{S + 2*i}, 16, v{vO + i}'); I(f'v_and_b32 v{S + 2*i + 1}, 0xffff0000, v{vO + i}')
        vO = 76
        for i in range(10):
            self.pk('add', S + 2*i, S + 2*i, vHf + 2*i)
            I(f'v_cvt_pk_bf16_f32 v{vO + i}, v{S + 2*i}, v{S + 2*i + 1}')
            if i == 3: I(f'buffer_store_dwordx4 {vr(vO, 4)}, v{vAd+1}, {OUT}, s44 offen')
            if i == 7: I(f'buffer_store_dwordx4 {vr(vO + 4, 4)}, v{vAd+1}, {OUT}, s44 offen offset:16')
        I(f'buffer_store_dwordx2 {vr(vO + 8, 2)}, v{vAd+1}, {OUT}, s44 offen offset:32')

    def build(self):
        I = self.I
        self.w2next = 0; self.vW2X = 168
        opt = self.opt
        self.p1()
        nm = dict(B=self.b1, t=[self.tw], a=[self.ad], A=self.p3_table_items(vFl + 3, 's63', 's87'))
        sel = self.sel = lambda s: sum([nm[c] if c in nm else self.w1_items([int(c)]) for c in s], [])
        nm['p'] = self.poC
        if opt.get('tall', 1): nm.update(self.touch_all())
        nm['_'] = [[]]
        self.p1a(sel(opt.get('pre', '_Btxyr')), opt.get('pre_per', 12))
        snap = self.cond_begin()
        I(f's_cmp_ge_u32 {sY}, 20'); I('s_cbranch_scc1 L_nop2')
        self.tile()
        self.sprinkle(self.pre_rest, opt.get('pre_per2', 20))
        if opt.get('f2_at', 0) == 0: self.dft32(False, VW + 76)
        self.bg()
        if opt.get('wa_at', 1) == 0: nm['W'] = self.w_addr(VW + 152)
        self.p1b(sel(opt.get('P_p1', '___________p')), opt.get('p1_per', 14))
        self.stamp('p1 sig')
        if opt.get('wa_at', 1) == 1: nm['W'] = self.w_addr(VW + 152)
        self.ldA = self.flag_load('A', sP[18], False)
        self.p2()
        self.cond_end(snap, True); I('s_branch L_join2'); self.label('L_nop2')
        self.vm = list(snap[0]); self.lg = list(snap[1])
        snap = self.cond_begin()
        if set('wvde') & set(opt.get('H_pre', '') + opt.get('H_p1', '') + opt.get('H_x1', '') + opt.get('H_x2', '')): nm.update(self.touch_addr())
        self.run(sel(opt.get('H_pre', '')))
        if opt.get('stT'): self.stamp('tch iss'); self.wait_vm0(); self.stamp('tch ret')
        nm['R'] = self.repack_addr(VW + 152)
        self.run(self.pre_rest)
        self.p1b(sel(opt.get('H_p1', '___________p')), opt.get('p1_perH', 14))
        self.stamp('p1 sig')
        self.helper()
        self.cond_end(snap, True); self.label('L_join2')
        self.vm = [(-1, set())]
        self.stamp('join2')
        self.p3_pre()
        self.stamp('flagB')
        self.w2_loads(self.opt.get('w2_s2', 0))
        self.p3()
        self.p4()
        self.stamp('p4 end')
        self.p5()
        self.stamp('end')
        self.label('L_end'); I('s_endpgm')
        self.out += self.tail

HEADER = open('sequential_preLN__spectral_gfnet__dense_activation_silu__prompt.s.ref').read().split('; Override launch')[0]
def make(stamps=False, **kw):
    k = K(stamps=stamps, **kw); k.build()
    s = HEADER + '; @launch grid=(256,1,1) block=(256,1,1) lds=163840\n'
    s += '; stamps: ' + '|'.join(k.stnames) + '\n'
    s += f'.amdgcn_target "amdgcn-amd-amdhsa--gfx950"\n.text\n.globl {KNAME}\n.p2align 8\n.type {KNAME},@function\n{KNAME}:\n'
    s += k.text()
    s += '.p2align 8\n.type L_tab,@object\nL_tab:\n' + tables.blob_asm(TBLOB) + f'\n.size L_tab, {len(TBLOB)}\n'
    s += f'''.section .rodata,"a"
.p2align 6
.amdhsa_kernel {KNAME}
  .amdhsa_next_free_vgpr 512
  .amdhsa_next_free_sgpr 102
  .amdhsa_accum_offset 256
  .amdhsa_group_segment_fixed_size 0
  .amdhsa_kernarg_size 72
  .amdhsa_user_sgpr_count 2
  .amdhsa_user_sgpr_kernarg_segment_ptr 1
  .amdhsa_system_sgpr_workgroup_id_x 1
.end_amdhsa_kernel
'''
    return s, k
if __name__ == '__main__':
    out = sys.argv[1]; st = 'stamps' in sys.argv[2:]
    kw = {}; opt = {}
    for a in sys.argv[2:]:
        if '=' in a:
            n, v = a.split('=', 1); v = eval(v)
            opt[n] = v
    s, k = make(st, opt=opt, **kw); open(out, 'w').write(s); print('instructions', k.nins, 'bytes', len(s), 'stamps', k.nst)
```

```python
import sys, struct, math
from asmgen import *
import tables

KNAME = 'sequential_preLN__spectral_gfnet__dense_activation_silu__prompt_kernel'
TS = 31488
O_T2, O_LN = 10240, 20480
WS_H1, WS_W2 = 0x800000, 0x1000000
WS_FLA, WS_FLB, WS_EP, WS_FL4 = 0x1300000, 0x1310000, 0x1418000, 0x1420000
FREP = 0x18000
WS_STAMP = 0x1500000
WS_SIZE = 0x2000000
TOFF, TBLOB = tables.all_tables()
def f32(x): return hex(struct.unpack('<I', struct.pack('<f', x))[0])
KORD = [0, 4, 7, 11, 1, 5, 8, 12, 2, 6, 9, 13, 3, 10]

X, WR, WI, W1, W2, OUT, WS, TAB = [sr(4 + 4*i, 4) for i in range(8)]
sW, sG, sM, sS1, sHH, sX8, sY, sTILE = 's36', 's37', 's38', 's39', 's40', 's41', 's42', 's43'
sC = 's[44:45]'; sS = 's[46:47]'
sMASK = 's48'; sCNT = 's49'
sT = ['s50', 's51', 's52', 's53', 's54', 's55', 's56', 's57']
sPAIR = 's[58:59]'; sPC = 's[60:61]'; sTAG2 = 's[62:63]'
sP = [f's{i}' for i in range(64, 84)]
sW2B = 's84'
sH1 = ['s60', 's61', 's100']
sBLK = 's101'
vLane, vN, vG, vL16, vTag = 'v1', 'v2', 'v3', 'v4', 'v5'
vXR = 8
vW1A = 20
vMu = 27
vTW3 = 28
vA3 = 44
VW = 48
vWr, vWi = 212, 228
vPo = 244
vFl = 248
vJunk = 252
vWA = 206
aB1, aF2, aI2, aA3 = 0, 32, 64, 96
aBf = 88
L_XF, L_EX, L_R = 114688, 114688 + 24576, 114688 + 24576 + 10240
L_G, L_H = 114688, 114688 + 32768
L_V, L_ST = 143360, 143360 + 48*288
L_W = 86016
L_RP = 57344

class Rec:
    def __init__(self): self.L = []
    def I(self, x): self.L.append(x)

class K(Gen):
    def __init__(self, stamps=False, opt=None):
        super().__init__(); self.stamps = stamps; self.nst = 0; self.stnames = []; self.opt = opt or {}; self.tail = []; self.toks = {}
    bgq = None; bgper = 0; bgcnt = 0; inbg = False
    def I(self, text):
        t2 = text
        if text.startswith('buffer_load'):
            for c, srds in (('x', (X,)), ('W', (WR, WI)), ('1', (W1,)), ('2', (W2,))):
                if c in self.opt.get('nt', '') and any(f' {d},' in text for d in srds) and 'x4' not in text: t2 = text.replace(' lds', ' nt lds') if text.endswith(' lds') else text + ' nt'
        r = super().I(t2)
        if r is not None: self.toks[text] = r
        if self.bgq and self.bgper and not self.inbg and not text.startswith(('s_cmp', 's_cbranch', 's_branch', 's_add_u32 m0')):
            self.bgcnt += 1
            if self.bgcnt >= self.bgper: self.bgcnt = 0; self.bg(1)
        return r
    def bg(self, n=10**9):
        self.inbg = True
        while n > 0 and self.bgq:
            for x in self.bgq.pop(0): self.I(x)
            n -= 1
        self.inbg = False
    def sprinkle(self, items, period):
        assert not self.bgq
        self.bgq = list(items); self.bgper = period; self.bgcnt = 0
    def cond_begin(self):
        assert not self.bgq or self.inbg or self.allow_bg_cond, 'background items pending at a conditional region'
        return super().cond_begin()
    allow_bg_cond = False
    def pk(self, op, d, a, b, c=None, bsel=None, neg_b=False, neg_c=False, neg_a=False):
        n = 3 if c is not None else 2
        ops = [vr(d, 2), vr(a, 2), b if isinstance(b, str) else vr(b, 2)] + ([vr(c, 2)] if c is not None else [])
        mods = ''
        if bsel is not None:
            lo = [0, bsel, 0][:n]; hi = [1, bsel, 1][:n]
            mods += f' op_sel:[{",".join(map(str, lo))}] op_sel_hi:[{",".join(map(str, hi))}]'
        if neg_a or neg_b or neg_c:
            ng = [int(neg_a), int(neg_b), int(neg_c)][:n]; s = ",".join(map(str, ng))
            mods += f' neg_lo:[{s}] neg_hi:[{s}]'
        self.I(f'v_pk_{op}_f32 ' + ', '.join(ops) + mods)
    def bc(self, r): return (r & ~1, r & 1)
    def weave(self, main, fill, per=2, start=0):
        fill = list(fill)
        for i, m in enumerate(main):
            self.I(m)
            if i >= start:
                for _ in range(per):
                    if fill: self.I(fill.pop(0))
        for f in fill: self.I(f)
    def stamp(self, name='', wait=None, fine=False):
        if self.opt.get('probe2') is not None:
            if name == self.opt.get('pst', 'end') and name != 'end':
                self.inbg = True
                if wait is not None: self.I(f'v_mov_b32 v7, v{wait}')
                self.I('s_memrealtime s[90:91]'); self.wait_lg0(); self.inbg = False
            if name == 'end':
                if not self.opt.get('nodrain'): self.wait_vm0(True)
                self.settle(); I = lambda t: self.raw('    ' + t); W = lambda: I('s_waitcnt vmcnt(0) lgkmcnt(0)'); pm = self.opt['probe2']
                if self.opt.get('pst', 'end') == 'end': I('s_memrealtime s[90:91]')
                I('s_load_dwordx2 s[92:93], s[0:1], 64'); I('s_waitcnt lgkmcnt(0)')
                I(f's_add_u32 s92, s92, {WS_STAMP}'); I('s_addc_u32 s93, s93, 0')
                I('s_lshl_b32 s94, s2, 2'); I(f's_add_u32 s94, s94, {sW}'); I('s_lshl_b32 s94, s94, 6')
                I('s_mov_b64 exec, 1'); I('s_nop 4'); I('v_mov_b32 v10, s94'); I('v_mov_b32 v12, s96'); I('v_mov_b32 v13, s90'); I('s_nop 4')
                I('global_store_dwordx2 v10, v[12:13], s[92:93] sc0 sc1'); W()
                I('s_cmp_lg_u32 s2, 0'); I('s_cbranch_scc1 L_end')
                S0 = self.opt.get("spin0", 4000)
                self.label('L_spin0'); I('s_memrealtime s[94:95]'); W(); I('s_sub_u32 s94, s94, s96'); I(f's_cmp_lt_u32 s94, {S0}'); I('s_cbranch_scc1 L_spin0')
                I('s_mov_b64 exec, -1'); I('s_nop 4'); I('v_mbcnt_lo_u32_b32 v10, -1, 0'); I('v_mbcnt_hi_u32_b32 v10, -1, v10'); I('v_lshlrev_b32 v10, 6, v10'); I('s_nop 4')
                lo, hi = self.opt.get('prange', (0, 16))
                for i in range(16):
                    I(f'global_load_dwordx2 v[{16+2*i}:{17+2*i}], v10, s[92:93] sc0 sc1'); I('v_add_u32 v10, 0x1000, v10'); I('s_nop 4')
                W(); I('s_sub_u32 s94, s96, 100'); I('s_nop 4')
                o = 0 if pm in (2, 3) else 1
                for i in range(16): I(f'v_subrev_u32 v{16+2*i+o}, s94, v{16+2*i+o}')
                if pm == 4:
                    I('v_mbcnt_lo_u32_b32 v10, -1, 0'); I('v_mbcnt_hi_u32_b32 v10, -1, v10')
                    for i in range(16): I(f'v_lshlrev_b32 v{16+2*i+o}, 10, v{16+2*i+o}'); I(f'v_or_b32 v{16+2*i+o}, v{16+2*i+o}, v10'); I(f'v_add_u32 v10, 64, v10')
                op = {1: 'max', 2: 'max', 3: 'min', 4: 'max', 5: 'min', 6: 'add'}[pm]
                I(f'v_mov_b32 v11, v{16+2*lo+o}')
                for i in range(lo + 1, hi): I(f'v_{op}_u32 v11, v11, v{16+2*i+o}')
                I('s_nop 4'); I('v_readlane_b32 s90, v11, 0')
                for i in range(1, 64): I(f'v_readlane_b32 s91, v11, {i}'); I('s_nop 4'); I(f's_{op}_u32 s90, s90, s91')
                if pm == 6: I(f's_mul_i32 s90, s90, {round(40 * 16 * 16 / (hi - lo))}'); I('s_lshr_b32 s90, s90, 14')
                elif pm == 4: I('s_and_b32 s90, s90, 1023'); I('s_mul_i32 s90, s90, 100')
                else: I('s_mul_i32 s90, s90, 40')
                I('s_min_u32 s90, s90, 200000'); I(f's_add_u32 s90, s90, {S0 + 1000}')
                self.label('L_spin'); I('s_memrealtime s[92:93]'); W(); I('s_sub_u32 s92, s92, s96'); I('s_cmp_lt_u32 s92, s90'); I('s_cbranch_scc1 L_spin')
            return
        if self.opt.get('probe'):
            if name == self.opt['probe']:
                self.inbg = True
                if wait is not None: self.I(f'v_mov_b32 v7, v{wait}')
                self.I('s_memtime s[90:91]' if self.opt.get('pcyc') else 's_memrealtime s[90:91]'); self.wait_lg0(); self.inbg = False
            if name == 'end':
                I = self.I
                I(f's_cmp_lg_u32 s2, {self.opt.get("pwg", 0)}'); I('s_cbranch_scc1 L_end')
                if self.opt.get('pcyc'): I('s_sub_u32 s90, s90, s98'); I('s_min_u32 s90, s90, 200000')
                else: I('s_sub_u32 s90, s90, s96'); I('s_min_u32 s90, s90, 5000'); I('s_mul_i32 s90, s90, 40')
                self.label('L_spin'); I('s_memrealtime s[92:93]'); self.wait_lg0(); I('s_sub_u32 s92, s92, s96'); I('s_cmp_lt_u32 s92, s90'); I('s_cbranch_scc1 L_spin')
            return
        if not self.stamps or (fine and not self.opt.get('fine')): return
        if self.opt.get('st4') and name.startswith(('p1', 'p2', 'pre', 'p3', 'fla', 'x a', 'joi')): return
        if name not in self.stnames: self.stnames.append(name); self.nst += 1
        self.inbg = True
        if wait is not None: self.I(f'v_mov_b32 v7, v{wait}')
        i = self.stnames.index(name); assert i < 32
        if name == 'entry':
            self.I('v_mov_b32 v6, 0'); a, b = 96, 98
        elif name == 'kernarg': a, b = 92, 94
        else:
            self.I('s_memrealtime s[96:97]'); self.I('s_memtime s[98:99]'); a, b = 96, 98
        self.wait_lg0()
        self.I(f'v_writelane_b32 v6, s{b}, {i}'); self.I(f'v_writelane_b32 v6, s{a}, {32 + i}'); self.I(f'v_writelane_b32 v255, {sCNT}, {i}')
        if name == 'end':
            self.I(f's_lshl_b32 s90, s2, 10'); self.I(f's_add_u32 s90, s90, {WS_STAMP}')
            self.I(f's_lshl_b32 s91, {sW}, 8'); self.I(f's_add_u32 s90, s90, s91')
            self.I(f'v_lshlrev_b32 v7, 2, {vLane}')
            self.I(f'buffer_store_dword v6, v7, {WS}, s90 offen')
            self.I(f's_add_u32 s90, s90, 0x40000'); self.I(f'buffer_store_dword v255, v7, {WS}, s90 offen')
        self.inbg = False

    def dft5_half(self, z, t):
        a, b, c, d, u0, u1, u2, v1, v2 = t
        self.pk('add', a, z[1], z[4]); self.pk('add', b, z[2], z[3])
        self.pk('add', c, z[1], z[4], neg_b=True); self.pk('add', d, z[2], z[3], neg_b=True)
        self.pk('add', u0, z[0], a); self.pk('fma', u1, a, sC, z[0], bsel=0); self.pk('fma', u2, a, sC, z[0], bsel=1)
        self.pk('mul', v1, c, sS, bsel=0); self.pk('mul', v2, c, sS, bsel=1)
        self.pk('add', u0, u0, b); self.pk('fma', u1, b, sC, u1, bsel=1); self.pk('fma', u2, b, sC, u2, bsel=0)
        self.pk('fma', v1, d, sS, v1, bsel=1); self.pk('fma', v2, d, sS, v2, bsel=0, neg_b=True)
        return u0, u1, u2, v1, v2
    def finish_stats(self, vs, vq, scale):
        rnd = [f'v_cvt_pk_bf16_f32 {vq}, {vq}, {vq}', f'v_lshlrev_b32 {vq}, 16, {vq}']
        L = [f'v_mul_f32 {vs}, {f32(1/640.)}, {vs}', f'v_mul_f32 {vq}, {f32(1/640.)}, {vq}',
             f'v_fma_f32 {vq}, -{vs}, {vs}, {vq}', f'v_max_f32 {vq}, 0, {vq}'] + rnd + [f'v_add_f32 {vq}, {f32(1e-5)}, {vq}'] + rnd
        L += [f'v_sqrt_f32 {vq}, {vq}'] + rnd
        if scale is None: return L
        L += [f'v_rcp_f32 {vq}, {vq}']
        if scale != 1.0: L.append(f'v_mul_f32 {vq}, {f32(scale)}, {vq}')
        return L

    def p1(self):
        I = self.I
        sRH = sP[1]
        vX = VW; vF = VW + 20; vTW = VW + 40; vA2 = VW + 56; vAd = VW + 64
        vAf = VW + 76; vAcc = VW + 124; vT = VW + 148
        if self.stamps or self.opt.get('probe') or self.opt.get('probe2') is not None: I('s_memrealtime s[96:97]'); I('s_memtime s[98:99]')
        for d, o in ((4, 0), (28, 64), (8, 8), (12, 16), (16, 32), (20, 40), (24, 48)): I(f's_load_dwordx2 s[{d}:{d+1}], s[0:1], {o}')
        I('s_cmp_ge_u32 s2, 256'); I('s_cbranch_scc1 L_end')
        I(f's_getpc_b64 {sPC}'); self.label('L_pc')
        I(f's_lshr_b32 {sY}, s2, 3'); I(f'v_min_u32 v6, 26, v0'); I(f's_mul_i32 {sT[0]}, {sY}, {27*128}')
        I(f'v_lshl_add_u32 v6, v6, 7, {sT[0]}'); I(f'v_min_u32 v6, (L_tab - L_pc + {len(TBLOB) - 4}), v6')
        I(f'global_load_dword v7, v6, {sPC}')
        I(f's_and_b32 {sX8}, s2, 7'); I(f'v_and_b32 {vN}, 15, v0'); I(f'v_lshrrev_b32 v{vAd+1}, 4, v0')
        if self.opt.get('split2', 4) == 4:
            I(f's_lshr_b32 {sG}, {sX8}, 2'); I(f's_lshr_b32 {sT[0]}, {sY}, 2'); I(f's_lshl3_add_u32 {sG}, {sG}, {sT[0]}')
            I(f's_and_b32 {sM}, s2, 3'); I(f's_and_b32 {sT[0]}, {sY}, 3'); I(f's_lshl2_add_u32 {sM}, {sM}, {sT[0]}')
        elif self.opt.get('split2', 4):
            I(f's_lshr_b32 {sG}, {sX8}, 1'); I(f's_lshl_b32 {sG}, {sG}, 2'); I(f's_lshr_b32 {sT[0]}, {sY}, 3'); I(f's_add_u32 {sG}, {sG}, {sT[0]}')
            I(f's_and_b32 {sM}, s2, 1'); I(f's_lshl_b32 {sM}, {sM}, 3'); I(f's_and_b32 {sT[0]}, {sY}, 7'); I(f's_add_u32 {sM}, {sM}, {sT[0]}')
        else:
            I(f's_lshl_b32 {sG}, {sX8}, 1'); I(f's_lshr_b32 {sT[0]}, {sY}, 4'); I(f's_add_u32 {sG}, {sG}, {sT[0]}'); I(f's_and_b32 {sM}, {sY}, 15')
        I(f's_lshl4_add_u32 {sBLK}, {sG}, {sM}'); I(f's_lshr_b32 {sS1}, {sBLK}, 1')
        I(f'v_mul_u32_u24 v{vF}, 163840, v{vAd+1}'); I(f'v_mul_u32_u24 v{vF+1}, 80, {vN}')
        if self.opt.get('xt'): I(f'v_min_u32 v{vF+2}, 9, {vN}'); I(f'v_lshl_add_u32 v{vF+2}, v{vF+2}, 7, v{vF}')
        I(f'v_add_u32 v{vF}, v{vF}, v{vF+1}')
        I(f's_mul_i32 {sP[12]}, {sS1}, 1280'); I('s_mov_b32 s6, 2621440'); I('s_mov_b32 s7, 0x20000')
        I(f's_mov_b32 s30, {WS_SIZE}'); I(f's_mov_b32 s31, 0x20000'); I(f's_mov_b32 {sP[13]}, {WS_EP}')
        self.wait_lg0()
        if self.stamps and self.opt.get('fine'): I('s_memrealtime s[92:93]'); I('s_memtime s[94:95]')
        if self.opt.get('xt'): I(f'buffer_load_dword v{vF+3}, v{vF+2}, {X}, {sP[12]} offen nt')
        for e in range(5): I(f'buffer_load_dwordx4 {vr(vX + 4*e, 4)}, v{vF}, {X}, {sP[12]} offen offset:{16*e}')
        if self.opt.get('ws_off'): I(f's_add_u32 s28, s28, {self.opt["ws_off"]}'); I('s_addc_u32 s29, s29, 0')
        I(f'buffer_load_dword {vTag}, off, {WS}, {sP[13]} sc1')
        I('v_lshrrev_b32 v6, 6, v0'); I(f'v_and_b32 {vLane}, 63, v0')
        I(f'v_readfirstlane_b32 {sW}, v6')
        I('s_add_u32 s32, s60, (L_tab - L_pc)'); I('s_addc_u32 s33, s61, 0')
        I(f's_mov_b32 s34, {len(TBLOB)}'); I('s_mov_b32 s35, 0x20000')
        I(f'v_lshlrev_b32 {vL16}, 4, {vLane}'); I(f's_and_b32 {sHH}, {sY}, 1'); I(f's_mov_b32 {sCNT}, 0x20000')
        self.stamp('entry'); self.stamp('kernarg', fine=True)
        for srd, n in ((8, 1314816), (12, 1314816), (16, 2211840), (20, 2211840), (24, 2621440)):
            I(f's_mov_b32 s{srd+2}, {n}'); I(f's_mov_b32 s{srd+3}, 0x20000')
        if self.opt.get('no_w1'): I('s_mov_b32 s18, 0')
        if self.opt.get('no_W'): I('s_mov_b32 s10, 0'); I('s_mov_b32 s14, 0'); I('s_mov_b32 s22, 0')
        I(f's_mul_i32 s86, {sW}, 7168'); I(f's_lshl_b32 s63, {sW}, 13')
        I(f's_and_b32 {sT[0]}, {sW}, 1'); I(f's_lshl1_add_u32 {sT[7]}, {sHH}, {sT[0]}')
        I(f's_lshl_b32 {sP[14]}, {sT[7]}, 13'); I(f's_add_u32 {sP[15]}, {sP[14]}, 4096')
        I(f's_lshl_b32 {sP[7]}, {sT[7]}, 10'); I(f's_add_u32 {sP[7]}, {sP[7]}, {TOFF["TW"]}'); I(f'v_lshlrev_b32 v{vAd}, 6, {vN}')
        self.b1 = [[f'buffer_load_dwordx4 {ar(aB1 + 4*f, 4)}, {vL16}, {TAB}, {sP[14 + (f >> 2)]} offen offset:{(f & 3)*1024}'] for f in (0, 4, 1, 5, 2, 6, 3, 7)]
        self.tw = [f'buffer_load_dwordx4 {vr(vTW + 4*f, 4)}, v{vAd}, {TAB}, {sP[7]} offen offset:{16*f}' for f in range(4)]
        self.ad = [f's_mov_b32 s88, {TOFF["AD"]}', f'buffer_load_dwordx4 {vr(vW1A, 4)}, {vL16}, {TAB}, s88 offen', f'buffer_load_dwordx3 {vr(vW1A + 4, 3)}, {vL16}, {TAB}, s88 offen offset:1024']
        self.poC = [[f'buffer_store_dwordx4 {vr(vPo, 4)}, v{vWi}, {WS}, {sP[(10, 10, 12)[i]]} offen offset:{i*128} sc1'] for i in range(3)]
    def touch_addr(self):
        I = self.I; a = vWr
        I(f's_lshl2_add_u32 {sT[0]}, {sY}, {sW}'); I(f's_sub_u32 {sT[0]}, {sT[0]}, 80')
        I(f's_sub_u32 {sT[3]}, 16, {sX8}'); I(f's_cmp_eq_u32 {sX8}, 0'); I(f's_cselect_b32 {sT[3]}, 8, {sT[3]}')
        I(f's_sub_u32 {sT[3]}, {sT[3]}, {sX8}'); I(f's_mul_i32 {sT[3]}, {sT[3]}, 642')
        I(f'v_and_b32 v{a}, 7, v0'); I(f'v_min_u32 v{a}, 5, v{a}'); I(f'v_lshlrev_b32 v{a}, 7, v{a}'); I(f'v_bfe_u32 v{a+1}, v0, 3, 1'); I(f'v_mad_u32_u24 v{a}, v{a+1}, {sT[3]}, v{a}')
        I(f'v_min_u32 v{a+1}, 2, {vG}'); I(f'v_mul_u32_u24 v{a+1}, {16*642}, v{a+1}'); I(f'v_add_u32 v{a}, v{a}, v{a+1}')
        I(f's_mul_i32 {sP[16]}, {sT[0]}, 48'); I(f's_add_u32 {sP[16]}, {sP[16]}, {sX8}'); I(f's_mul_i32 {sP[16]}, {sP[16]}, 642')
        I(f's_lshl3_add_u32 {sP[17]}, {sT[0]}, {sX8}'); I(f's_mul_i32 {sP[17]}, {sP[17]}, {45*128}')
        I(f'v_min_u32 v{a+2}, 22, {vLane}'); I(f'v_lshlrev_b32 v{a+2}, 7, v{a+2}')
        return dict(w=[[f'buffer_load_ushort v{vJunk}, v{a}, {WR}, {sP[16]} offen']], v=[[f'buffer_load_ushort v{vJunk+1}, v{a}, {WI}, {sP[16]} offen']],
                    d=[[f'buffer_load_dword v{vFl+1}, v{a+2}, {W1}, {sP[17]} offen']], e=[[f'buffer_load_dword v{vFl+2}, v{a+2}, {W1}, {sP[17]} offen offset:{23*128}']])
    def touch_all(self):
        I = self.I; a = vWr + 4; u = sP[19]
        I(f's_lshl2_add_u32 {u}, {sY}, {sW}')
        I(f's_sub_u32 {sT[3]}, 16, {sX8}'); I(f's_cmp_eq_u32 {sX8}, 0'); I(f's_cselect_b32 {sT[3]}, 8, {sT[3]}')
        I(f's_sub_u32 {sT[3]}, {sT[3]}, {sX8}'); I(f's_mul_i32 {sT[3]}, {sT[3]}, 642')
        I(f'v_and_b32 v{a}, 7, v0'); I(f'v_min_u32 v{a}, 5, v{a}'); I(f'v_lshlrev_b32 v{a}, 7, v{a}'); I(f'v_bfe_u32 v{a+1}, v0, 3, 1'); I(f'v_mad_u32_u24 v{a}, v{a+1}, {sT[3]}, v{a}')
        I(f'v_bfe_u32 v{a+1}, v0, 4, 2'); I(f'v_lshl_add_u32 v{a}, v{a+1}, 28, v{a}')
        I(f's_lshl4_add_u32 {sP[4]}, {u}, {sX8}'); I(f's_mul_i32 {sP[4]}, {sP[4]}, 642')
        if not self.opt.get('rd', 1): return dict(x=[[f'buffer_load_ushort v{vJunk}, v{a}, {WR}, {sP[4]} offen']], y=[[f'buffer_load_ushort v{vJunk+1}, v{a}, {WI}, {sP[4]} offen']])
        I(f'v_min_u32 v{a+2}, 17, {vLane}'); I(f'v_lshlrev_b32 v{a+2}, 7, v{a+2}')
        I(f's_mul_i32 {sP[5]}, {sX8}, {7*40960}'); I(f's_mul_i32 {sT[3]}, {u}, {18*128}'); I(f's_add_u32 {sP[5]}, {sP[5]}, {sT[3]}')
        I(f'v_and_b32 v{a+3}, 7, v0'); I(f'v_min_u32 v{a+3}, 6, v{a+3}'); I(f'v_lshrrev_b32 v{a+1}, 3, {vLane}'); I(f'v_min_u32 v{a+1}, 4, v{a+1}')
        if self.opt.get('shalf'):
            I(f's_lshr_b32 {sT[3]}, {sX8}, 2'); I(f's_xor_b32 {sT[3]}, {sT[3]}, {u}'); I(f's_and_b32 {sT[3]}, {sT[3]}, 1')
            I(f'v_lshl_add_u32 v{a+1}, v{a+1}, 1, {sT[3]}'); I(f's_sub_u32 {sT[3]}, 4, {sT[3]}'); I(f'v_min_u32 v{a+1}, {sT[3]}, v{a+1}')
        I(f'v_mul_u32_u24 v{a+1}, 3456, v{a+1}'); I(f'v_lshl_add_u32 v{a+3}, v{a+3}, 7, v{a+1}')
        I(f's_and_b32 {sT[3]}, s2, 3'); I(f's_mul_i32 {sT[3]}, {sT[3]}, 896'); I(f's_mul_i32 {sP[6]}, {u}, {5*3456}'); I(f's_add_u32 {sP[6]}, {sP[6]}, {sT[3]}')
        return dict(x=[[f'buffer_load_ushort v{vJunk}, v{a}, {WR}, {sP[4]} offen']], y=[[f'buffer_load_ushort v{vJunk+1}, v{a}, {WI}, {sP[4]} offen']],
                    r=[[f'buffer_load_dword v{vFl+1}, v{a+2}, {W2}, {sP[5]} offen']], s=[[f'buffer_load_dword v{vFl+2}, v{a+3}, {W1}, {sP[6]} offen']])
    def tile(self):
        I = self.I
        I(f's_sub_u32 {sT[3]}, 16, {sX8}'); I(f's_cmp_eq_u32 {sX8}, 0'); I(f's_cselect_b32 {sT[3]}, 8, {sT[3]}')
        I(f's_cmp_lt_u32 {sY}, 10'); I(f's_cselect_b32 {sTILE}, {sX8}, {sT[3]}'); I(f's_cselect_b32 {sT[4]}, 0, 10')
        I(f's_mul_i32 {sTILE}, {sTILE}, 10'); I(f's_add_u32 {sTILE}, {sTILE}, {sY}'); I(f's_sub_u32 {sTILE}, {sTILE}, {sT[4]}')
    def p1a(self, pre, per):
        I = self.I
        sRH = sP[1]
        vX = VW; vF = VW + 20; vTW = VW + 40; vA2 = VW + 56; vAd = VW + 64
        vAf = VW + 76; vAcc = VW + 124; vT = VW + 148
        self.sprinkle(pre, per)
        I(f's_mul_i32 {sBLK}, {sBLK}, {TS}')
        for i in range(4): I(f'v_mov_b32 v{vPo+i}, -1')
        I(f'v_lshrrev_b32 {vG}, 4, {vLane}')
        I(f's_mov_b32 s44, {f32(math.cos(2*math.pi/5))}'); I(f's_mov_b32 s45, {f32(math.cos(4*math.pi/5))}')
        I(f's_mov_b32 s46, {f32(math.sin(2*math.pi/5))}'); I(f's_mov_b32 s47, {f32(math.sin(4*math.pi/5))}')
        I(f's_mov_b32 {sMASK}, 0xffff')
        aWr, aWrO, aRd, aRdO, aRw, aRr, aXc, aExW, aExR, aSt = [vAd + 2 + i for i in range(10)]
        I(f'v_and_b32 v{aWr}, 7, v0'); I(f'v_xor_b32 v{aWr}, v{vAd+1}, v{aWr}'); I(f'v_lshlrev_b32 v{aWr}, 4, v{aWr}')
        I(f'v_lshl_add_u32 v{aWr}, {vN}, 8, v{aWr}'); I(f'v_add_u32 v{aWr}, {L_XF}, v{aWr}'); I(f'v_xor_b32 v{aWrO}, 128, v{aWr}')
        I(f's_lshr_b32 {sRH}, {sW}, 1'); I(f's_lshl_b32 {sT[4]}, {sRH}, 3')
        I(f'v_lshrrev_b32 v{vT}, 2, {vN}'); I(f'v_lshlrev_b32 v{vT}, 1, v{vT}'); I(f'v_and_b32 v{vT+1}, 1, {vN}'); I(f'v_add3_u32 v{vT}, v{vT}, v{vT+1}, {sT[4]}')
        I(f'v_bfe_u32 v{vT+1}, {vN}, 1, 1'); I(f'v_lshlrev_b32 v{vT+2}, 3, v{vT+1}'); I(f'v_xor_b32 v{vT}, v{vT}, v{vT+2}'); I(f'v_xor_b32 v{vT}, v{vT}, {vG}')
        I(f'v_lshlrev_b32 v{vT}, 4, v{vT}'); I(f'v_lshl_add_u32 v{vT}, {vG}, 8, v{vT}'); I(f'v_lshl_add_u32 v{vT}, v{vT+1}, 12, v{vT}')
        I(f'v_add_u32 v{aRd}, {L_XF}, v{vT}'); I(f'v_xor_b32 v{aRdO}, 64, v{aRd}')
        I(f'v_cvt_f32_u32 v{vT}, {vN}'); I(f'v_mul_f32 v{vT}, {f32(1/2048.)}, v{vT}')
        I(f'v_lshlrev_b32 v{vT+1}, 8, {vG}'); I(f'v_add_u32 v{vT+1}, {sS1}, v{vT+1}'); I(f'v_cvt_f32_u32 v{vT+1}, v{vT+1}')
        for e in range(4):
            I(f'v_add_f32 v{vT+2}, {f32(128.0*((e & 1) + 8*(e >> 1)))}, v{vT+1}'); I(f'v_mul_f32 v{vT+2}, v{vT}, v{vT+2}')
            I(f'v_cos_f32 v{vT+3}, v{vT+2}'); I(f'v_sin_f32 v{vT+4}, v{vT+2}')
            I(f'v_cvt_pk_f16_f32 v{vA2+e}, v{vT+3}, v{vT+4}'); I(f'v_cvt_pk_f16_f32 v{vA2+4+e}, -v{vT+4}, v{vT+3}')
        I(f'v_lshlrev_b32 v{aRw}, 2, v{vAd+1}'); I(f'v_add_u32 v{aRw}, {L_R}, v{aRw}')
        I(f's_lshl_b32 {sT[4]}, {sRH}, 5'); I(f's_add_u32 {sT[4]}, {sT[4]}, {L_R}'); I(f'v_lshl_add_u32 v{aRr}, {vG}, 3, {sT[4]}')
        I(f's_lshl_b32 {sT[4]}, {sHH}, 5'); I(f's_add_u32 {sT[4]}, {sT[4]}, {L_R + 64}'); I(f'v_and_b32 v{vMu}, 7, v0'); I(f'v_lshl_add_u32 v{vMu}, v{vMu}, 2, {sT[4]}')
        I(f's_lshl_b32 {sT[4]}, {sHH}, 3'); I(f's_and_b32 {sT[5]}, {sW}, 1'); I(f's_lshl_b32 {sT[6]}, {sT[5]}, 2'); I(f's_xor_b32 {sT[4]}, {sT[4]}, {sT[6]}')
        I(f'v_xor_b32 v{aXc}, {vN}, {vG}'); I(f'v_xor_b32 v{aXc}, {sT[4]}, v{aXc}')
        I(f'v_lshlrev_b32 v{aXc}, 4, v{aXc}'); I(f'v_lshl_add_u32 v{aXc}, {vG}, 8, v{aXc}')
        I(f'v_lshrrev_b32 v{vT+1}, 3, {vN}'); I(f'v_lshl_add_u32 v{aXc}, v{vT+1}, 12, v{aXc}')
        I(f's_lshl_b32 {sT[4]}, {sW}, 10'); I(f's_add_u32 {sT[4]}, {sT[4]}, {L_XF}'); I(f'v_add_u32 v{aXc}, {sT[4]}, v{aXc}')
        I(f's_mul_i32 {sT[4]}, {sT[5]}, 5120'); I(f's_add_u32 {sT[4]}, {sT[4]}, {L_EX}'); I(f's_lshl_b32 {sP[2]}, {sT[5]}, 6')
        I(f's_lshl_b32 {sT[5]}, {sRH}, 3'); I(f's_add_u32 {sT[5]}, {sT[5]}, {sT[4]}'); I(f'v_add_u32 v{aExW}, {sT[5]}, {vL16}')
        I(f's_mul_i32 {sT[5]}, {sRH}, 3072'); I(f's_add_u32 {sT[5]}, {sT[5]}, {sT[4]}'); I(f'v_add_u32 v{aExR}, {sT[5]}, {vL16}')
        I(f'v_mul_u32_u24 v{aSt}, 2560, {vG}'); I(f'v_lshl_add_u32 v{aSt}, {vN}, 2, v{aSt}')
        I(f's_add_u32 {sP[2]}, {sP[2]}, {sBLK}'); I(f's_mul_i32 {sT[5]}, {sRH}, 384'); I(f's_add_u32 {sP[2]}, {sP[2]}, {sT[5]}')
        I(f's_and_b32 {sT[4]}, {sW}, 1'); I(f's_mul_i32 {sT[4]}, {sT[4]}, {5120 - 64}'); I(f's_add_u32 {sP[10]}, {sP[2]}, {sT[4]}'); I(f's_add_u32 {sP[10]}, {sP[10]}, {O_T2}')
        I(f's_lshl_b32 {sT[4]}, {sRH}, 26'); I(f's_add_u32 {sP[12]}, {sP[10]}, {sT[4]}')
        I(f'v_lshrrev_b32 v{vWi}, 3, {vLane}'); I(f'v_mul_u32_u24 v{vWi}, {640 - 128}, v{vWi}'); I(f'v_add_u32 v{vWi}, v{vWi}, {vL16}')
        I(f's_lshl1_add_u32 {sP[3]}, {sS1}, {sHH}'); I(f's_lshl2_add_u32 {sP[3]}, {sP[3]}, {sW}'); I(f's_lshl_b32 {sP[3]}, {sP[3]}, 6'); I(f's_add_u32 {sP[3]}, {sP[3]}, {WS_FLA}')
        I(f's_mul_i32 s85, {sW}, {160*3456}'); I(f's_mul_i32 {sT[5]}, {sM}, 224'); I(f's_add_u32 s85, s85, {sT[5]}');
        I(f'v_mov_b32 v{vT+2}, 0x3f803f80'); I(f'v_lshrrev_b32 v211, 3, {vLane}'); I(f'v_mul_u32_u24 v211, {FREP - 64}, v211'); I(f'v_lshl_add_u32 v211, {vLane}, 3, v211')
        self.pre_rest = self.bgq; self.bgq = None
    def p1b(self, bulk, per):
        I = self.I
        sRH = sP[1]
        vX = VW; vF = VW + 20; vTW = VW + 40; vA2 = VW + 56; vAd = VW + 64
        vAf = VW + 76; vAcc = VW + 124; vT = VW + 148
        aWr, aWrO, aRd, aRdO, aRw, aRr, aXc, aExW, aExR, aSt = [vAd + 2 + i for i in range(10)]
        vs, vq, vone = f'v{vT}', f'v{vT+1}', f'v{vT+2}'
        I(f'v_cmp_gt_u32 vcc, 8, {vN}')
        self.stamp('prework', fine=True)
        self.stamp('x arrived', wait=vX + 19)
        self.wait_regs([vX + 19])
        self.allow_bg_cond = True
        self.sprinkle(bulk, per)
        for c in range(5):
            for e in range(4):
                a = vX + (10*e + c)//2; b = vX + (10*e + 5 + c)//2
                if c % 2 == 0: I(f'v_bfi_b32 v{vF + 4*c + e}, {sMASK}, v{a}, v{b}')
                else: I(f'v_alignbit_b32 v{vF + 4*c + e}, v{b}, v{a}, 16')
            I(f'ds_write_b128 v{aWrO if c & 1 else aWr}, {vr(vF + 4*c, 4)} offset:{c*4096}')
            for e in range(4*c, 4*c + 4):
                I(f'v_dot2_f32_bf16 {vs}, v{vX+e}, {vone}, {vs if e else 0}'); I(f'v_dot2_f32_bf16 {vq}, v{vX+e}, v{vX+e}, {vq if e else 0}')
        I(f'v_readfirstlane_b32 s62, {vTag}')
        self.barrier()
        self.stamp('p1 barA', fine=True)
        for ks in range(4):
            for tau in range(3):
                I(f'ds_read_b128 {vr(vAf + 4*(ks*3 + tau), 4)}, v{aRdO if ks & 1 else aRd} offset:{tau*8192 + ks*1024}')
        I('s_mul_i32 s62, s62, 0x9E3779B1'); I('s_add_u32 s62, s62, 0x7F4A7C16'); I('s_and_b32 s62, s62, -2'); I(f'v_mov_b32 {vTag}, s62'); I(f'v_mov_b32 v{vWr+8}, s62'); I(f'v_mov_b32 v{vWr+9}, s62')
        fill = []
        for sh in (8, 4, 2, 1):
            fill += [f'v_add_f32_dpp {vs}, {vs}, {vs} row_ror:{sh} row_mask:0xf bank_mask:0xf', f'v_add_f32_dpp {vq}, {vq}, {vq} row_ror:{sh} row_mask:0xf bank_mask:0xf']
        fill += self.finish_stats(vs, vq, 1.0/(math.sqrt(640.0)*4)) + [f'ds_write_b32 v{aRw}, {vq}', f'ds_write_b32 v{aRw}, {vs} offset:64']
        fill += [f'ds_read_b128 {vr(vXR + 4*tau, 4)}, v{aXc} offset:{tau*8192}' for tau in range(3)]
        mf = []
        for ks in range(4):
            for tau in range(3):
                for p in range(2):
                    d = vr(vAcc + 4*(tau*2 + p), 4)
                    mf.append(f'v_mfma_f32_16x16x32_bf16 {d}, {vr(vAf + 4*(ks*3 + tau), 4)}, {ar(aB1 + 4*(p*4 + ks), 4)}, {"0" if ks == 0 else d}')
        self.weave(mf, fill, per=2)
        self.barrier()
        self.stamp('p1 barB', fine=True)
        vR = vAd
        I(f'ds_read_b64 {vr(vR, 2)}, v{aRr}'); I(f'ds_read_b32 v{vMu}, v{vMu}')
        for i in range(4): I(f'v_cndmask_b32 v{vXR+8+i}, 0, v{vXR+8+i}, vcc')
        Vr = [vAcc + 4*((c >> 1)*2 + 0) + 2*(c & 1) for c in range(5)]
        Vi = [vAcc + 4*((c >> 1)*2 + 1) + 2*(c & 1) for c in range(5)]
        pool = [vX + 2*i for i in range(20)] + [vAf + 2*i for i in range(24)]
        zr = [Vr[0]] + [pool.pop(0) for _ in range(4)]; zi = [Vi[0]] + [pool.pop(0) for _ in range(4)]
        for c in range(1, 5):
            t1, t2, t3 = self.bc(vTW + c - 1), self.bc(vTW + 4 + c - 1), self.bc(vTW + 8 + c - 1)
            self.pk('mul', zr[c], Vr[c], t1[0], bsel=t1[1]); self.pk('mul', zi[c], Vi[c], t3[0], bsel=t3[1])
            self.pk('fma', zr[c], Vi[c], t2[0], zr[c], bsel=t2[1]); self.pk('fma', zi[c], Vr[c], t2[0], zi[c], bsel=t2[1], neg_b=True)
        u0, u1, u2, v1, v2 = self.dft5_half(zr, [pool.pop(0) for _ in range(9)])
        U0, U1, U2, V1, V2 = self.dft5_half(zi, [pool.pop(0) for _ in range(9)])
        mu = self.bc(vTW + 12)
        Xr = [pool.pop(0) for _ in range(5)]; Xi = [U0] + [pool.pop(0) for _ in range(4)]
        fm = lambda d, a, c, neg_c=False: self.pk('fma', d, a, mu[0], c, bsel=mu[1], neg_c=neg_c)
        comb = [lambda: self.pk('mul', Xr[0], u0, mu[0], bsel=mu[1]),
                lambda: (fm(Xr[1], V1, u1), fm(Xi[1], U1, v1, True)), lambda: (fm(Xr[2], V2, u2), fm(Xi[2], U2, v2, True)),
                lambda: (fm(Xr[3], u2, V2, True), fm(Xi[3], v2, U2)), lambda: (fm(Xr[4], u1, V1, True), fm(Xi[4], v1, U1))]
        for m5 in range(5):
            comb[m5]()
            self.pk('mul', Xr[m5], Xr[m5], vR); self.pk('mul', Xi[m5], Xi[m5], vR)
            d = vT + 2*m5
            I(f'v_cvt_pk_f16_f32 v{d}, v{Xr[m5]}, v{Xi[m5]}'); I(f'v_cvt_pk_f16_f32 v{d+1}, v{Xr[m5]+1}, v{Xi[m5]+1}')
            I(f'ds_write_b64 v{aExW}, {vr(d, 2)} offset:{m5*1024}')
        self.stamp('p1 valu', fine=True)
        self.barrier()
        vB = vX; vO = vX + 12; vP = vAf
        for sl in range(3): I(f'ds_read_b128 {vr(vB + 4*sl, 4)}, v{aExR} offset:{sl*1024}')
        rest = self.bgq; self.bgq = None
        for sl in range(3):
            for p in range(2):
                I(f'v_mfma_f32_16x16x32_f16 {vr(vO + 8*sl + 4*p, 4)}, {vr(vA2 + 4*p, 4)}, {vr(vB + 4*sl, 4)}, 0')
        for sl in range(3):
            if sl == 2:
                snap = self.cond_begin(); L = self.newlabel('Lp1')
                I(f's_cmp_eq_u32 {sRH}, 1'); I(f's_cbranch_scc1 {L}')
            for i in range(4):
                I(f'v_cvt_pk_f16_f32 v{vP + 4*sl + i}, v{vO + 8*sl + i}, v{vO + 8*sl + 4 + i}')
                I(f'buffer_store_dword v{vP + 4*sl + i}, v{aSt}, {WS}, {sP[2]} offen offset:{sl*128 + i*640} sc1')
            if sl == 2: self.cond_end(snap); self.label(L)
        self.stamp('p1 end')
        self.toks.pop(self.poC[-1][0])
        self.wait_vm0(True)
        I(f'buffer_store_dwordx2 {vr(vWr+8, 2)}, v211, {WS}, {sP[3]} offen sc1')
        for it in rest:
            for x in it: I(x)

    def frag_items(self, name, areg, sbase, stmp):
        return [([f's_add_u32 {stmp}, {sbase}, {TOFF[name] + f*1024}'] if f % 4 == 0 else []) +
                [f'buffer_load_dwordx4 {ar(areg + 4*f, 4)}, {vL16}, {TAB}, {stmp} offen offset:{(f & 3)*1024}'] for f in range(8)]
    def p3_table_items(self, t, s0, s1):
        L = self.frag_items('A3', aA3, s0, s1)
        L.append([f's_lshl_b32 {s1}, {sW}, 10', f's_add_u32 {s1}, {s1}, {TOFF["TW"]}', f'v_lshlrev_b32 v{t}, 6, {vN}'] +
                 [f'buffer_load_dwordx4 {vr(vTW3 + 4*f, 4)}, v{t}, {TAB}, {s1} offen offset:{16*f}' for f in range(4)])
        return L
    def dft32(self, inv, t):
        I = self.I
        I(f'v_and_b32 v{t}, 31, {vLane}'); I(f'v_lshrrev_b32 v{t+1}, 5, {vLane}')
        if inv: I(f'v_lshl_add_u32 v{t}, v{t}, 2, {sW}'); I(f'v_lshlrev_b32 v{t+1}, 2, v{t+1}')
        else: I(f'v_lshl_add_u32 v{t+1}, v{t+1}, 4, {sW}')
        I(f'v_cvt_f32_u32 v{t}, v{t}'); I(f'v_cvt_f32_u32 v{t+1}, v{t+1}'); I(f'v_mul_f32 v{t}, {f32(1/128.)}, v{t}'); I(f'v_mul_f32 v{t+1}, v{t}, v{t+1}')
        cv = 'v_cvt_pk_bf16_f32' if inv else 'v_cvt_pk_f16_f32'; base = aI2 if inv else aF2
        for i0 in range(0, 16, 2):
            for j in range(2):
                i = i0 + j; k = (8*(i >> 2) + (i & 3))*(1 if inv else 4); r = t + 2 + 3*j
                I(f'v_fmamk_f32 v{r}, v{t}, {f32(float(k))}, v{t+1}'); I(f'v_cos_f32 v{r+1}, v{r}'); I(f'v_sin_f32 v{r+2}, v{r}')
            for j in range(2):
                r = t + 2 + 3*j; s0, s1 = ('-', '') if inv else ('', '-')
                I(f'{cv} v{r}, v{r+1}, {s0}v{r+2}'); I(f'{cv} v{r+1}, {s1}v{r+2}, v{r+1}')
            for j in range(2):
                r = t + 2 + 3*j
                I(f'v_accvgpr_write_b32 a{base + i0 + j}, v{r}'); I(f'v_accvgpr_write_b32 a{base + 16 + i0 + j}, v{r+1}')
    def p3_consts(self):
        I = self.I; t = 196
        sc = 2/math.sqrt(640.0)/4/128
        I(f'v_lshrrev_b32 v{t+1}, 2, {vN}'); I(f'v_and_b32 v{t+2}, 1, {vN}'); I(f'v_lshl_add_u32 v{t+1}, v{t+1}, 1, v{t+2}')
        I(f's_lshl_b32 {sT[0]}, {sHH}, 10'); I(f's_add_u32 {sT[0]}, {sT[0]}, {sS1}')
        I(f'v_lshlrev_b32 v{t+1}, 7, v{t+1}'); I(f'v_add_u32 v{t+1}, {sT[0]}, v{t+1}'); I(f'v_cvt_f32_u32 v{t+1}, v{t+1}'); I(f'v_mul_f32 v{t+1}, {f32(-1/2048.)}, v{t+1}')
        I(f'v_bfe_u32 v{t+2}, {vN}, 1, 1'); I(f'v_cvt_f32_u32 v{t+2}, v{t+2}'); I(f'v_mul_f32 v{t+2}, {f32(0.25)}, v{t+2}')
        I(f'v_lshlrev_b32 v{t+3}, 2, {vG}'); I(f'v_cvt_f32_u32 v{t+3}, v{t+3}')
        for e in range(4):
            I(f'v_add_f32 v{t+4}, {f32(float(e))}, v{t+3}'); I(f'v_fma_f32 v{t+4}, v{t+4}, v{t+1}, v{t+2}')
            I(f'v_cos_f32 v{t+5}, v{t+4}'); I(f'v_sin_f32 v{t+6}, v{t+4}')
            I(f'v_mul_f32 v{t+5}, {f32(sc)}, v{t+5}'); I(f'v_mul_f32 v{t+6}, {f32(sc)}, v{t+6}')
            I(f'v_cvt_pk_bf16_f32 v{vA3+e}, v{t+5}, v{t+6}')

    def flag_off(self, base, idx, dst):
        self.I(f's_lshl_b32 {dst}, {idx}, 7'); self.I(f's_add_u32 {dst}, {dst}, {base}')
    def flag_store(self, soff, voff):
        I = self.I; self.inbg = True
        snap = self.cond_begin(); L = self.newlabel('Lsig')
        I(f's_cmp_lg_u32 {sW}, 0'); I(f's_cbranch_scc1 {L}')
        I(f'buffer_store_dwordx2 {vr(vWr+8, 2)}, v211, {WS}, {soff} offen sc1')
        self.cond_end(snap); self.label(L); self.inbg = False
    def flag_load(self, kind, soff, issue=True):
        I = self.I
        if kind == 'A':
            I(f's_and_b32 {soff}, {sTILE}, 1'); I(f's_lshl1_add_u32 {soff}, {sW}, {soff}'); I(f's_lshl_b32 {soff}, {soff}, 8'); I(f's_add_u32 {soff}, {soff}, {WS_FLA}')
            I(f's_and_b32 {sT[0]}, s89, 0x100'); I(f's_lshr_b32 {sT[0]}, {sT[0]}, 1'); I(f's_add_u32 {soff}, {soff}, {sT[0]}')
            I(f'v_lshrrev_b32 v7, 1, {vLane}'); I('v_lshlrev_b32 v254, 11, v7'); I(f'v_and_b32 v7, 1, {vLane}'); I('v_lshl_add_u32 v254, v7, 6, v254')
        if kind == 'B':
            self.cb5(soff); I(f's_lshr_b32 {soff}, {soff}, 1'); I(f'v_lshrrev_b32 v254, 1, {vLane}'); I(f'v_lshl_add_u32 v254, v254, 2, {soff}')
            for _ in range(2): I(f'v_subrev_u32 v7, 12, v254'); I(f'v_min_u32 v254, v254, v7')
            I(f'v_and_b32 v7, 1, {vLane}'); I(f'v_lshl_add_u32 v254, v254, 3, v7'); I(f'v_lshl_add_u32 v254, {sW}, 1, v254')
            I(f's_mul_i32 {soff}, {sG}, 6'); I(f's_sub_u32 {soff}, {soff}, 14'); I(f'v_add_u32 v7, {soff}, {vLane}')
            I(f'v_cmp_gt_u32 vcc, 14, {vLane}'); I(f'v_cndmask_b32 v254, v7, v254, vcc'); I(f'v_add_u32 v254, {512 + 160}, v254')
            I(f's_lshl1_add_u32 {soff}, {sS1}, {sHH}'); I(f's_xor_b32 {soff}, {soff}, 1'); I(f'v_and_b32 v7, 3, {vLane}'); I(f'v_lshl_add_u32 v7, {soff}, 2, v7')
            I(f'v_lshlrev_b32 v254, 1, v254'); I(f'v_cmp_gt_u32 vcc, 20, {vLane}'); I(f'v_cndmask_b32 v254, v7, v254, vcc'); I(f'v_lshlrev_b32 v254, 6, v254'); I(f's_mov_b32 {soff}, {WS_FLA}')
        if kind == 'H':
            I(f's_mul_i32 {soff}, {sW}, {24*128}'); I(f's_add_u32 {soff}, {soff}, {WS_FLB + 160*128}'); I(f'v_min_u32 v7, 23, {vLane}'); I('v_lshlrev_b32 v254, 7, v7')
        I(f's_mul_i32 {sT[0]}, {sX8}, {FREP}'); I(f's_add_u32 {soff}, {soff}, {sT[0]}')
        ld = f'buffer_load_dword v{vFl}, v254, {WS}, {soff} offen sc1'
        if issue: I(ld)
        return ld
    def retry(self, loads, test, inline=True):
        I = self.I; br = test[-1]; test = test[:-1]
        Lf = self.newlabel('Lfix'); Lb = self.newlabel('Lok')
        inv = {'s_cbranch_vccnz': 's_cbranch_vccz', 's_cbranch_scc1': 's_cbranch_scc0'}[br]
        body = [f'{Lf}:', f'    s_add_i32 {sCNT}, {sCNT}, -1', f'    s_cmp_lt_i32 {sCNT}, 0', f'    s_cbranch_scc1 {Lb}'] + ['    ' + x for x in loads]
        g = Gen(); g.I('s_waitcnt vmcnt(0)')
        for x in test: g.I(x)
        g.I(f'{br} {Lf}')
        body += g.out
        def first():
            for x in test: I(x)
        first.items = list(test)
        def second():
            if inline:
                I(f'{inv} {Lb}'); self.out += body
            else:
                I(f'{br} {Lf}'); self.tail += body + [f'    s_branch {Lb}']
            self.label(Lb)
        return first, second
    def flag_check(self, ld):
        a, b = self.retry([ld], [f'v_cmp_ne_u32 vcc, s62, v{vFl}', 's_cbranch_vccnz'])
        a(); b()
    def max_test(self, regs, t):
        regs = list(regs); L = []
        if len(regs) == 2: L.append(f'v_max_u32 v{t}, v{regs[0]}, v{regs[1]}')
        else:
            L.append(f'v_max3_u32 v{t}, v{regs[0]}, v{regs[1]}, v{regs[2]}'); regs = regs[3:]
            while regs:
                L.append(f'v_max3_u32 v{t}, v{t}, v{regs[0]}, v{regs[1]}' if len(regs) > 1 else f'v_max_u32 v{t}, v{t}, v{regs[0]}'); regs = regs[2:]
        return L + [f'v_cmp_eq_u32 vcc, -1, v{t}', 's_cbranch_vccnz']

    def w_addr(self, t):
        I = self.I
        I(f's_mul_i32 {sT[0]}, {sTILE}, 6554'); I(f's_lshr_b32 {sT[0]}, {sT[0]}, 16')
        I(f's_mul_i32 {sT[1]}, {sT[0]}, 10'); I(f's_sub_u32 {sT[1]}, {sTILE}, {sT[1]}')
        I(f's_lshr_b32 {sT[2]}, {sT[1]}, 1'); I(f's_and_b32 {sT[3]}, {sT[1]}, 1')
        I(f's_lshl_b32 {sT[4]}, {sT[2]}, 7'); I(f's_lshl_b32 {sT[5]}, {sT[3]}, 5'); I(f's_add_u32 {sT[4]}, {sT[4]}, {sT[5]}')
        I(f's_sub_u32 {sT[5]}, {640 - 31}, {sT[4]}')
        I(f's_cmp_lt_u32 {sT[2]}, 3'); I(f's_cselect_b32 {sT[4]}, {sT[4]}, {sT[5]}'); I(f's_cselect_b32 {sT[5]}, 1, -1')
        I(f's_lshl_b32 {sT[4]}, {sT[4]}, 1')
        I(f's_lshl_b32 {sT[6]}, {sT[2]}, 2'); I(f's_lshr_b32 {sT[6]}, 0x31425, {sT[6]}'); I(f's_and_b32 {sT[6]}, {sT[6]}, 15'); I(f's_lshl_b32 {sT[6]}, {sT[6]}, 7')
        I(f's_mul_i32 {sT[7]}, {sT[0]}, {sT[5]}'); I(f's_lshl_b32 {sT[7]}, {sT[7]}, 1'); I(f's_add_u32 {sT[7]}, {sT[7]}, {sT[4]}'); I(f's_and_b32 s89, {sT[7]}, 15')
        I(f's_sub_u32 {sT[4]}, {sT[4]}, s89')
        I(f's_and_b32 {sT[7]}, {sT[5]}, 0x100'); I(f's_or_b32 s89, s89, {sT[7]}')
        I(f's_lshl_b32 {sT[7]}, {sT[0]}, 1'); I(f's_and_b32 {sT[7]}, {sT[7]}, 15'); I(f's_sub_u32 {sT[6]}, {sT[6]}, {sT[7]}')
        I(f's_lshl_b32 {sT[7]}, {sT[7]}, 16'); I(f's_or_b32 s89, s89, {sT[7]}')
        I(f's_xor_b32 {sT[7]}, {sT[3]}, 1'); I(f's_lshl_b32 {sT[7]}, {sT[7]}, 24'); I(f's_or_b32 s89, s89, {sT[7]}')
        I(f's_lshl_b32 {sT[3]}, {sT[3]}, 30'); I(f's_add_u32 {sT[6]}, {sT[6]}, {sT[3]}')
        I(f's_lshl_b32 {sT[7]}, {sW}, 7'); I(f's_add_u32 {sT[0]}, {sT[0]}, {sT[7]}')
        I(f's_movk_i32 {sT[1]}, 10923'); I(f's_movk_i32 {sT[2]}, 642');
        I(f'v_mov_b32 v{t+4}, {sT[5]}'); I(f'v_mov_b32 v{t+5}, {sT[6]}')
        for pt in range(3):
            I(f'v_add_u32 v{t}, {64*pt}, {vLane}'); I(f'v_mul_u32_u24 v{t+1}, {sT[1]}, v{t}'); I(f'v_lshrrev_b32 v{t+1}, 16, v{t+1}')
            I(f'v_mul_u32_u24 v{t+2}, 6, v{t+1}'); I(f'v_sub_u32 v{t}, v{t}, v{t+2}')
            I(f'v_lshrrev_b32 v{t+2}, 3, v{t+1}'); I(f'v_mul_u32_u24 v{t+2}, 24, v{t+2}'); I(f'v_add_u32 v{t+1}, v{t+1}, v{t+2}')
            I(f'v_lshl_add_u32 v{t+1}, v{t+1}, 4, {sT[0]}')
            I(f'v_cmp_eq_u32 vcc, 5, v{t}'); I(f'v_lshl_add_u32 v{t}, v{t}, 4, {sT[4]}')
            I(f'v_cndmask_b32 v{t+2}, v{t+4}, 1, vcc'); I(f'v_cndmask_b32 v{t}, v{t}, v{t+5}, vcc')
            I(f'v_mul_i32_i24 v{t+1}, v{t+1}, v{t+2}'); I(f'v_and_b32 v{t+1}, 0x7ff, v{t+1}'); I(f'v_mad_u32_u24 v{vWA+pt}, v{t+1}, {sT[2]}, v{t}')
        self.lastW = f'buffer_load_dwordx4 v{vWA+2}, {WI}, 0 offen lds'
        return [[f's_add_u32 m0, s86, {L_W + a*3072 + pt*1024}', f'buffer_load_dwordx4 v{vWA+pt}, {(WR, WI)[a]}, 0 offen lds'] for pt in range(3) for a in range(2)]
    def w_regs(self, t):
        I = self.I
        I(f's_and_b32 {sT[0]}, s89, 15'); I(f's_bfe_u32 {sT[1]}, s89, 0x10008'); I(f's_bfe_u32 {sT[2]}, s89, 0x40010'); I(f's_lshr_b32 {sT[3]}, s89, 24')
        I(f'v_and_b32 v{t}, 31, {vLane}'); I(f's_mul_i32 {sT[4]}, {sT[1]}, 31'); I(f'v_xor_b32 v{t+1}, {sT[4]}, v{t}')
        I(f'v_lshl_add_u32 v{t+1}, v{t+1}, 1, {sT[0]}')
        I(f's_add_u32 {sT[2]}, {sT[2]}, 80'); I(f'v_mov_b32 v{t+2}, {sT[2]}'); I(f's_lshl_b32 {sT[1]}, {sT[1]}, 31'); I(f'v_mov_b32 v{t+3}, {sT[1]}')
        I(f'v_cmp_gt_u32 vcc, {sT[3]}, v{t}')
        I(f'v_cndmask_b32 v{t+1}, v{t+1}, v{t+2}, vcc'); I(f'v_cndmask_b32 v{t+3}, v{t+3}, 0, vcc')
        I(f's_mul_i32 {sT[4]}, {sW}, 7168'); I(f's_add_u32 {sT[4]}, {sT[4]}, {L_W}')
        I(f'v_lshrrev_b32 v{t}, 5, {vLane}'); I(f'v_mul_u32_u24 v{t}, 384, v{t}'); I(f'v_add3_u32 v{t+1}, v{t+1}, v{t}, {sT[4]}')
        if self.opt.get('wlate', 0):
            for i in range(32): I(f'v_mov_b32 v{vWr + i}, 0')
            I(f'v_or_b32 v{t+2}, 1.0, v{t+3}')
            self.wrd = [f'ds_read_u16_d16_hi v{base + i}, v{t+1} offset:{arr*3072 + ((i >> 2)*8 + (i & 3))*96}' for arr, base in ((1, vWi), (0, vWr)) for i in range(16)]
            return
        self.wait_tok(self.toks[self.lastW])
        for arr, base in ((0, vWr), (1, vWi)):
            for half in range(2):
                for i in range(8*half, 8*half + 8): I(f'ds_read_u16 v{base + i}, v{t+1} offset:{arr*3072 + ((i >> 2)*8 + (i & 3))*96}')
            for i in range(16):
                I(f'v_lshl_add_u32 v{base + i}, v{base + i}, 16, v{t+3}' if arr else f'v_lshlrev_b32 v{base + i}, 16, v{base + i}')

    def p2(self):
        I = self.I
        vB = VW + 32; vGa = VW + 48; vE = VW + 80; vZ = VW + 112; vH = VW + 144; vAd = VW + 8
        I(f'v_lshrrev_b32 v{vAd}, 5, {vLane}'); I(f'v_mul_u32_u24 v{vAd}, {32*TS}, v{vAd}'); I(f'v_and_b32 v{vAd+1}, 31, {vLane}'); I(f'v_lshl_add_u32 v{vAd}, v{vAd+1}, 2, v{vAd}')
        I(f'v_add_u32 v{vAd+4}, {O_T2}, v{vAd}')
        I(f's_lshr_b32 {sT[2]}, {sTILE}, 1'); I(f's_lshl_b32 {sT[2]}, {sT[2]}, 7'); I(f's_and_b32 {sT[3]}, {sTILE}, 1'); I(f's_lshl1_add_u32 {sT[3]}, {sW}, {sT[3]}')
        I(f's_mul_i32 {sT[3]}, {sT[3]}, {TS}'); I(f's_add_u32 {sP[0]}, {sT[2]}, {sT[3]}')
        for i in range(1, 16): I(f's_add_u32 {sP[i]}, {sP[0]}, {(32*(i >> 2) + 4*(i & 3))*2*TS}')
        self.run(self.sel(self.opt.get('x1_bulk', 'aW')))
        self.p3_consts()
        if self.opt.get('wlate', 0) and self.opt.get('wr_early', 1): self.w_regs(VW)
        self.stamp('p2 pre', fine=True)
        I(self.ldA)
        if self.opt.get('f2_at', 0) == 1: self.dft32(False, vZ)
        if self.opt.get('i2_at', 1) == 1: self.dft32(True, vZ)
        self.flag_check(self.ldA)
        self.stamp('flagA')
        lds = [f'buffer_load_dword v{vB + i}, v{vAd}, {WS}, {sP[i]} offen sc1' for i in range(16)]
        for x in lds: I(x)
        I(f's_lshl_b32 {sT[3]}, {sW}, 13'); I(f's_add_u32 {sT[3]}, {sT[3]}, {L_G}'); I(f'v_add_u32 v{vAd+1}, {sT[3]}, {vL16}')
        I(f's_lshl_b32 {sT[3]}, {sW}, 10'); I(f's_add_u32 {sT[3]}, {sT[3]}, {L_G}'); I(f'v_add_u32 v{vAd+2}, {sT[3]}, {vL16}')
        I(f's_lshl_b32 {sT[3]}, {sW}, 12'); I(f's_add_u32 {sT[3]}, {sT[3]}, {L_H}'); I(f'v_add_u32 v{vAd+3}, {sT[3]}, {vL16}')
        if not (self.opt.get('wlate', 0) and self.opt.get('wr_early', 1)): self.w_regs(VW)
        self.ldB = self.flag_load('B', sP[18], False)
        if self.opt.get('i2_at', 1) == 2: self.dft32(True, vZ)
        I('s_barrier')
        self.stamp('p2 T', wait=vB + 15)
        self.sprinkle(self.sel(self.opt.get('p2_bulk', 'A012')), self.opt.get('p2_per1', 1))
        for tt in range(4):
            for p in range(2):
                d = vr(vGa + 16*p, 16)
                I(f'v_mfma_f32_32x32x16_f16 {d}, {ar(aF2 + 4*(p*4 + tt), 4)}, {vr(vB + 4*tt, 4)}, {"0" if tt == 0 else d}')
        self.bgper = 0
        for p in range(2):
            for gq in range(4): I(f'ds_write_b128 v{vAd+1}, {vr(vGa + 16*p + 4*gq, 4)} offset:{(p*4 + gq)*1024}')
        self.bg(self.opt.get('p2_n1', 4))
        if self.opt.get('wlate', 0) == 1:
            self.wait_tok(self.toks[self.lastW])
            for x in self.wrd: I(x)
        self.barrier()
        self.stamp('p2 bar1', fine=True)
        for c in (0, 2, 1, 3):
            for p in range(2): I(f'ds_read_b128 {vr(vE + 8*c + 4*p, 4)}, v{vAd+2} offset:{c*8192 + p*4096}')
        self.bgper = self.opt.get('p2_per2', 12)
        def bfly(src, dst, tmp, inv, after=None):
            s = lambda c, p, h: src + 8*c + 4*p + 2*h
            d = lambda m, p, h: dst + 8*m + 4*p + 2*h
            t_ = lambda i, p, h: tmp + 8*i + 4*p + 2*h
            for c in range(2):
                for p in range(2):
                    for h in range(2):
                        self.pk('add', t_(2*c, p, h), s(c, p, h), s(c + 2, p, h)); self.pk('add', t_(2*c + 1, p, h), s(c, p, h), s(c + 2, p, h), neg_b=True)
            a, b = (3, 1) if inv else (1, 3)
            for m in (0, 2, a, b):
                for h in range(2):
                    if m in (0, 2):
                        for p in range(2): self.pk('add', d(m, p, h), t_(0, p, h), t_(2, p, h), neg_b=(m == 2))
                    else:
                        self.pk('add', d(m, 0, h), t_(1, 0, h), t_(3, 1, h), neg_b=(m == b)); self.pk('add', d(m, 1, h), t_(1, 1, h), t_(3, 0, h), neg_b=(m == a))
                if after: after(m)
        if self.opt.get('wlate', 0) == 2:
            self.wait_lg0(); self.wait_tok(self.toks[self.lastW])
            q, per = self.bgq, self.bgper; self.bgq = None
            self.sprinkle([[x] for x in self.wrd], 1)
        bfly(vE, vZ, vGa, False)
        if self.opt.get('wlate', 0) == 2: self.bg(); self.bgq, self.bgper = q, per
        if self.opt.get('wlate', 0):
            for i in range(8): self.pk('mul', vWi + 2*i, vWi + 2*i, VW + 2, bsel=0)
        for m in range(4):
            for h in range(2):
                zr, zi = vZ + 8*m + 2*h, vZ + 8*m + 4 + 2*h; wr, wi = vWr + 4*m + 2*h, vWi + 4*m + 2*h
                dr, di = vE + 8*m + 2*h, vE + 8*m + 4 + 2*h
                self.pk('mul', dr, zr, wr); self.pk('mul', di, zi, wr)
                self.pk('fma', dr, zi, wi, dr, neg_b=True); self.pk('fma', di, zr, wi, di)
        def outH(c):
            for e in range(4): I(f'v_cvt_pk_bf16_f32 v{vH + 4*c + e}, v{vZ + 8*c + e}, v{vZ + 8*c + 4 + e}')
            I(f'ds_write_b128 v{vAd+2}, {vr(vH + 4*c, 4)} offset:{L_H - L_G + c*4096}')
        bfly(vE, vZ, vGa, True, outH)
        self.barrier()
        self.stamp('p2 bar2', fine=True)
        for tt in range(4): I(f'ds_read_b128 {vr(vB + 4*tt, 4)}, v{vAd+3} offset:{tt*1024}')
        I(self.ldB)
        self.bgper = 1
        for tt in range(4):
            for p in range(2):
                d = vr(vGa + 16*p, 16)
                I(f'v_mfma_f32_32x32x16_bf16 {d}, {ar(aI2 + 4*(p*4 + tt), 4)}, {vr(vB + 4*tt, 4)}, {"0" if tt == 0 else d}')
        print('p2 bulk left:', len(self.bgq)); self.bgper = 0
        for i in range(16):
            I(f'v_cvt_pk_bf16_f32 v{vH + i}, v{vGa + i}, v{vGa + 16 + i}')
            I(f'buffer_store_dword v{vH + i}, v{vAd+4}, {WS}, {sP[i]} offen sc1')
        self.stamp('p2 end', fine=True)
        self.flag_check(self.ldB)
        self.bg()
        self.run(self.sel(self.opt.get('x2_bulk', '34')))

    def repack_unit(self):
        I = self.I
        I(f's_mul_i32 {sT[2]}, {sW}, 12'); I(f's_add_u32 {sT[2]}, {sT[2]}, {sY}'); I(f's_sub_u32 {sT[2]}, {sT[2]}, 20')
        I(f's_mul_i32 {sT[3]}, {sX8}, 28'); I(f's_cmp_lt_u32 {sT[2]}, 28'); I(f's_cselect_b32 {sT[3]}, {sT[3]}, 224'); I(f's_add_u32 {sT[2]}, {sT[2]}, {sT[3]}')
        I(f's_lshr_b32 {sT[3]}, {sT[2]}, 2'); I(f's_and_b32 {sT[4]}, {sT[2]}, 3')
        I(f's_mul_i32 {sT[6]}, {sW}, 10240'); I(f's_add_u32 {sT[6]}, {sT[6]}, {L_RP}')
    def repack_addr(self, t):
        I = self.I
        self.repack_unit()
        I(f's_mul_i32 {sP[8]}, {sT[3]}, 40960'); I(f's_mul_i32 {sT[0]}, {sT[4]}, 320'); I(f's_add_u32 {sP[8]}, {sP[8]}, {sT[0]}')
        I(f's_add_u32 {sP[9]}, {sP[8]}, {16*1280}'); I(f's_movk_i32 {sT[0]}, 3277'); I(f's_mov_b32 {sP[11]}, {sT[6]}')
        for pt in range(5):
            I(f'v_add_u32 v{t}, {64*pt}, {vLane}'); I(f'v_mul_u32_u24 v{t+1}, {sT[0]}, v{t}'); I(f'v_lshrrev_b32 v{t+1}, 16, v{t+1}')
            I(f'v_mul_u32_u24 v{t+1}, {1280 - 320}, v{t+1}'); I(f'v_lshl_add_u32 v{vWA+pt}, v{t}, 4, v{t+1}')
        L = [[f's_add_u32 m0, {sP[11]}, {h*5120 + pt*1024}', f'buffer_load_dwordx4 v{vWA+pt}, {W2}, {sP[8+h]} offen lds'] for pt in range(5) for h in range(2)]
        self.lastR = L[-1][-1]
        return L
    def repack(self):
        I = self.I; t = VW + 10; vF = VW + 16
        self.repack_unit()
        snap = self.cond_begin(); L = self.newlabel('Lrp')
        I(f's_cmp_ge_u32 {sT[2]}, 224'); I(f's_cbranch_scc1 {L}')
        I(f's_mul_i32 {sT[0]}, {sT[3]}, 9363'); I(f's_lshr_b32 {sT[0]}, {sT[0]}, 16'); I(f's_mul_i32 {sT[0]}, {sT[0]}, 7'); I(f's_sub_u32 {sT[0]}, {sT[3]}, {sT[0]}')
        I(f's_cmp_eq_u32 {sT[0]}, 3'); I(f's_cselect_b32 {sT[0]}, {4*320}, 0'); I(f's_mul_i32 {sT[1]}, {sT[0]}, 3'); I(f's_sub_u32 {sT[1]}, {16*320}, {sT[1]}')
        I(f'v_lshrrev_b32 v{t}, 2, {vLane}'); I(f'v_mul_u32_u24 v{t}, 320, v{t}'); I(f'v_and_b32 v{t+1}, 3, {vLane}'); I(f'v_mul_u32_u24 v{t+1}, 40, v{t+1}')
        I(f'v_add3_u32 v{t}, v{t}, v{t+1}, {sT[6]}'); I(f'v_mad_u32_u24 v{t}, {vG}, {sT[0]}, v{t}'); I(f'v_add_u32 v{t+1}, {sT[1]}, v{t}')
        rk = sum(KORD.index(k) << (4*k) for k in range(14))
        I(f's_mul_i32 {sT[0]}, {sT[3]}, 4682'); I(f's_lshr_b32 {sT[0]}, {sT[0]}, 16'); I(f's_mul_i32 {sT[0]}, {sT[0]}, 14'); I(f's_sub_u32 {sT[1]}, {sT[3]}, {sT[0]}')
        I(f's_lshl_b32 {sT[1]}, {sT[1]}, 2'); I(f's_mov_b32 s58, {rk & 0xffffffff}'); I(f's_mov_b32 s59, {rk >> 32}'); I(f's_lshr_b64 {sPAIR}, {sPAIR}, {sT[1]}')
        I(f's_and_b32 s58, s58, 15'); I(f's_add_u32 {sT[3]}, {sT[0]}, s58')
        self.wait_tok(self.toks[self.lastR])
        I(f's_mul_i32 {sT[5]}, {sT[4]}, {2*286720}'); I(f's_mul_i32 {sT[6]}, {sT[3]}, 5120'); I(f's_add_u32 {sT[5]}, {sT[5]}, {sT[6]}'); I(f's_add_u32 {sT[5]}, {sT[5]}, {WS_W2}')
        for cb in range(2):
            for nt in range(5):
                for hf in range(2): I(f'ds_read_b64_tr_b16 {vr(vF + 4*(cb*5 + nt) + 2*hf, 2)}, v{t+hf} offset:{cb*160 + nt*8}')
        for cb in range(2):
            for nt in range(5):
                if nt in (0, 4): I(f's_add_u32 {sT[6]}, {sT[5]}, {cb*286720 + nt*1024}')
                I(f'buffer_store_dwordx4 {vr(vF + 4*(cb*5 + nt), 4)}, {vL16}, {WS}, {sT[6]} offen offset:{(nt & 3)*1024} sc1')
        self.cond_end(snap); self.label(L)
    def epoch(self):
        I = self.I
        snap = self.cond_begin(); L = self.newlabel('Lep')
        I(f's_lshl2_add_u32 {sT[0]}, s2, {sW}'); I(f's_cmp_lg_u32 {sT[0]}, 3'); I(f's_cbranch_scc1 {L}')
        I(f's_mov_b32 {sT[0]}, {WS_EP}'); I('s_mov_b64 exec, 1')
        I(f'buffer_store_dword {vTag}, off, {WS}, {sT[0]} sc1'); I('s_mov_b64 exec, -1')
        self.cond_end(snap); self.label(L)
    def h1_vaddr(self, a):
        I = self.I
        I(f'v_and_b32 v{a}, 1, {vG}'); I(f'v_mul_u32_u24 v{a}, 57344, v{a}'); I(f'v_lshrrev_b32 v7, 1, {vG}')
        I(f'v_lshl_add_u32 v{a}, v7, 8, v{a}'); I(f'v_lshl_add_u32 v{a}, {vN}, 4, v{a}')
    def h1_addr(self, a):
        I = self.I
        I(f's_mul_i32 {sT[2]}, {sG}, 458752'); I(f's_mul_i32 {sT[3]}, {sW}, 114688'); I(f's_add_u32 {sT[2]}, {sT[2]}, {sT[3]}')
        I(f's_lshr_b32 {sT[3]}, {sM}, 1'); I(f's_mul_i32 {sT[3]}, {sT[3]}, 7168'); I(f's_add_u32 {sT[2]}, {sT[2]}, {sT[3]}'); I(f's_add_u32 {sT[2]}, {sT[2]}, {WS_H1}')
        I(f's_lshl_b32 {sT[3]}, {sHH}, 12'); I(f's_add_u32 {sH1[0]}, {sT[3]}, {sT[2]}'); I(f's_add_u32 {sH1[1]}, {sH1[0]}, 57344')
        I(f's_lshl_b32 {sT[3]}, {sHH}, 9'); I(f's_add_u32 {sH1[2]}, {sT[3]}, {sT[2]}')
        self.h1_vaddr(a)
    def h1_store(self, reg, pr, mt, a):
        if pr == 3: return f'buffer_store_dwordx4 {vr(reg, 4)}, v{a}, {WS}, {sH1[2]} offen offset:3072 sc1'
        return f'buffer_store_dwordx4 {vr(reg, 4)}, {vL16}, {WS}, {sH1[mt]} offen offset:{pr*1024} sc1'
    def h1_poison(self, a):
        return [[self.h1_store(vPo, pr, mt, a)] for pr in range(3) for mt in range(2)] + [[self.h1_store(vPo, 3, 0, a)]]
    def w2_base(self):
        I = self.I
        self.cb5(sT[0]); I(f's_mul_i32 {sW2B}, {sT[0]}, 286720'); I(f's_mul_i32 {sT[0]}, {sW}, 71680'); I(f's_add_u32 {sW2B}, {sW2B}, {sT[0]}'); I(f's_add_u32 {sW2B}, {sW2B}, {WS_W2 + (0x4000000 if self.opt.get("no_w2") else 0)}')
    def cb5(self, d):
        I = self.I
        if self.opt.get('split2', 4) == 1: I(f's_and_b32 {d}, s2, 1'); I(f's_and_b32 {sT[1]}, {sY}, 3'); I(f's_lshl2_add_u32 {d}, {d}, {sT[1]}')
        else: I(f's_and_b32 {d}, {sM}, 7')
    def tile0(self, d):
        I = self.I
        if self.opt.get('split2', 4) == 1: I(f's_and_b32 {d}, {sY}, 4')
        else: I(f's_lshr_b32 {d}, {sM}, 1'); I(f's_and_b32 {d}, {d}, 4')
        I(f's_lshl3_add_u32 {d}, {sG}, {d}')
    def w1_touch(self):
        I = self.I; four = self.opt.get('split2', 4) == 4
        nl, nr, sh = (7, 8, 4) if four else (14, 4, 5)
        I(f'v_and_b32 v7, {64//nr - 1}, {vLane}'); I(f'v_min_u32 v7, {nl - 1}, v7'); I(f'v_lshrrev_b32 v{vWr}, {7 - sh}, {vLane}' if four else f'v_mov_b32 v{vWr}, {vG}')
        I(f'v_mul_u32_u24 v{vWr}, {5*3456}, v{vWr}'); I(f'v_lshl_add_u32 v{vWr}, v7, 7, v{vWr}')
        I(f's_lshl2_add_u32 {sT[0]}, {sY}, {sW}'); I(f's_and_b32 {sT[3]}, s2, {3 if four else 1}'); I(f's_mul_i32 {sT[3]}, {sT[3]}, {nl*128}')
        for r in range(2 if four else 4):
            I(f's_add_u32 {sT[1]}, {sT[0]}, {48*r - 80}'); I(f's_and_b32 {sT[2]}, {sT[1]}, {(1 << sh) - 1}'); I(f's_lshr_b32 {sT[1]}, {sT[1]}, {sh}')
            I(f's_cmp_gt_u32 {sT[1]}, 4'); I(f's_cselect_b32 {sT[1]}, 640, {sT[1]}')
            I(f's_mul_i32 {sT[2]}, {sT[2]}, {5*nr}'); I(f's_add_u32 {sT[1]}, {sT[1]}, {sT[2]}'); I(f's_mul_i32 {sT[1]}, {sT[1]}, 3456'); I(f's_add_u32 {sT[1]}, {sT[1]}, {sT[3]}')
            I(f'buffer_load_dword v{vWr + 1 + r}, v{vWr}, {W1}, {sT[1]} offen')
    def w2_touch(self):
        I = self.I
        I(f's_lshl2_add_u32 {sT[0]}, {sY}, {sW}'); I(f's_sub_u32 {sT[0]}, {sT[0]}, 80'); I(f's_and_b32 {sT[1]}, {sT[0]}, 15'); I(f's_lshr_b32 {sT[0]}, {sT[0]}, 4')
        I(f's_and_b32 {sT[2]}, s2, 1'); I(f's_lshl4_add_u32 {sT[1]}, {sT[2]}, {sT[1]}'); I(f's_mul_i32 {sT[1]}, {sT[1]}, 71680'); I(f's_lshl_b32 {sT[0]}, {sT[0]}, 13')
        I(f's_add_u32 {sT[0]}, {sT[0]}, {sT[1]}'); I(f'v_lshlrev_b32 v{vWA}, 7, {vLane}')
        for r in range(3):
            I(f's_add_u32 {sT[1]}, {sT[0]}, {WS_W2 + r*3*8192 + (0x4000000 if self.opt.get("no_w2") else 0)}')
            I(f'buffer_load_dword v{vWA + 1 + r}, v{vWA}, {WS}, {sT[1]} offen sc1')
    def run(self, items):
        for it in items:
            for x in it: self.I(x)
    def helper(self):
        I = self.I
        self.run(self.sel(self.opt.get('H_x1', 'aR')))
        self.p3_consts()
        if self.opt.get('h_sync'):
            I(f's_mov_b32 {sTILE}, {sY}'); I('s_mov_b32 s89, 0')
            for _ in range(self.opt['h_sync']): self.flag_check(self.flag_load('A', sP[18]))
        self.run(self.sel(self.opt.get('H_x2', '')))
        if self.opt.get('w1t', 0) == 1: self.w1_touch()
        self.stamp('flagA')
        self.repack()
        I(f's_sub_u32 {sT[0]}, s2, 160'); I(f's_mul_i32 {sT[4]}, {sT[0]}, 10923'); I(f's_lshr_b32 {sT[4]}, {sT[4]}, 16'); I(f's_mul_i32 {sT[1]}, {sT[4]}, 6'); I(f's_sub_u32 {sT[0]}, {sT[0]}, {sT[1]}')
        I(f's_lshl2_add_u32 {sT[0]}, {sT[0]}, {sW}'); I(f's_mul_i32 {sT[4]}, {sT[4]}, {16*TS}'); I(f's_add_u32 {sT[4]}, {sT[4]}, {O_LN}')
        for r in range(7):
            I(f's_add_u32 {sT[1]}, {sT[0]}, {24*r}'); I(f's_mul_i32 {sT[2]}, {sT[1]}, 6554'); I(f's_lshr_b32 {sT[2]}, {sT[2]}, 16')
            I(f's_mul_i32 {sT[2]}, {sT[2]}, {TS - 10240}'); I(f's_lshl_b32 {sT[3]}, {sT[1]}, 10'); I(f's_add_u32 {sT[2]}, {sT[2]}, {sT[3]}'); I(f's_add_u32 {sT[2]}, {sT[2]}, {sT[4]}')
            if r == 6: I(f's_cmp_lt_u32 {sT[1]}, 160'); I(f's_cselect_b32 {sT[2]}, {sT[2]}, {WS_SIZE}')
            I(f'buffer_store_dwordx4 {vr(vPo, 4)}, {vL16}, {WS}, {sT[2]} offen sc1')
        tok = self.vm[-1][0]
        if self.opt.get('w1t', 0) == 2: self.w1_touch()
        self.flag_off(WS_FLB, 's2', sP[0])
        self.wait_tok(tok); self.barrier()
        self.flag_store(sP[0], VW)
        self.stamp('p2 bar1', fine=True)
        self.run(self.w1_items([c for c in range(5) if c not in [int(c) for c in self.opt.get('H_x1', 'aR') + self.opt.get('H_x2', '') if c.isdigit()]]))
        if self.opt.get('w2touch', 0):
            self.flag_check(self.flag_load('H', sP[18])); I('s_barrier')
            self.stamp('p2 bar2', fine=True)
            self.w2_touch()
        if 'A' not in self.opt.get('H_p1', '') + self.opt.get('H_x1', ''): self.run(self.sel('A'))
        self.flag_check(self.flag_load('B', sP[18]))

    def p3_pre(self):
        I = self.I; vAd = VW
        I(f'v_mov_b32 v{vAd+8}, 0'); I(f'v_mov_b32 v{vAd+9}, 0'); I(f'v_mov_b32 v{vAd+10}, 0'); I(f'v_mov_b32 v{vAd+11}, 0')
        I(f'v_min_u32 v{vAd+7}, 143, v0'); I(f'v_lshlrev_b32 v{vAd+7}, 4, v{vAd+7}'); I(f'v_add_u32 v{vAd+7}, {L_V + 40*288}, v{vAd+7}')
        I(f'v_mul_u32_u24 v{vAd}, 2560, {vG}'); I(f'v_lshl_add_u32 v{vAd}, {vN}, 2, v{vAd}')
        I(f's_lshr_b32 {sT[2]}, {sW}, 1'); I(f's_lshl1_add_u32 {sT[2]}, {sS1}, {sT[2]}'); I(f's_mul_i32 {sT[2]}, {sT[2]}, {TS}')
        I(f's_and_b32 {sT[3]}, {sW}, 1'); I(f's_lshl_b32 {sT[3]}, {sT[3]}, 6'); I(f's_add_u32 {sP[0]}, {sT[2]}, {sT[3]}'); I(f's_add_u32 {sP[0]}, {sP[0]}, {O_T2}')
        self.w2_base()
        self.barrier()
        I(f'ds_write_b128 v{vAd+7}, {vr(vAd+8, 4)}')
    def p3_pre2(self):
        I = self.I; vAd = VW
        I(f'v_mul_u32_u24 v{vAd+1}, 576, {vG}'); I(f'v_lshl_add_u32 v{vAd+1}, {vN}, 2, v{vAd+1}')
        I(f's_lshl_b32 {sT[4]}, {sW}, 6'); I(f's_add_u32 {sT[4]}, {sT[4]}, {L_V}'); I(f'v_add_u32 v{vAd+1}, {sT[4]}, v{vAd+1}')
        I(f'v_mul_u32_u24 v{vAd+2}, 288, {vN}'); I(f'v_lshl_add_u32 v{vAd+2}, {vG}, 4, v{vAd+2}'); I(f'v_add_u32 v{vAd+2}, {L_V}, v{vAd+2}')
        I(f'v_and_b32 v{vAd+4}, 7, {vN}'); I(f'v_lshlrev_b32 v{vAd+4}, 5, v{vAd+4}'); I(f'v_add_u32 v{vAd+4}, {L_ST}, v{vAd+4}')
        I(f's_lshl_b32 {sT[4]}, {sW}, 3'); I(f'v_add_u32 v{vAd+3}, {sT[4]}, v{vAd+4}')
        I(f'v_and_b32 v{vAd+5}, 7, {vN}'); I(f'v_lshlrev_b32 v{vAd+5}, 4, v{vAd+5}'); I(f'v_lshl_add_u32 v{vAd+5}, {vG}, 7, v{vAd+5}')
        I(f'v_lshrrev_b32 v{vAd+7}, 3, {vN}'); I(f'v_lshl_add_u32 v{vAd+6}, v{vAd+7}, 30, v{vAd+5}')
        I(f's_mov_b32 {sT[4]}, {TS}'); I(f'v_mad_u32_u24 v227, v{vAd+7}, {sT[4]}, v{vAd+5}'); I(f'v_add_u32 v228, {2*TS}, v227')
        I(f'v_lshl_add_u32 v{vAd+5}, v{vAd+7}, 11, v{vAd+5}')
        I(f's_lshl_b32 {sT[5]}, {sW}, 9'); I(f's_add_u32 {sT[4]}, {sBLK}, {sT[5]}')
        for tau in range(3): I(f's_add_u32 {sP[1+tau]}, {sT[4]}, {O_LN + tau*4096}')
        vXf = VW + 12
        for i in range(12):
            I(f'v_lshlrev_b32 v{vXf + 2*i}, 16, v{vXR + i}'); I(f'v_and_b32 v{vXf + 2*i + 1}, 0xffff0000, v{vXR + i}')
        I(f'v_mov_b32 v{vAd+7}, 0x3f803f80')
        I(f'v_cvt_pk_bf16_f32 v{vMu}, -v{vMu}, -v{vMu}'); I(f'v_lshlrev_b32 v{vMu}, 16, v{vMu}')
    def p3_pre3(self):
        I = self.I
        I(f'v_lshrrev_b32 v224, 2, {vLane}'); I(f'v_mul_u32_u24 v224, 224, v224'); I(f'v_and_b32 v225, 3, {vLane}'); I(f'v_lshl_add_u32 v224, v225, 3, v224')
        I(f's_xor_b32 {sT[2]}, {sHH}, 1'); I(f's_mul_i32 {sT[2]}, {sT[2]}, 192'); I(f'v_add_u32 v252, {sT[2]}, v224')
        I(f's_lshl_b32 {sT[2]}, {sHH}, 5'); I(f'v_add_u32 v224, {sT[2]}, v224')
        for i in (1, 2): I(f'v_add_u32 v{224+i}, {i*57344}, v224'); I(f'v_add_u32 v{252+i}, {i*57344}, v252')
        I(f's_lshl2_add_u32 {sT[2]}, {sG}, {sW}'); I(f's_mul_i32 {sT[2]}, {sT[2]}, {4*TS}')
        for i in range(3): I(f's_add_u32 {sP[4+i]}, {sT[2]}, {O_LN + i*4096 + (0x4000000 if self.opt.get("no_ln") and i < 2 else 0)}')
        self.h1_addr(229)
        self.p5_offsets((1, 2, 3))
    def p5_offsets(self, mus):
        I = self.I
        self.tile0(sT[5]); I(f's_mul_i32 {sT[3]}, {sW}, 14336')
        for mu in mus:
            I(f's_add_u32 {sT[2]}, {sW}, {mu}'); I(f's_and_b32 {sT[2]}, {sT[2]}, 3'); I(f's_add_u32 {sT[2]}, {sT[2]}, {sT[5]}'); I(f's_mul_i32 {sT[2]}, {sT[2]}, 57344'); I(f's_add_u32 {sT[2]}, {sT[2]}, {sT[3]}')
            for q in range(4): I(f's_add_u32 {self.sH(mu, q)}, {sT[2]}, {WS_H1 + q*4096 + (0x4000000 if self.opt.get("no_h1") else 0)}')
    def sH(self, mu, q): return sP[4 + 4*mu + q] if mu else sP[q]
    def p3(self):
        I = self.I; vAd = VW; vXf = VW + 12; vB = VW + 36; vZ = VW + 56; vP = VW + 76
        lds = [f'buffer_load_dword v{vB + 4*m5 + i}, v{vAd}, {WS}, {sP[0]} offen offset:{m5*128 + i*640} sc1' for m5 in (2, 3, 1, 4, 0) for i in range(4)]
        self.p3_pre2()
        for x in lds: I(x)
        self.p3_pre3()
        a, b = self.retry(lds, self.max_test([vB + 4*m5 + i for m5 in (2, 3, 1, 4, 0) for i in range(4)], vZ)); a(); b()
        self.stamp('p3 T')
        self.sprinkle(self.w2_items(self.opt.get('w2_p3', 24)), self.opt.get('p3_per', 6))
        for m5 in (2, 3, 1, 4, 0):
            I(f'v_mfma_f32_16x16x32_bf16 {vr(vZ + 4*m5, 4)}, {vr(vA3, 4)}, {vr(vB + 4*m5, 4)}, 0')
        Zr = [vZ + 4*m for m in range(5)]; Zi = [vZ + 4*m + 2 for m in range(5)]
        pool = [vP + 2*i for i in range(48)]
        mu = self.bc(vTW3 + 12); nu = self.bc(vTW3 + 13)
        u0, U0, u1, V1, U1, v1, u2, V2, U2, v2 = [pool.pop(0) for _ in range(10)]
        fm = lambda d, a, c, neg_c=False: self.pk('fma', d, a, mu[0], c, bsel=mu[1], neg_c=neg_c)
        fm(u2, Zr[3], Zr[2]); fm(V2, Zr[2], Zr[3], True); fm(U2, Zi[2], Zi[3]); fm(v2, Zi[3], Zi[2], True)
        fm(u1, Zr[4], Zr[1]); fm(V1, Zr[1], Zr[4], True); fm(U1, Zi[1], Zi[4]); fm(v1, Zi[4], Zi[1], True)
        self.pk('mul', u0, Zr[0], mu[0], bsel=mu[1]); self.pk('mul', U0, Zi[0], nu[0], bsel=nu[1])
        def half(a0, a1, a2, b1, b2):
            p1, p2, q1, q2, z0, z1, z2, z3, z4 = [pool.pop(0) for _ in range(9)]
            self.pk('fma', p1, a1, sC, a0, bsel=0); self.pk('fma', p2, a1, sC, a0, bsel=1)
            self.pk('mul', q1, b1, sS, bsel=0); self.pk('mul', q2, b1, sS, bsel=1); self.pk('add', z0, a0, a1)
            self.pk('fma', p1, a2, sC, p1, bsel=1); self.pk('fma', p2, a2, sC, p2, bsel=0)
            self.pk('fma', q1, b2, sS, q1, bsel=1); self.pk('fma', q2, b2, sS, q2, bsel=0, neg_b=True); self.pk('add', z0, z0, a2)
            self.pk('add', z1, p1, q1); self.pk('add', z2, p2, q2); self.pk('add', z3, p2, q2, neg_b=True); self.pk('add', z4, p1, q1, neg_b=True)
            return [z0, z1, z2, z3, z4]
        zr = half(u0, u1, u2, v1, v2); zi = half(U0, U1, U2, V1, V2)
        Vr = [zr[0]] + [pool.pop(0) for _ in range(4)]; Vi = [zi[0]] + [pool.pop(0) for _ in range(4)]
        for c in range(5):
            if c:
                t1, t2, t3 = self.bc(vTW3 + c - 1), self.bc(vTW3 + 4 + c - 1), self.bc(vTW3 + 8 + c - 1)
                self.pk('mul', Vr[c], zr[c], t1[0], bsel=t1[1]); self.pk('mul', Vi[c], zi[c], t3[0], bsel=t3[1])
                self.pk('fma', Vr[c], zi[c], t2[0], Vr[c], bsel=t2[1], neg_b=True); self.pk('fma', Vi[c], zr[c], t2[0], Vi[c], bsel=t2[1])
            d = vB + 2*c
            for jb in range(2): I(f'v_cvt_pk_bf16_f32 v{d+jb}, v{Vr[c] + jb}, v{Vi[c] + jb}')
            for jb in range(2): I(f'ds_write_b32 v{vAd+1}, v{d+jb} offset:{(c*8 + jb)*288}')
        I('s_mov_b32 s44, 0x3f80'); I('s_mov_b32 s45, 0x3f800000')
        self.barrier()
        self.stamp('p3 bar1', fine=True)
        vF = vP; vY = vP + 48
        for tau in range(3):
            for ks in range(4): I(f'ds_read_b128 {vr(vF + 4*(tau*4 + ks), 4)}, v{vAd+2} offset:{tau*16*288 + ks*64}')
        rest = self.bgq; self.bgq = None
        vHp = vB; vL = vZ
        vS = 246; vs, vq, vone = f'v{vS}', f'v{vS+1}', f'v{vAd+7}'
        def mf(tau):
            L = []
            for ks in range(4):
                for mu_ in range(2):
                    d = vr(vY + 8*tau + 4*mu_, 4)
                    L.append(f'v_mfma_f32_16x16x32_bf16 {d}, {ar(aA3 + 4*(mu_*4 + ks), 4)}, {vr(vF + 4*(tau*4 + ks), 4)}, {vr(vXf + 8*tau + 4*mu_, 4) if ks == 0 else d}')
            return L
        def post(tau):
            R = range(4*tau, 4*tau + 4)
            L = [f'v_cvt_pk_bf16_f32 v{vHp + i}, v{vY + 2*i}, v{vY + 2*i + 1}' for i in R]
            for i in R: L += [f'v_dot2_f32_bf16 v{vY + 2*i + e}, v{vHp+i}, s{44+e}, v{vMu}' for e in range(2)]
            L += [f'v_cvt_pk_bf16_f32 v{vL + i}, v{vY + 2*i}, v{vY + 2*i + 1}' for i in R]
            return L + [f'buffer_store_dwordx4 {vr(vL + 4*tau, 4)}, v{vAd + (6 if tau == 2 else 5)}, {WS}, {sP[1+tau]} offen sc1']
        self.weave(mf(0), []); self.weave(mf(1), post(0), per=3, start=2); self.weave(mf(2), post(1), per=3, start=2)
        for x in post(2): I(x)
        self.stamp('p3 end')
        for it in rest:
            for x in it: I(x)
        self.w2_loads(self.opt.get('w2_s3', 4))
        for i in range(12):
            I(f'v_dot2_f32_bf16 {vs}, v{vHp+i}, {vone}, {vs if i else 0}'); I(f'v_dot2_f32_bf16 {vq}, v{vHp+i}, v{vHp+i}, {vq if i else 0}')
        I(f'v_add_f32_dpp {vs}, {vs}, {vs} row_ror:8 row_mask:0xf bank_mask:0xf'); I(f'v_add_f32_dpp {vq}, {vq}, {vq} row_ror:8 row_mask:0xf bank_mask:0xf')
        for sw in ('v_permlane16_swap_b32', 'v_permlane32_swap_b32'):
            I(f'v_mov_b32 v{vS-2}, {vs}'); I(f'v_mov_b32 v{vS-1}, {vq}')
            I(f'{sw} {vs}, v{vS-2}'); I(f'{sw} {vq}, v{vS-1}')
            I(f'v_add_f32 {vs}, {vs}, v{vS-2}'); I(f'v_add_f32 {vq}, {vq}, v{vS-1}')
        I(f'ds_write_b64 v{vAd+3}, {vr(vS, 2)}')
        self.barrier()
    def p3_stats(self):
        I = self.I; vAd = VW; vS = 246; t = 236; vs, vq = f'v{vS}', f'v{vS+1}'
        snap = self.cond_begin(); L = self.newlabel('Lst')
        I(f's_cmp_lg_u32 {sW}, 0'); I(f's_cbranch_scc1 {L}')
        I(f'ds_read_b128 {vr(t, 4)}, v{vAd+4}'); I(f'ds_read_b128 {vr(t+4, 4)}, v{vAd+4} offset:16')
        self.pk('add', t, t, t + 2); self.pk('add', t + 4, t + 4, t + 6); self.pk('add', vS, t, t + 4)
        for x in self.finish_stats(vs, vq, None): I(x)
        I(f'v_lshrrev_b32 {vs}, 16, v{vMu}'); I(f'v_or_b32 v{vS-2}, {vs}, {vq}'); I(f'v_mov_b32 v{vS-1}, {vTag}')
        I(f'buffer_store_dwordx4 {vr(vS-2, 4)}, v{vAd+6}, {WS}, {sP[3]} offen offset:2048 sc1')
        self.cond_end(snap); self.label(L)

    def w1_items(self, cs):
        L = []
        for c in cs:
            for pt in range(7):
                L.append(([f's_add_u32 m0, s86, {c*4*7168 + pt*1024}'] if pt % 4 == 0 else []) + ([f's_add_u32 s88, s85, {c*3456}'] if pt == 0 else []) +
                         [f'buffer_load_dwordx4 v{vW1A + pt}, {W1}, s88 offen offset:{(pt & 3)*1024} lds'])
        return L
    def w2reg(self, f):
        if f < 32: return ar(128 + 4*f, 4)
        if f < 54: return ar(4*(f - 32), 4)
        return vr([8, 12, 36, 40, 16, 20, 44, 48, 24, 28, 52, 56, 184, 188, 32, 60][f - 54], 4)
    def w2_items(self, n, lim=54):
        L = []
        for i in range(n):
            f = self.w2next
            if f >= lim: break
            self.w2next += 1
            L.append(([f's_add_u32 s87, {sW2B}, {(f & ~3)*1024}'] if f % 4 == 0 else []) +
                     [f'buffer_load_dwordx4 {self.w2reg(f)}, {vL16}, {WS}, s87 offen offset:{(f & 3)*1024} sc1'])
        return L
    def w2_loads(self, n, lim=54):
        for x in sum(self.w2_items(n, lim), []): self.I(x)

    def emit(self, x):
        if callable(x): x()
        else: self.I(x)
    def wait_regs(self, regs):
        regs = {('v', r) for r in regs}; last = None
        for p in self.vm:
            if p[1] & regs: last = p[0]
        if last is not None: self.wait_tok(last)
    def p5_plan(self):
        oe = self.opt.get('own_early', 0)
        order = [(kp, mu) for kp in range(12) for mu in (1, 2, 3)] + [(kp, 0) for kp in range(oe)]
        order += [(kp, mu) for mu in (1, 2, 3) for kp in (12, 13)] + [(kp, 0) for kp in range(oe, 14)]
        self.gen_ok = 0
        self.gen_of = lambda i: order[i][0] >> 2
        self.order5 = order; self.NRF = 20
        self.hreg = lambda i: 64 + 4*(i % self.NRF)
        self.ldh = lambda i: f'buffer_load_dwordx4 {vr(self.hreg(i), 4)}, {vL16}, {WS}, {self.sH(order[i][1], KORD[order[i][0]] >> 2)} offen offset:{(KORD[order[i][0]] & 3)*1024} sc1'
        self.nxt5 = 0
    def f4_signal(self, gen, last):
        def w():
            if self.opt.get('st4'): self.stamp(f'sig{gen}a')
            self.wait_tok(self.toks[last])
            if self.opt.get('st4'): self.stamp(f'sig{gen}b')
        return [w, f'buffer_store_dword {vTag}, v235, {WS}, s45 offen offset:{gen*128} sc1']
    def f4_load(self, gen): return f'buffer_load_dword v234, v0, {WS}, s46 offen offset:{gen*128} sc1'
    def f4_ld(self, gen):
        def touch():
            self.I(f'buffer_load_dword v234, v7, {WS}, s47 offen offset:{gen*1024} sc1'); self.vm[-1] = (self.vm[-1][0], set())
        return ([touch] if self.opt.get('h1touch', 0) else []) + [self.f4_load(gen)]
    def f4_check(self, gen):
        a, b = self.retry([self.f4_load(gen)], ['v_cmp_ne_u32 vcc, s62, v234', 's_cbranch_vccnz'], inline=False)
        def fin():
            b(); self.gen_ok = gen + 1
            if self.opt.get('st4'): self.stamp(f'chk{gen}b')
        def w():
            if self.opt.get('st4'): self.stamp(f'chk{gen}a')
            self.wait_regs([234])
        return [w, a.items[0], fin]
    def p4(self):
        I = self.I; opt = self.opt
        vAcc = 8; vLn = 64; vK = 230; vT = 236; vO = 244; vC = 234
        lnreg = lambda mt, k: vLn + 8*k + 4*mt
        blocks = [(0, 1, 2, 3), (4, 5), (6,)]
        frags = [(k, nt) for b in blocks for k in range(20) for nt in b]
        D = 7
        bf = lambda i: aBf + 4*(i % 10)
        def rd(i, hf):
            k, nt = frags[i]
            base = (252 if nt == 6 else 224) + k // 8; off = (k % 8)*7168 + hf*16*224 + (0 if nt == 6 else nt*32)
            return f'ds_read_b64_tr_b16 {ar(bf(i) + 2*hf, 2)}, v{base} offset:{off}'
        lda = lambda k, mt: f'buffer_load_dwordx4 {vr(lnreg(mt, k), 4)}, v{227 + mt}, {WS}, {sP[4 + (k >> 3)]} offen offset:{(k & 7)*512} sc1'
        PRE = opt.get('p4_pre', 8); CH = opt.get('p4_chk', 4)
        first = [lda(k, mt) for k in range(PRE) for mt in range(2)]
        for x in first: I(x)
        self.p3_stats()
        self.epoch()
        self.p5_offsets((0,))
        for i in range(D): I(rd(i, 0)); I(rd(i, 1))
        I(f's_mov_b32 s44, {f32(-1.4426950408889634)}')
        I(f's_lshl_b32 s46, {sG}, 15'); I(f's_add_u32 s46, s46, {WS_FL4}'); I(f's_lshr_b32 {sT[0]}, {sW}, 1'); I(f's_lshl4_add_u32 {sT[0]}, {sT[0]}, {sM}')
        I(f's_and_b32 {sT[1]}, {sW}, 1'); I(f's_lshl1_add_u32 {sT[0]}, {sT[0]}, {sT[1]}'); I(f's_lshl_b32 {sT[0]}, {sT[0]}, 9'); I(f's_add_u32 s45, s46, {sT[0]}')
        I(f's_and_b32 {sT[0]}, {sT[5]}, 4'); I(f's_add_u32 {sT[0]}, {sT[0]}, {sW}'); I(f's_lshl_b32 {sT[0]}, {sT[0]}, 12'); I(f's_add_u32 s46, s46, {sT[0]}')
        I(f'v_lshrrev_b32 v235, 5, {vLane}'); I(f'v_lshlrev_b32 v235, 26, v235'); I(f'v_lshl_add_u32 v235, {vLane}, 2, v235'); I(f'v_and_b32 v0, 7, {vLane}'); I('v_lshlrev_b32 v0, 9, v0')
        I(f's_and_b32 {sT[0]}, {sY}, 3'); I(f's_add_u32 {sT[0]}, {sT[0]}, {sT[5]}'); I(f's_mul_i32 s47, {sT[0]}, 57344'); I(f's_add_u32 s47, s47, {sT[3]}'); I(f's_add_u32 s47, s47, {WS_H1}')
        I(f'v_bfe_u32 v7, {vLane}, 3, 2'); I('v_mad_u32_u24 v7, v7, 7, 1'); I('v_lshrrev_b32 v7, 1, v7'); I('v_lshlrev_b32 v7, 12, v7'); I('v_add_u32 v7, v7, v0'); I('v_lshrrev_b32 v7, 2, v7')
        self.stamp('p4 pre', fine=True)
        a, b = self.retry(first, self.max_test([lnreg(mt, k) + 3 for k in range(CH) for mt in range(2)], vC)); a(); b()
        self.stamp('p4 LN')
        self.p5_plan()
        def silu(nt, mt, dst2, t, pk):
            r = vAcc + 4*(mt*7 + nt); kn, sg = vK + 2*mt, vK + 2*mt + 1
            if pk:
                L = [f'v_pk_mul_f32 {vr(t+2*h, 2)}, {vr(r+2*h, 2)}, {vr(kn, 2)} op_sel:[0,0] op_sel_hi:[1,0]' for h in range(2)]
                L += [f'v_exp_f32 v{t+i}, v{t+i}' for i in range(4)]
                L += [f'v_pk_fma_f32 {vr(t+2*h, 2)}, {vr(t+2*h, 2)}, {vr(kn, 2)}, {vr(kn, 2)} op_sel:[0,1,1] op_sel_hi:[1,1,1]' for h in range(2)]
                L += [f'v_rcp_f32 v{t+i}, v{t+i}' for i in range(4)]
                L += [f'v_pk_mul_f32 {vr(t+2*h, 2)}, {vr(t+2*h, 2)}, {vr(r+2*h, 2)}' for h in range(2)]
            else:
                L = [f'v_mul_f32 v{t+i}, v{r+i}, v{kn}' for i in range(4)] + [f'v_exp_f32 v{t+i}, v{t+i}' for i in range(4)]
                L += [f'v_fma_f32 v{t+i}, v{t+i}, v{sg}, v{sg}' for i in range(4)] + [f'v_rcp_f32 v{t+i}, v{t+i}' for i in range(4)]
                L += [f'v_mul_f32 v{t+i}, v{t+i}, v{r+i}' for i in range(4)]
            return L + [f'v_cvt_pk_bf16_f32 v{dst2+h}, v{t+2*h}, v{t+2*h+1}' for h in range(2)]
        units = [(pr, mt) for pr in range(3) for mt in range(2)] + [(3, 0)]
        def unit(u, half, pk):
            pr, mt = units[u]; o = vO + 4*(u & 1)
            if pr < 3: L = silu(2*pr + half, mt, o + 2*half, vT + 4*half, pk)
            else: L = silu(6, half, o + 2*half, vT + 4*half, pk)
            if half:
                if pr == 3: L += [f'v_permlane16_swap_b32 v{o}, v{o+2}', f'v_permlane16_swap_b32 v{o+1}, v{o+3}']
                L.append(self.h1_store(o, pr, mt, 229))
            return L
        todo = [(u, h) for u in range(7) for h in range(2)]
        cur = []
        def next_fill(limit):
            nonlocal cur
            if not cur and todo and todo[0][0] < limit: cur = unit(*todo.pop(0), False)
            return cur.pop(0) if cur else None
        ldst = [f'buffer_load_dwordx2 {vr(vK + 2*mt, 2)}, v{227 + mt}, {WS}, {sP[6]} offen offset:2048 sc1' for mt in range(2)]
        sa, sb = self.retry(ldst, [f'v_cmp_ne_u32 vcc, s62, v{vK+1}', f'v_cmp_ne_u32 {sPAIR}, s62, v{vK+3}', f's_or_b64 vcc, vcc, {sPAIR}', 's_cbranch_scc1'], inline=False)
        stc = []
        for mt in range(2): stc += [f'v_and_b32 v{vK+2*mt+1}, 0xffff0000, v{vK+2*mt}', f'v_rcp_f32 v{vK+2*mt}, v{vK+2*mt+1}']
        stc += [f'v_mul_f32 v{vK+2*mt}, s44, v{vK+2*mt}' for mt in range(2)]
        nxt = PRE; q = []; done = CH
        w2B = []
        def w2one(lim):
            if not w2B: w2B.extend(sum(self.w2_items(1, lim), []))
            if w2B: I(w2B.pop(0)); return True
        def burst(n, lim):
            for j in range(n):
                L = unit(*todo.pop(0), True)
                for p, x in enumerate(L):
                    I(x)
                    if p == 5 or (p == 11 and j % 2 < opt.get('w2_burst', 1)):
                        w2one(lim)
                        if w2B: w2one(lim)
        H0 = opt.get('h1_at', 1); HN = opt.get('h1_pre', 10)
        fix = {}
        for i, (k, nt) in enumerate(frags):
            blk = 0 if i < 80 else 1 if i < 120 else 2
            if blk == 0 and nt == 0:
                fix = {}
                assert k < done
                if nxt < 20: fix[0] = [lda(nxt, 0)]; fix[1] = [lda(nxt, 1)]; nxt += 1
                elif k == opt.get('st_at', 14): fix[0] = [ldst[0]]; fix[1] = [ldst[1]]
                if k + 1 == done and done < 20:
                    assert nxt >= done + 2
                    regs = [lnreg(m, kk) + 3 for kk in (done, done + 1) for m in range(2)]
                    a, b = self.retry([lda(kk, m) for kk in range(done, nxt) for m in range(2)], self.max_test(regs, vC), inline=False)
                    fix[2] = [lambda regs=regs: self.wait_regs(regs)]
                    fix[4], fix[5], fix[6], fix[7] = [a.items[0]], [a.items[1]], [a.items[2]], [b]
                    done += 2
                if k == 18:
                    fix[0] = [lambda: self.wait_regs([vK + 3])]; fix[1] = [sa.items[0]]; fix[2] = [sa.items[1]]; fix[4] = [sa.items[2], sb]
                if k == 19:
                    for p, x in zip((0, 1, 2, 4, 5, 6), stc): fix[p] = [x]
            if i == 80:
                self.stamp('p4 A', fine=True)
                burst(8, 54)
                self.stamp('p4 burst', fine=True)
            if i == 80 + opt.get('sig0', 30): q += self.f4_signal(0, self.h1_store(vO + 4, 0, 1, 229))
            if i == 80 + opt.get('sig1', 37): q += self.f4_signal(1, self.h1_store(vO + 4, 1, 1, 229))
            if i == 80 + opt.get('ld0', 42): q += self.f4_ld(0)
            if i == 120 + opt.get('chk0', 12): q += self.f4_check(0)
            if i == 120:
                self.stamp('p4 B1', fine=True)
                assert not q and not cur
                burst(4, 62)
                self.stamp('p4 burst2', fine=True)
            if blk == 2 and self.gen_ok:
                if self.nxt5 < HN and self.hreg(self.nxt5) + 4 <= lnreg(0, k) and not q and k % opt.get('h1_per', 2) == 0: q.append(self.ldh(self.nxt5)); self.nxt5 += 1
            if i % 2 == 0:
                for p in list(self.lg):
                    if ('a', bf(min(i + 1, len(frags) - 1)) + 3) in p[1]: self.wait_tok(p[0])
            for mt in range(2):
                d = vr(vAcc + 4*(mt*7 + nt), 4)
                I(f'v_mfma_f32_16x16x32_bf16 {d}, {ar(bf(i), 4)}, {vr(lnreg(mt, k), 4)}, {"0" if k == 0 else d}')
                if i + D < len(frags): I(rd(i + D, mt))
                if blk == 0:
                    for x in fix.get(2*nt + mt, []): self.emit(x)
                elif not (i % 2 == 1 and mt == 1):
                    if q: self.emit(q.pop(0))
                    elif w2B or (i % 2 == 0 and mt == 0 and (blk == 1 or not self.gen_ok)): w2one(62 if blk == 1 else 66)
        assert not q
        self.stamp('p4 loop')
        if opt.get('sig2', -2) == -2:
            for x in self.f4_signal(2, self.h1_store(vO + 4, 2, 1, 229)): self.emit(x)
        for x in self.f4_ld(1): self.emit(x)
        for x in w2B: I(x)
        self.sprinkle([[self.ldh(i)] for i in range(self.nxt5, HN)] + self.w2_items(opt.get('w2_tail', 2), 68), opt.get('tail_per', 8)); self.nxt5 = max(self.nxt5, HN)
        for x in cur: I(x)
        for u, h in todo:
            for x in unit(u, h, True): I(x)
        self.bg()
        if opt.get('sig2', -2) == -1:
            for x in self.f4_signal(2, self.h1_store(vO + 4, 2, 1, 229)): self.emit(x)

    def p5(self):
        I = self.I; opt = self.opt
        order = self.order5; NRF = self.NRF; vC = 234
        acc = lambda mu, nt: vr(164 + 4*nt, 4) if mu == 0 else vr(144 + 4*nt, 4) if mu == 3 else ar(68 + 20*mu + 4*nt, 4)
        par = lambda s, nt: [144 + 4*nt, 64 + 4*nt, (84, 88, 92, 128, 132)[nt]][s]
        vHr = 192; vHf = 202; vAd = 224; vM = 222
        PD = opt.get('p5_pd', 10)
        print('late w2:', 70 - self.w2next)
        late = sum(self.w2_items(70, 70), [])
        rec = Rec()
        J = rec.I
        J(f'v_lshrrev_b32 v{vAd}, 1, {vG}'); J(f'v_sub_u32 v{vAd}, v{vAd}, {vG}'); J(f'v_lshl_add_u32 v{vAd}, v{vAd}, 7, v227')
        J(f'v_and_b32 v{vAd+1}, 1, {vG}'); J(f'v_lshl_add_u32 v{vAd}, v{vAd+1}, 3, v{vAd}')
        rec.opt = opt; K.tile0(rec, sT[5]); J(f's_add_u32 {sT[6]}, {sT[5]}, {sW}'); K.cb5(rec, sT[3])
        J(f's_mul_i32 {sP[4]}, {sT[6]}, {2*TS}'); J(f's_add_u32 {sP[4]}, {sP[4]}, {O_LN}'); J(f's_add_u32 {sP[7]}, {sP[4]}, 8192')
        J(f's_lshl_b32 {sT[4]}, {sT[3]}, 8'); J(f's_add_u32 {sP[4]}, {sP[4]}, {sT[4]}'); J(f's_add_u32 {sP[5]}, {sP[4]}, 4096'); J(f's_add_u32 {sP[6]}, {sP[4]}, 8192')
        J(f's_mul_i32 s44, {sT[6]}, 1280'); J(f's_mul_i32 {sT[3]}, {sT[3]}, 160'); J(f's_add_u32 s44, s44, {sT[3]}')
        resl = [f'buffer_load_dwordx2 {vr(vHr + 2*c, 2)}, v{vAd}, {WS}, {sP[4 + (c >> 1)]} offen offset:{(c & 1)*2048} sc1' for c in range(5)]
        resl += [f'buffer_load_dword v{vM}, v227, {WS}, {sP[7]} offen offset:2048 sc1']
        resc = [f'v_lshlrev_b32 v{vM}, 16, v{vM}']
        for c in range(5):
            for qq in range(4):
                src = vHr + 2*c + (qq >> 1); d = vHf + 5*qq + c
                resc += [f'v_and_b32 v{d}, 0xffff0000, v{src}' if qq & 1 else f'v_lshlrev_b32 v{d}, 16, v{src}']
        resc += [f'v_sub_f32 v{vHf + i}, v{vHf + i}, v{vM}' for i in range(20)]
        resc += [f'v_cvt_pk_bf16_f32 v{vHr + i}, v{vHf + 2*i}, v{vHf + 2*i + 1}' for i in range(10)]
        for i in range(10): resc += [f'v_lshlrev_b32 v{vHf + 2*i}, 16, v{vHr + i}', f'v_and_b32 v{vHf + 2*i + 1}, 0xffff0000, v{vHr + i}']
        adr = []
        for mu in range(1, 4):
            adr += [f's_add_u32 {sT[2]}, {sW}, {mu}', f's_and_b32 {sT[2]}, {sT[2]}, 3', f's_mul_i32 {sT[2]}, {sT[2]}, 15360', f's_add_u32 {sT[2]}, {sT[2]}, {(mu - 1)*5120}',
                    f'v_add_u32 v{vAd + 5 + mu}, {sT[2]}, {vL16}']
        adr += [f's_mul_i32 {sT[2]}, {sW}, 15360', f'v_add_u32 v{vAd+5}, {sT[2]}, {vL16}']
        adr += [f'v_mul_u32_u24 v{vAd+1}, 163840, {vN}', f'v_mul_u32_u24 v{vAd+2}, 40, {vG}', f'v_add_u32 v{vAd+1}, v{vAd+1}, v{vAd+2}']
        lastof = {mu: max(i for i, o in enumerate(order) if o[1] == mu) for mu in range(4)}
        seen = set(); wr = []; slow = rec.L + adr; mem = []
        B1 = opt.get('p5_bar1', 8); B2 = lastof[3] + opt.get('p5_bar2', 7)
        ev = {opt.get('chk1', 2): self.f4_check(1), opt.get('ld2', 6): self.f4_ld(2), opt.get('sig3', 7): self.f4_signal(3, self.h1_store(244, 3, 0, 229)),
              opt.get('chk2', 14): self.f4_check(2), opt.get('ld3', 18): self.f4_ld(3), opt.get('chk3', 26): self.f4_check(3)}
        if opt.get('sig2', -2) >= 0: assert opt['sig2'] not in ev; ev[opt['sig2']] = self.f4_signal(2, self.h1_store(248, 2, 1, 229))
        assert len(ev) >= 6
        for i, (kp, mu) in enumerate(order):
            if i == B1:
                assert not slow
                I('s_barrier'); mem += resl
            if i == opt.get('res_at', 32): assert not mem; slow += resc
            for m in (1, 2, 3):
                if i == lastof[m] + 1: wr += [f'ds_write_b128 v{vAd + 5 + m}, {acc(m, nt)} offset:{nt*1024}' for nt in range(5)]
            if i == B2:
                assert not wr and i >= 48 and self.nxt5 == 56
                self.barrier()
                slow += [f'ds_read_b128 {vr(par(s, nt), 4)}, v{vAd+5} offset:{s*5120 + nt*1024}' for nt in range(5) for s in range(3)]
                for nt in range(5):
                    slow += [f'v_add_f32 v{par(1, nt) + e}, v{par(1, nt) + e}, v{par(2, nt) + e}' for e in range(4)]
                    slow += [f'v_add_f32 v{par(0, nt) + e}, v{par(0, nt) + e}, v{par(1, nt) + e}' for e in range(4)]
            c = list(ev.get(i, []))
            if i in (14, 28, 42) and opt.get('st5'): self.stamp(f'p5 {i}')
            for nt in range(5):
                d = acc(mu, nt)
                assert not any(f' {self.w2reg(kp*5 + nt)},' in x for x in late)
                I(f'v_mfma_f32_16x16x32_bf16 {d}, {self.w2reg(kp*5 + nt)}, {vr(self.hreg(i), 4)}, {d if mu in seen else "0"}')
                n0 = self.nins
                assert i < self.nxt5
                if nt == 0 and self.nxt5 < len(order) and self.nxt5 <= i + PD and self.nxt5 < i + NRF and self.gen_of(self.nxt5) < self.gen_ok:
                    I(self.ldh(self.nxt5)); self.nxt5 += 1
                if nt == 1 and i % opt.get('late_per', 2) == 0:
                    if late:
                        if late[0].startswith('s_add'): I(late.pop(0))
                        I(late.pop(0))
                    elif mem: I(mem.pop(0))
                if c and nt >= 2: self.emit(c.pop(0)); continue
                if wr and (5*i + nt) % opt.get('wr_per', 3) == 0: I(wr.pop(0)); continue
                if nt == 4 and i + 1 < len(order): self.wait_regs([self.hreg(i + 1)])
                while self.nins - n0 < opt.get('fill5', 2) and slow: I(slow.pop(0))
            seen.add(mu)
        assert not late and not mem
        for x in slow: I(x)
        self.stamp('p5 loop')
        vO = 64; S = 144
        for i in range(10): self.pk('add', S + 2*i, S + 2*i, 164 + 2*i)
        for i in range(10): I(f'v_cvt_pk_bf16_f32 v{vO + i}, v{S + 2*i}, v{S + 2*i + 1}')
        for i in range(10):
            I(f'v_lshlrev_b32 v{S + 2*i}, 16, v{vO + i}'); I(f'v_and_b32 v{S + 2*i + 1}, 0xffff0000, v{vO + i}')
        vO = 76
        for i in range(10):
            self.pk('add', S + 2*i, S + 2*i, vHf + 2*i)
            I(f'v_cvt_pk_bf16_f32 v{vO + i}, v{S + 2*i}, v{S + 2*i + 1}')
            if i == 3: I(f'buffer_store_dwordx4 {vr(vO, 4)}, v{vAd+1}, {OUT}, s44 offen {opt.get("omod", "")}')
            if i == 7: I(f'buffer_store_dwordx4 {vr(vO + 4, 4)}, v{vAd+1}, {OUT}, s44 offen offset:16 {opt.get("omod", "")}')
        I(f'buffer_store_dwordx2 {vr(vO + 8, 2)}, v{vAd+1}, {OUT}, s44 offen offset:32 {opt.get("omod", "")}')

    def build(self):
        I = self.I
        self.w2next = 0; self.vW2X = 168
        opt = self.opt
        self.p1()
        nm = dict(B=self.b1, t=[self.tw], a=[self.ad], A=self.p3_table_items(vFl + 3, 's63', 's87'))
        sel = self.sel = lambda s: sum([nm[c] if c in nm else self.w1_items([int(c)]) for c in s], [])
        nm['p'] = self.poC
        t0, t1 = 's94', 's95'
        nm['f'] = [[f'buffer_store_dwordx2 {vr(vPo, 2)}, v211, {WS}, {sP[3]} offen sc1']]
        nm['g'] = [[f's_lshr_b32 {t0}, {sW}, 1', f's_lshl4_add_u32 {t0}, {t0}, {sM}', f's_and_b32 {t1}, {sW}, 1', f's_lshl1_add_u32 {t0}, {t0}, {t1}', f's_lshl_b32 {t0}, {t0}, 9',
                    f's_lshl_b32 {t1}, {sG}, 15', f's_add_u32 {t0}, {t0}, {t1}', f's_add_u32 {t0}, {t0}, {WS_FL4}', f'v_lshrrev_b32 v{vFl+3}, 1, {vL16}',
                    f'buffer_store_dwordx2 {vr(vPo, 2)}, v{vFl+3}, {WS}, {t0} offen sc1']]
        nm['h'] = [[f's_add_u32 {t0}, {sBLK}, {O_LN + 10240}', f's_lshl_b32 {t1}, {sW}, 26', f's_add_u32 {t0}, {t0}, {t1}', f'v_lshrrev_b32 v{vFl+3}, 1, {vL16}',
                    f'buffer_store_dwordx2 {vr(vPo, 2)}, v{vFl+3}, {WS}, {t0} offen sc1']]
        rec = Rec(); rec.opt = opt; sv = list(sT); sT[1] = 's93'
        K.tile0(rec, t0); K.cb5(rec, t1); sT[:] = sv
        nm['o'] = [rec.L + [f's_add_u32 {t0}, {t0}, {sW}', f's_mul_i32 {t0}, {t0}, 1280', f's_mul_i32 {t1}, {t1}, 160', f's_add_u32 {t0}, {t0}, {t1}',
                    f'v_mul_u32_u24 v{vFl+3}, 163840, {vN}', f'v_mad_u32_u24 v{vFl+3}, {vG}, 40, v{vFl+3}', f'buffer_store_dword v{vPo}, v{vFl+3}, {OUT}, {t0} offen']]
        nm['k'] = [[f's_mul_i32 {t0}, {sG}, 458752', f's_mul_i32 {t1}, {sW}, 114688', f's_add_u32 {t0}, {t0}, {t1}', f's_lshr_b32 {t1}, {sM}, 1', f's_mul_i32 {t1}, {t1}, 7168',
                    f's_add_u32 {t0}, {t0}, {t1}', f's_add_u32 {t0}, {t0}, {WS_H1}', f's_mul_i32 {t1}, {sHH}, 3584', f's_add_u32 {t0}, {t0}, {t1}',
                    f'v_and_b32 v{vFl+3}, 31, {vLane}', f'v_min_u32 v{vFl+3}, 27, v{vFl+3}', f'v_lshlrev_b32 v{vFl+3}, 7, v{vFl+3}', f'v_lshrrev_b32 v{vFl}, 5, {vLane}',
                    f'v_mul_u32_u24 v{vFl}, 57344, v{vFl}', f'v_add_u32 v{vFl+3}, v{vFl+3}, v{vFl}',
                    f'buffer_store_dword v{vPo}, v{vFl+3}, {WS}, {t0} offen {opt.get("kmod", "sc1")}']]
        nm['b'] = [[f's_lshl_b32 {t0}, s2, 7', f's_and_b32 {t1}, {sW}, 1', f's_lshl_b32 {t1}, {t1}, 6', f's_add_u32 {t0}, {t0}, {t1}', f's_add_u32 {t0}, {t0}, {WS_FLB}',
                    f'buffer_store_dwordx2 {vr(vPo, 2)}, v211, {WS}, {t0} offen sc1']]
        if opt.get('tall', 1): nm.update(self.touch_all())
        nm['_'] = [[]]
        self.p1a(sel(opt.get('pre', '_Btxyr')), opt.get('pre_per', 12))
        snap = self.cond_begin()
        I(f's_cmp_ge_u32 {sY}, 20'); I('s_cbranch_scc1 L_nop2')
        self.tile()
        self.sprinkle(self.pre_rest, opt.get('pre_per2', 20))
        if opt.get('f2_at', 0) == 0: self.dft32(False, VW + 76)
        self.bg()
        if opt.get('wa_at', 1) == 0: nm['W'] = self.w_addr(VW + 152)
        self.p1b(sel(opt.get('P_p1', '___________pgh____s')), opt.get('p1_per', 14))
        self.stamp('p1 sig')
        if opt.get('wa_at', 1) == 1: nm['W'] = self.w_addr(VW + 152)
        self.ldA = self.flag_load('A', sP[18], False)
        self.p2()
        self.cond_end(snap, True); I('s_branch L_join2'); self.label('L_nop2')
        self.vm = list(snap[0]); self.lg = list(snap[1])
        snap = self.cond_begin()
        if set('wvde') & set(opt.get('H_pre', '') + opt.get('H_p1', '') + opt.get('H_x1', '') + opt.get('H_x2', '')): nm.update(self.touch_addr())
        self.run(sel(opt.get('H_pre', '')))
        if opt.get('stT'): self.stamp('tch iss'); self.wait_vm0(); self.stamp('tch ret')
        nm['R'] = self.repack_addr(VW + 152)
        self.run(self.pre_rest)
        self.p1b(sel(opt.get('H_p1', '___________pgh____s')), opt.get('p1_perH', 14))
        self.stamp('p1 sig')
        self.helper()
        self.cond_end(snap, True); self.label('L_join2')
        self.vm = [(-1, set())]
        self.stamp('join2')
        self.p3_pre()
        self.stamp('flagB')
        self.w2_loads(self.opt.get('w2_s2', 0))
        self.p3()
        self.p4()
        self.stamp('p4 end')
        self.p5()
        if self.stamps and self.opt.get('fine'): self.stamp('issued'); self.wait_vm0(True)
        self.stamp('end')
        self.label('L_end'); I('s_endpgm')
        self.out += self.tail

HEADER = open('sequential_preLN__spectral_gfnet__dense_activation_silu__prompt.s.ref').read().split('; Override launch')[0]
def make(stamps=False, **kw):
    k = K(stamps=stamps, **kw); k.build()
    s = HEADER + '; @launch grid=(256,1,1) block=(256,1,1) lds=163840\n'
    s += '; stamps: ' + '|'.join(k.stnames) + '\n'
    s += f'.amdgcn_target "amdgcn-amd-amdhsa--gfx950"\n.text\n.globl {KNAME}\n.p2align 8\n.type {KNAME},@function\n{KNAME}:\n'
    s += k.text()
    s += '.p2align 8\n.type L_tab,@object\nL_tab:\n' + tables.blob_asm(TBLOB) + f'\n.size L_tab, {len(TBLOB)}\n'
    s += f'''.section .rodata,"a"
.p2align 6
.amdhsa_kernel {KNAME}
  .amdhsa_next_free_vgpr 512
  .amdhsa_next_free_sgpr 102
  .amdhsa_accum_offset 256
  .amdhsa_group_segment_fixed_size 0
  .amdhsa_kernarg_size 72
  .amdhsa_user_sgpr_count 2
  .amdhsa_user_sgpr_kernarg_segment_ptr 1
  .amdhsa_system_sgpr_workgroup_id_x 1
.end_amdhsa_kernel
'''
    return s, k
if __name__ == '__main__':
    out = sys.argv[1]; st = 'stamps' in sys.argv[2:]
    kw = {}; opt = {}
    for a in sys.argv[2:]:
        if '=' in a:
            n, v = a.split('=', 1); v = eval(v)
            opt[n] = v
    s, k = make(st, opt=opt, **kw); open(out, 'w').write(s); print('instructions', k.nins, 'bytes', len(s), 'stamps', k.nst)
```
